```python
import torch

def _softmax(x, axis=-1):
    return torch.softmax(x, dim=axis)
def _gelu(x):
    return torch.nn.functional.gelu(x, approximate="tanh")
def _silu(x):
    return torch.nn.functional.silu(x)
def _sigmoid(x):
    return torch.sigmoid(x)
def _layernorm(x, axis=-1, eps=1e-5):
    m = x.mean(dim=axis, keepdim=True)
    v = x.var(dim=axis, keepdim=True, unbiased=False)
    return (x - m) / torch.sqrt(v + eps)
def _scatter_add(tgt, idx, src, axis=0):
    return tgt.clone().index_add_(axis, idx, src)
def _segment_sum(src, seg, n):
    out = torch.zeros((n,) + src.shape[1:], dtype=src.dtype)
    return out.index_add_(0, seg, src)
def _pad(x, pw):
    flat = tuple(v for pair in reversed(pw) for v in pair)
    return torch.nn.functional.pad(x, flat)

kernel_name = 'gated_mix__grouped_kv_mqa__glu_gated_bilinear__prompt'

def setup_inputs():

    _w = (lambda a: (lambda t: t.to(torch.bfloat16) if t.is_floating_point() else t)(torch.as_tensor(a)))
    def _A_setup():
        B, S, D, H = 1, 2048, 512, 32
        Dh = D // H
        return {
            "x": _w((lambda *s: torch.randn(*s, dtype=torch.bfloat16) * 0.05)(B, S, D)),
            "wq": _w((lambda *s: torch.randn(*s, dtype=torch.bfloat16) * 0.8)(D, H * Dh)),
            "wk": _w((lambda *s: torch.randn(*s, dtype=torch.bfloat16) * 0.8)(D, Dh)),
            "wv": _w((lambda *s: torch.randn(*s, dtype=torch.bfloat16) * 0.05)(D, Dh)),
            "wo": _w((lambda *s: torch.randn(*s, dtype=torch.bfloat16) * 0.05)(H * Dh, D)),
        }
    _A_in = _A_setup()

    def _B_setup():
        B, S, D, F = 1, 2048, 512, 1792
        return {
            "x": _w((lambda *s: torch.randn(*s, dtype=torch.bfloat16) * 0.05)(B, S, D)),
            "w_gate": _w((lambda *s: torch.randn(*s, dtype=torch.bfloat16) * 0.8)(D, F) * (D ** -0.5)),
            "w_up": _w((lambda *s: torch.randn(*s, dtype=torch.bfloat16) * 0.8)(D, F) * (D ** -0.5)),
            "w_down": _w((lambda *s: torch.randn(*s, dtype=torch.bfloat16) * 0.8)(F, D) * (F ** -0.5)),
        }
    _B_in = _B_setup()

    return {
        "A_x": _A_in["x"],
        "A_wq": _A_in["wq"],
        "A_wk": _A_in["wk"],
        "A_wv": _A_in["wv"],
        "A_wo": _A_in["wo"],
        "B_x": _B_in["x"],
        "B_w_gate": _B_in["w_gate"],
        "B_w_up": _B_in["w_up"],
        "B_w_down": _B_in["w_down"],
        "gate_w": _w((lambda *s: torch.randn(*s, dtype=torch.bfloat16) * 0.05)(512) * 16.0),
    }

def reference(A_x, A_wq, A_wk, A_wv, A_wo, B_x, B_w_gate, B_w_up, B_w_down, gate_w):
    def _A_ref(x, wq, wk, wv, wo):
        B, S, D = x.shape
        H = 32
        Dh = D // H
        q = (lambda x, *d: x.permute(*d))((x @ wq).reshape(B, S, H, Dh), 0, 2, 1, 3)
        k = x @ wk
        v = x @ wv
        scores = torch.einsum("bhqd,bkd->bhqk", q, k) * (Dh ** -0.5)
        p = _softmax(scores, axis=-1)
        o = torch.einsum("bhqk,bkd->bhqd", p, v)
        return (lambda x, *d: x.permute(*d))(o, 0, 2, 1, 3).reshape(B, S, H * Dh) @ wo

    def _B_ref(x, w_gate, w_up, w_down):
        g = torch.einsum("bsd,df->bsf", x, w_gate)
        u = torch.einsum("bsd,df->bsf", x, w_up)
        h = g * u
        return torch.einsum("bsf,fd->bsd", h, w_down)

    x = A_x
    g = _sigmoid((x * gate_w).sum(-1, keepdims=True))
    a = _A_ref(x, A_wq, A_wk, A_wv, A_wo)
    b = _B_ref(x, B_w_gate, B_w_up, B_w_down)
    return g * a + (1 - g) * b
```

```python
import sys, ctypes, struct
from asmrun import *
def mk(name, n_per_wave, region_mask, mode):
    body = f"""
  s_load_dwordx2 s[4:5], s[0:1], 0
  v_lshrrev_b32 v1, 6, v0
  s_nop 1
  v_readfirstlane_b32 s6, v1
  v_and_b32 v2, 63, v0
  v_lshlrev_b32 v2, 4, v2
  s_load_dwordx2 s[16:17], s[0:1], 8
  s_waitcnt lgkmcnt(0)
  s_mov_b32 s18, 0x40000000
  s_mov_b32 s19, 0x00020000
  ; start offset = (wg*{mode} + wave)*1024*n_per_wave & mask
  s_mul_i32 s20, s2, {mode}
  s_add_u32 s20, s20, s6
  s_mul_i32 s20, s20, {1024*n_per_wave}
  s_lshl_b32 s21, s6, 13
  s_mov_b32 s22, {n_per_wave//8}
  s_barrier
  s_memtime s[10:11]
  s_waitcnt lgkmcnt(0)
L_{name}:
""" + "".join(f"""
  s_and_b32 s23, s20, {region_mask}
  s_add_u32 m0, s21, {i*1024}
  s_add_u32 s20, s20, 1024
  buffer_load_dwordx4 v2, s[16:19], s23 offen lds
  s_waitcnt vmcnt(7)
""" for i in range(8)) + f"""
  s_sub_u32 s22, s22, 1
  s_cmp_lg_u32 s22, 0
  s_cbranch_scc1 L_{name}
  s_waitcnt vmcnt(0)
  s_memtime s[12:13]
  s_waitcnt lgkmcnt(0)
  s_sub_u32 s12, s12, s10
  s_lshl_b32 s14, s2, 4
  s_add_u32 s14, s14, s6
  s_lshl_b32 s14, s14, 2
  v_mov_b32 v0, s14
  v_mov_b32 v1, s12
  global_store_dword v0, v1, s[4:5]
"""
    build(name, body, 2)
N = 64
cfgs = [("bw_same", N, (1<<19)-1, 0), ("bw_2mb", N, (1<<21)-1, 8), ("bw_8mb", N, (1<<23)-1, 8), ("bw_128mb", N, (1<<27)-1, 8)]
for c in cfgs: mk(*c)
if len(sys.argv) > 1:
    import cdna_launch as cl
    hip = cl._hip
    def load(name):
        mod = ctypes.c_void_p(); cl._check(hip.hipModuleLoad(ctypes.byref(mod), (name + ".co").encode()))
        f = ctypes.c_void_p(); cl._check(hip.hipModuleGetFunction(ctypes.byref(f), mod, name.encode())); return f
    buf = cl.DeviceBuffer(256 * 16 * 4)
    src = cl.DeviceBuffer(1 << 30)
    big = cl.DeviceBuffer(1 << 30)
    ka = struct.pack("<QQ", buf.ptr, src.ptr)
    for c in cfgs:
        f = load(c[0])
        for mode in ("cold", "warm", "warm"):
            if mode == "cold":
                cl._check(hip.hipMemset(ctypes.c_void_p(big.ptr), 1, 1 << 30))
                cl._check(hip.hipDeviceSynchronize())
            cl._launch_function(f, (256, 1, 1), (512, 1, 1), ka, 100 * 1024)
            cl._check(hip.hipDeviceSynchronize())
            o = buf.to_numpy(np.uint32, (256, 16))[:, :8]
            print(f"{c[0]} {mode}: cycles min {o.min()} med {np.median(o)} max {o.max()}  -> B/clk/CU (med) {N*8*1024/np.median(o):.1f}")
```

```python
NAME = "gated_mix__grouped_kv_mqa__glu_gated_bilinear__prompt"

HEADER = """; Kernarg layout for this problem (104 bytes, ptrs only, base s[0:1]):
"""

class Asm:
    def __init__(self):
        self.lines = []
        self.uid = 0
    def __call__(self, s):
        for l in s.split("\n"):
            l = l.strip()
            if l:
                self.lines.append("    " + l)
    def label(self, l):
        self.lines.append(l + ":")
    def raw(self, s):
        self.lines.append(s)
    def new_label(self, base):
        self.uid += 1
        return f"L_{base}_{self.uid}"
    def text(self):
        return "\n".join(self.lines) + "\n"

def vr(b, n=1):
    return f"v{b}" if n == 1 else f"v[{b}:{b+n-1}]"
def sr(b, n=1):
    return f"s{b}" if n == 1 else f"s[{b}:{b+n-1}]"

def kernel_begin(a, name):
    a.raw(f".globl {name}")
    a.raw(".p2align 8")
    a.raw(f".type {name},@function")
    a.raw(f"{name}:")

def kernel_desc(name, nvgpr, nsgpr=102, accum=None):
    accum = accum or ((nvgpr + 3) // 4 * 4)
    return f""".p2align 6
.amdhsa_kernel {name}
  .amdhsa_next_free_vgpr {nvgpr}
  .amdhsa_next_free_sgpr {nsgpr}
  .amdhsa_accum_offset {accum}
  .amdhsa_group_segment_fixed_size 0
  .amdhsa_kernarg_size 104
  .amdhsa_user_sgpr_count 2
  .amdhsa_user_sgpr_kernarg_segment_ptr 1
  .amdhsa_system_sgpr_workgroup_id_x 1
.end_amdhsa_kernel
"""

def make_srd(a, d, base_lo, nbytes):
    a(f"s_mov_b32 s{d}, s{base_lo}")
    a(f"s_mov_b32 s{d+1}, s{base_lo+1}")
    a(f"s_mov_b32 s{d+2}, {nbytes}")
    a(f"s_mov_b32 s{d+3}, 0x00020000")

import struct
def f32hex(x):
    return "0x%08x" % struct.unpack("<I", struct.pack("<f", x))[0]
```

```python
import sys, math
from common import *

WS_KF = 0
WS_VF = 65536
WS_G = 131072
WS_FL = 0x30000
WS_QF = 0x40000
WS_AF = 0x400000
WS_ST = 0x2000000
WS_BYTES = 0x10000000
LOG2E = 1.4426950408889634
QSCALE = 0.25 * LOG2E
STAMPS = False
FLAGS = set()
KN = NAME + "_kernel"

SLOT = 24832; NS = 5
O_UP = 7296; O_Q = 14464; O_X = 16640
PA = NS * SLOT; PA_W = 4352
L_K = 0; L_V = 65536
GS = 131072; GS_W = 6144
QX = 131072
MISC = 155648
OX = 131072; OXS = 2304
LDS = 163840
SPIN = 2000000

S_X, S_WQ, S_WK, S_WV, S_WO = 4, 6, 8, 10, 12
S_WG, S_WU, S_WD, S_GW = 16, 18, 20, 22
S_OUT, S_DBG, S_WS = 24, 26, 28
S_W, S_MT, S_FS, S_TP, S_CT = 30, 31, 32, 33, 34
T0, T1, T2 = 14, 15, 35
SRD_X, SRD_WS = 36, 40

def stamp(a, idx):
    if not STAMPS: return
    a("s_memtime s[90:91]")
    a("s_memrealtime s[92:93]")
    a(f"s_lshl_b32 s94, s2, 4")
    a(f"s_add_u32 s94, s94, s{S_W}")
    a(f"s_lshl_b32 s94, s94, 7")
    a(f"s_add_u32 s94, s94, {WS_ST + idx*8}")
    a("s_waitcnt lgkmcnt(0)")
    a("v_mov_b32 v164, s90")
    a("v_mov_b32 v165, s92")
    a("v_mov_b32 v166, 0")
    a(f"buffer_store_dwordx2 v[164:165], v166, s[{SRD_WS}:{SRD_WS+3}], s94 offen")

def tr_lane(a, v_mat, v_row, v_colb, t):
    a(f"v_lshrrev_b32 v{v_mat}, 4, v1")
    a(f"v_bfe_u32 v{v_row}, v1, 2, 2")
    a(f"v_and_b32 v{t}, 1, v1")
    a(f"v_lshlrev_b32 v{v_colb}, 4, v{t}")
    a(f"v_bfe_u32 v{t}, v1, 1, 1")
    a(f"v_lshl_or_b32 v{v_colb}, v{t}, 3, v{v_colb}")
    a(f"v_lshrrev_b32 v{t}, 1, v{v_mat}")
    a(f"v_lshl_add_u32 v{v_row}, v{t}, 3, v{v_row}")
    a(f"v_and_b32 v{v_mat}, 1, v{v_mat}")

def poll(a, nm, base_pair, voff_reg, vtmp, target, nwords=1, stride=0):
    a(f"s_mov_b64 exec, {(1 << nwords) - 1}")
    a(f"s_mov_b32 s{T2}, 0")
    a.label(f"{nm}_poll")
    a(f"global_load_dword v{vtmp}, v{voff_reg}, s[{base_pair}:{base_pair+1}] sc1")
    a(f"s_add_u32 s{T2}, s{T2}, 1")
    a("s_waitcnt vmcnt(0)")
    a(f"v_cmp_gt_u32 vcc, {target}, v{vtmp}")
    a(f"s_cmp_ge_u32 s{T2}, {SPIN}")
    a(f"s_cbranch_scc1 {nm}_pdone")
    a("s_nop 1")
    a(f"s_cbranch_vccz {nm}_pdone")
    a("s_sleep 2")
    a(f"s_branch {nm}_poll")
    a.label(f"{nm}_pdone")
    a("s_mov_b64 exec, -1")

def kv_pieces():
    last = {s % NS: s for s in range(16)}
    groups = {}
    for i in range(128):
        lo, hi = i * 1024, i * 1024 + 1023
        need = 10
        for sl in range(NS):
            if lo < (sl + 1) * SLOT and hi >= sl * SLOT:
                need = max(need, last[sl])
        groups.setdefault(need, []).append(i)
    return groups

def gen(a):
    name = KN
    kernel_begin(a, name)
    a("s_cmp_ge_u32 s2, 256")
    a(f"s_cbranch_scc1 L_exit")
    a("s_load_dwordx8 s[4:11], s[0:1], 0")
    a("s_load_dwordx2 s[12:13], s[0:1], 32")
    a("s_load_dwordx8 s[16:23], s[0:1], 48")
    a("s_load_dwordx4 s[24:27], s[0:1], 80")
    a("s_load_dwordx2 s[28:29], s[0:1], 96")
    a("v_lshrrev_b32 v2, 6, v0")
    a("v_and_b32 v1, 63, v0")
    a(f"v_readfirstlane_b32 s{S_W}, v2")
    a(f"s_and_b32 s{T0}, s2, 7")
    a(f"s_lshr_b32 s{T1}, s2, 3")
    a(f"s_and_b32 s{S_MT}, s{T0}, 1")
    a(f"s_lshl_b32 s{S_MT}, s{S_MT}, 3")
    a(f"s_and_b32 s{S_FS}, s{T1}, 7")
    a(f"s_add_u32 s{S_MT}, s{S_MT}, s{S_FS}")
    a(f"s_lshr_b32 s{S_FS}, s{T0}, 1")
    a(f"s_lshl_b32 s{S_FS}, s{S_FS}, 2")
    a(f"s_lshr_b32 s{T2}, s{T1}, 3")
    a(f"s_add_u32 s{S_FS}, s{S_FS}, s{T2}")
    a(f"s_lshl_b32 s{S_TP}, s{T0}, 2")
    a(f"s_and_b32 s{T2}, s{T1}, 3")
    a(f"s_add_u32 s{S_TP}, s{S_TP}, s{T2}")
    a(f"s_lshr_b32 s{S_CT}, s{T1}, 2")
    a("v_lshlrev_b32 v2, 4, v1")
    a("s_waitcnt lgkmcnt(0)")
    make_srd(a, SRD_X, S_X, 2048 * 512 * 2)
    make_srd(a, SRD_WS, S_WS, WS_BYTES)
    stamp(a, 0)
    a(f"s_cmp_ge_u32 s{S_W}, 8")
    a("s_cbranch_scc1 L_role_g")
    gen_c(a)
    gen_g(a)
    a.label("L_exit")
    a("s_endpgm")

def gen_c(a):
    tr_lane(a, 3, 4, 5, 6)
    a(f"s_mul_i32 s44, s{S_W}, {PA_W}")
    a(f"s_add_u32 s44, s44, {PA}")
    a(f"s_and_b32 s45, s{S_FS}, 3")
    a(f"s_lshl_b32 s46, s{S_MT}, 2")
    a(f"s_lshr_b32 s{T0}, s{S_FS}, 2")
    a(f"s_add_u32 s46, s46, s{T0}")
    a("s_cmp_lg_u32 s45, 0")
    a("s_cbranch_scc1 L_c_noA1")
    make_srd(a, 48, S_WK, 16384)
    make_srd(a, 52, S_WV, 16384)
    make_srd(a, 56, S_GW, 1024)
    a(f"s_lshl_b32 s{T0}, s{S_W}, 11")
    a("s_mov_b32 m0, s44")
    a("s_nop 0")
    a(f"buffer_load_dwordx4 v2, s[48:51], s{T0} offen lds")
    a(f"buffer_load_dwordx4 v2, s[48:51], s{T0} offen offset:1024 lds")
    a("s_add_u32 m0, s44, 2176")
    a("s_nop 0")
    a(f"buffer_load_dwordx4 v2, s[52:55], s{T0} offen lds")
    a(f"buffer_load_dwordx4 v2, s[52:55], s{T0} offen offset:1024 lds")
    a(f"s_lshl_b32 s{T0}, s46, 15")
    a(f"s_lshl_b32 s{T1}, s{S_W}, 7")
    a(f"s_add_u32 s{T0}, s{T0}, s{T1}")
    a("v_and_b32 v7, 31, v1")
    a("v_lshlrev_b32 v7, 10, v7")
    a("v_lshrrev_b32 v6, 5, v1")
    a("v_lshlrev_b32 v6, 4, v6")
    a("v_add_u32 v7, v7, v6")
    for s in range(4):
        a(f"buffer_load_dwordx4 v[{96+4*s}:{99+4*s}], v7, s[{SRD_X}:{SRD_X+3}], s{T0} offen offset:{32*s}")
    for s in range(4):
        a(f"buffer_load_dwordx4 v[{128+4*s}:{131+4*s}], v6, s[56:59], s{T1} offen offset:{32*s}")
    a.label("L_c_noA1")
    a(f"s_and_b32 s60, s{S_W}, 1")
    a(f"s_lshr_b32 s61, s{S_W}, 1")
    a("v_and_b32 v6, 31, v1")
    a("v_bfe_u32 v60, v1, 2, 2")
    a("v_lshrrev_b32 v61, 5, v1")
    a("v_xor_b32 v61, v61, v60")
    a("v_xor_b32 v60, 2, v61")
    a("v_lshlrev_b32 v6, 6, v6")
    a(f"s_lshl_b32 s{T0}, s60, 12")
    a(f"s_add_u32 s{T0}, s{T0}, {O_X}")
    a(f"v_add_u32 v6, s{T0}, v6")
    a("v_lshl_add_u32 v53, v61, 4, v6")
    a("v_lshl_add_u32 v54, v60, 4, v6")
    a(f"v_mul_u32_u24 v6, {O_UP}, v3")
    a("v_mul_u32_u24 v60, 224, v4")
    a("v_add3_u32 v6, v6, v60, v5")
    a(f"s_lshl_b32 s{T0}, s61, 6")
    a(f"v_add_u32 v55, s{T0}, v6")
    a("s_cmp_eq_u32 s61, 3")
    a("s_cbranch_scc1 L_c_u1q")
    KJ = ((0, 0), (0, 1), (1, 0), (1, 1))
    for i, (ks, j) in enumerate(KJ):
        a(f"v_add_u32 v{56+i}, {32 + (16*ks+4*j)*224}, v55")
    a("s_branch L_c_u1done")
    a.label("L_c_u1q")
    a("v_lshlrev_b32 v6, 6, v4")
    a("v_lshl_add_u32 v6, v3, 5, v6")
    a("v_add_u32 v6, v6, v5")
    for i, (ks, j) in enumerate(KJ):
        a(f"v_add_u32 v{56+i}, {O_Q + (16*ks+4*j)*64}, v6")
    a.label("L_c_u1done")
    a("s_cmp_lg_u32 s45, 0")
    a("s_cbranch_scc1 L_c_noA2")
    a("v_mul_u32_u24 v6, 2176, v3")
    a("v_lshl_add_u32 v6, v4, 5, v6")
    a("v_add_u32 v6, v6, v5")
    a("v_add_u32 v6, s44, v6")
    a("s_waitcnt vmcnt(0)")
    stamp(a, 1)
    for s in range(4):
        for j in range(2):
            a(f"ds_read_b64_tr_b16 v[{112+4*s+2*j}:{113+4*s+2*j}], v6 offset:{(16*s+4*j)*32}")
    a("v_mfma_f32_32x32x16_bf16 v[80:95], v[128:131], v[96:99], 0")
    for s in range(1, 4):
        a(f"v_mfma_f32_32x32x16_bf16 v[80:95], v[{128+4*s}:{131+4*s}], v[{96+4*s}:{99+4*s}], v[80:95]")
    a("s_waitcnt lgkmcnt(0)")
    a("v_mfma_f32_32x32x16_bf16 v[64:79], v[112:115], v[96:99], 0")
    for s in range(1, 4):
        a(f"v_mfma_f32_32x32x16_bf16 v[64:79], v[{112+4*s}:{115+4*s}], v[{96+4*s}:{99+4*s}], v[64:79]")
    a("v_and_b32 v6, 31, v1")
    a("v_lshrrev_b32 v60, 5, v1")
    a("v_lshl_add_u32 v61, v6, 1, v60")
    a("v_lshlrev_b32 v61, 5, v61")
    a("v_add_u32 v61, s44, v61")
    a("v_lshlrev_b32 v60, 10, v60")
    a("v_lshl_add_u32 v60, v6, 2, v60")
    a("v_add_u32 v60, s44, v60")
    a("v_lshlrev_b32 v6, 2, v6")
    a("v_add_u32 v6, s44, v6")
    a("s_nop 7")
    a("s_nop 7")
    a("ds_write_b128 v61, v[64:67]")
    a("ds_write_b128 v61, v[68:71] offset:16")
    for j in range(8):
        a(f"ds_write_b32 v60, v{72+j} offset:{2048+128*j}")
    a("ds_write_b32 v6, v80 offset:4096")
    a("s_waitcnt lgkmcnt(0)")
    a.label("L_c_noA2")
    a("s_barrier")
    a(f"s_cmp_lg_u32 s{S_W}, 0")
    a("s_cbranch_scc1 L_c_pa_done")
    a("v_mov_b32 v6, 0")
    a(f"v_mov_b32 v7, {MISC}")
    a("ds_write_b32 v7, v6")
    a(f"s_cmp_lg_u32 s{S_FS}, 0")
    a("s_cbranch_scc1 L_c_nofl")
    a(f"s_lshl_b32 s{T0}, s{S_MT}, 7")
    a(f"s_add_u32 s{T0}, s{T0}, {WS_FL}")
    a("s_mov_b64 exec, 1")
    a(f"buffer_store_dword v6, v6, s[{SRD_WS}:{SRD_WS+3}], s{T0} offen sc1")
    a(f"buffer_store_dword v6, v6, s[{SRD_WS}:{SRD_WS+3}], s{T0} offen offset:2048 sc1")
    a("s_mov_b64 exec, -1")
    a.label("L_c_nofl")
    a("s_cmp_lg_u32 s45, 0")
    a("s_cbranch_scc1 L_c_pa_done")
    a("v_and_b32 v6, 31, v1")
    a("v_lshrrev_b32 v60, 5, v1")
    a("v_lshl_add_u32 v61, v6, 1, v60")
    a("v_lshlrev_b32 v61, 5, v61")
    a(f"v_add_u32 v61, {PA}, v61")
    def red8(addr, dst, off):
        for w in range(8):
            a(f"ds_read_b128 v[{64+8*w}:{67+8*w}], v{addr} offset:{w*PA_W+off}")
            a(f"ds_read_b128 v[{68+8*w}:{71+8*w}], v{addr} offset:{w*PA_W+off+16}")
        a("s_waitcnt lgkmcnt(0)")
        for w in range(1, 8):
            for j in range(8):
                a(f"v_add_f32 v{64+j}, v{64+j}, v{64+8*w+j}")
        for j in range(4):
            a(f"v_cvt_pk_bf16_f32 v{dst+j}, v{64+2*j}, v{65+2*j}")
    red8(61, 128, 0)
    a(f"s_lshl_b32 s{T0}, s46, 10")
    a(f"buffer_store_dwordx4 v[128:131], v2, s[{SRD_WS}:{SRD_WS+3}], s{T0} offen sc1")
    a("v_bfe_u32 v60, v1, 2, 1")
    a("v_lshlrev_b32 v60, 3, v60")
    a("v_bfe_u32 v61, v1, 3, 1")
    a("v_lshl_add_u32 v60, v61, 2, v60")
    a("v_and_b32 v61, 3, v1")
    a("v_add_u32 v60, v60, v61")
    a("v_lshlrev_b32 v60, 7, v60")
    a("v_lshrrev_b32 v61, 4, v1")
    a("v_lshl_add_u32 v61, v61, 5, v60")
    a(f"v_add_u32 v61, {PA}, v61")
    red8(61, 132, 2048)
    a(f"s_add_u32 s{T0}, s{T0}, {WS_VF}")
    a(f"buffer_store_dwordx4 v[132:135], v2, s[{SRD_WS}:{SRD_WS+3}], s{T0} offen sc1")
    a("v_lshlrev_b32 v61, 2, v6")
    a(f"v_add_u32 v60, {PA}, v61")
    for w in range(8):
        a(f"ds_read_b32 v{64+w}, v60 offset:{w*PA_W+4096}")
    a("s_waitcnt lgkmcnt(0)")
    for w in range(1, 8):
        a(f"v_add_f32 v64, v64, v{64+w}")
    a(f"v_mul_f32 v64, {f32hex(-LOG2E)}, v64")
    a("v_exp_f32 v64, v64")
    a("s_nop 0")
    a("v_add_f32 v64, 1.0, v64")
    a("v_rcp_f32 v136, v64")
    a(f"s_lshl_b32 s{T0}, s46, 7")
    a(f"s_add_u32 s{T0}, s{T0}, {WS_G}")
    a(f"buffer_store_dword v136, v61, s[{SRD_WS}:{SRD_WS+3}], s{T0} offen sc1")
    a.label("L_c_pa_done")
    for i in range(64):
        a(f"v_mov_b32 v{64+i}, 0")
    XA = (8, 12); WA = (16, 20)
    XB = (28, 32); WB = (36, 40)
    def rd_list(ks, X, W, c_x, c_w0, c_w1a, c_w1b):
        return [f"ds_read_b128 v[{X[0]}:{X[0]+3}], v{c_x}",
                f"ds_read_b64_tr_b16 v[{W[0]}:{W[0]+1}], v{c_w0} offset:{(16*ks)*224}",
                f"ds_read_b64_tr_b16 v[{W[0]+2}:{W[0]+3}], v{c_w0} offset:{(16*ks+4)*224}",
                f"ds_read_b64_tr_b16 v[{W[1]}:{W[1]+1}], v{c_w1a}",
                f"ds_read_b64_tr_b16 v[{W[1]+2}:{W[1]+3}], v{c_w1b}",
                f"ds_read_b128 v[{X[1]}:{X[1]+3}], v{c_x} offset:2048"]
    def mf_rd(X, W, rds):
        rds = list(rds)
        k = 0
        for t in range(2):
            for u in range(2):
                d = 64 + (t * 2 + u) * 16
                a(f"v_mfma_f32_32x32x16_bf16 v[{d}:{d+15}], v[{W[u]}:{W[u]+3}], v[{X[t]}:{X[t]+3}], v[{d}:{d+15}]")
                for _ in range(3):
                    if rds: a(rds.pop(0))
    def cur0(slot):
        for d, b in ((128, 53), (129, 55), (130, 56), (131, 57)):
            a(f"v_add_u32 v{d}, s{slot}, v{b}")
    def cur1(slot):
        for d, b in ((132, 54), (133, 55), (134, 58), (135, 59)):
            a(f"v_add_u32 v{d}, s{slot}, v{b}")
    a("s_mov_b32 s62, 0")
    a("s_mov_b32 s64, 0")
    a("s_nop 1")
    cur0(62)
    cur1(62)
    a("s_barrier")
    stamp(a, 2)
    for r in rd_list(0, XA, WA, 128, 129, 130, 131): a(r)
    a.label("L_c_loop")
    a(f"s_add_u32 s63, s62, {SLOT}")
    a(f"s_cmp_eq_u32 s63, {NS*SLOT}")
    a("s_cselect_b32 s63, 0, s63")
    a("s_waitcnt lgkmcnt(0)")
    mf_rd(XA, WA, rd_list(1, XB, WB, 132, 133, 134, 135))
    cur0(63)
    cur1(63)
    a(f"s_cmp_gt_u32 s{S_W}, 1")
    a("s_cbranch_scc1 L_c_noside")
    a(f"s_cmp_eq_u32 s{S_W}, 1")
    a("s_cbranch_scc1 L_c_side1")
    a("s_cmp_lg_u32 s64, 2")
    a("s_cbranch_scc1 L_c_noside")
    a("s_waitcnt vmcnt(0)")
    a("s_and_b32 s65, s2, 1")
    a("s_lshl_b32 s65, s65, 7")
    a("v_mov_b32 v6, s65")
    a("v_mov_b32 v7, 1")
    a("s_mov_b64 exec, 1")
    a(f"global_atomic_add v6, v7, s[{S_DBG}:{S_DBG+1}] sc1")
    a("s_mov_b64 exec, -1")
    a("s_branch L_c_noside")
    a.label("L_c_side1")
    a("s_cmp_lg_u32 s64, 9")
    a("s_cbranch_scc1 L_c_noside")
    a("v_lshlrev_b32 v6, 7, v1")
    poll(a, "L_kv", S_DBG, 6, 7, 128, nwords=2)
    a("buffer_inv sc1")
    a("s_waitcnt vmcnt(0)")
    a.label("L_c_noside")
    a("s_waitcnt lgkmcnt(0)")
    a("s_barrier")
    mf_rd(XB, WB, rd_list(0, XA, WA, 128, 129, 130, 131))
    a("s_mov_b32 s62, s63")
    a("s_add_u32 s64, s64, 1")
    a("s_cmp_lt_u32 s64, 16")
    a("s_cbranch_scc1 L_c_loop")
    stamp(a, 3)
    a("s_waitcnt lgkmcnt(0)")
    a("s_nop 7")
    a(f"s_lshl_b32 s66, s{S_MT}, 2")
    a("s_lshl_b32 s65, s60, 1")
    a("s_add_u32 s66, s66, s65")
    def h_tile(t, u):
        d = 64 + (t * 2 + u) * 16
        for j in range(8):
            a(f"v_mul_f32 v{d+j}, v{d+j}, v{d+8+j}")
        for j in range(4):
            a(f"v_cvt_pk_bf16_f32 v{d+j}, v{d+2*j}, v{d+2*j+1}")
        a(f"buffer_store_dwordx4 v[{d}:{d+3}], v2, s[{SRD_WS}:{SRD_WS+3}], s{67+t} offen offset:{1024*u} sc1")
    a("s_mul_i32 s67, s66, 144")
    a(f"s_mul_i32 s65, s{S_FS}, 7")
    a("s_add_u32 s67, s67, s65")
    a("s_lshl_b32 s65, s61, 1")
    a("s_add_u32 s67, s67, s65")
    a("s_lshl_b32 s67, s67, 10")
    a(f"s_add_u32 s67, s67, {WS_AF}")
    a(f"s_add_u32 s68, s67, {144*1024}")
    h_tile(0, 0)
    h_tile(1, 0)
    a("s_cmp_eq_u32 s61, 3")
    a("s_cbranch_scc1 L_c_qep")
    h_tile(0, 1)
    h_tile(1, 1)
    a("s_branch L_c_epdone")
    a.label("L_c_qep")
    a(f"s_lshl_b32 s65, s60, 12")
    a(f"s_add_u32 s65, s65, {QX}")
    a("v_add_u32 v6, s65, v2")
    for t in range(2):
        d = 64 + (t * 2 + 1) * 16
        for j in range(16):
            a(f"v_mul_f32 v{d+j}, {f32hex(QSCALE)}, v{d+j}")
        for j in range(8):
            a(f"v_cvt_pk_bf16_f32 v{d+j}, v{d+2*j}, v{d+2*j+1}")
        a(f"ds_write_b128 v6, v[{d}:{d+3}] offset:{t*2048}")
        a(f"ds_write_b128 v6, v[{d+4}:{d+7}] offset:{t*2048+1024}")
    a.label("L_c_epdone")
    SA = (32, 48); SB = (64, 80); OA = 96; OB = 112
    QA = 4; QB = 8; KF = (12, 16); VF = (20, 128)
    IDX = 28; AK = 29; AV = 30; VG = 31
    a(f"s_and_b32 s70, s{S_W}, 3")
    a(f"s_lshr_b32 s71, s{S_W}, 2")
    a(f"s_lshl_b32 s72, s{S_MT}, 2")
    a("s_add_u32 s72, s72, s70")
    a("s_lshl_b32 s65, s70, 11")
    a(f"s_add_u32 s65, s65, {QX}")
    a("v_add_u32 v3, s65, v2")
    a("s_waitcnt lgkmcnt(0)")
    a("s_barrier")
    stamp(a, 4)
    a(f"ds_read_b128 v[{QA}:{QA+3}], v3")
    a(f"ds_read_b128 v[{QB}:{QB+3}], v3 offset:1024")
    a("s_lshl_b32 s65, s72, 7")
    a(f"s_add_u32 s65, s65, {WS_G}")
    a("v_and_b32 v3, 31, v1")
    a("v_lshlrev_b32 v3, 2, v3")
    a(f"buffer_load_dword v{VG}, v3, s[{SRD_WS}:{SRD_WS+3}], s65 offen sc1")
    a("s_lshl_b32 s65, s71, 15")
    a(f"v_add_u32 v{AK}, s65, v2")
    a("v_lshrrev_b32 v3, 5, v1")
    a("v_and_b32 v32, 15, v1")
    a("v_lshl_add_u32 v3, v3, 4, v32")
    a("v_lshlrev_b32 v3, 4, v3")
    a(f"s_add_u32 s65, s65, {L_V}")
    a(f"v_add_u32 v{AV}, s65, v3")
    a(f"ds_read_b128 v[{KF[0]}:{KF[0]+3}], v{AK}")
    a(f"ds_read_b128 v[{KF[1]}:{KF[1]+3}], v{AK} offset:1024")
    a(f"v_mov_b32 v{IDX}, 0xdddddddd")
    a("v_and_b32 v3, 27, v1")
    a("v_cmp_eq_u32 vcc, 16, v3")
    a("v_mov_b32 v3, 0x3f803f80")
    a("s_nop 0")
    a("v_cndmask_b32 v3, 0, v3, vcc")
    for b in VF:
        for i in range(8):
            a(f"v_mov_b32 v{b+i}, v3")
    a("s_mov_b32 s74, 0x0000ffff")
    a("s_mov_b32 s75, 0x0000ffff")
    a("s_mov_b64 exec, s[74:75]")
    a(f"ds_read_b128 v[{VF[0]}:{VF[0]+3}], v{AV}")
    a(f"ds_read_b128 v[{VF[0]+4}:{VF[0]+7}], v{AV} offset:512")
    a("s_mov_b64 exec, -1")
    for i in range(16):
        a(f"v_mov_b32 v{OA+i}, 0")
        a(f"v_mov_b32 v{OB+i}, 0")
    for i in range(8, 16):
        a(f"v_mov_b32 v{SB[1]+i}, 0")
    a("s_waitcnt lgkmcnt(0)")
    a("s_barrier")
    if "dumpq" in FLAGS:
        a("s_lshl_b32 s65, s72, 5")
        a(f"s_lshl_b32 s73, s{S_FS}, 1")
        a("s_add_u32 s65, s65, s73")
        a("s_lshl_b32 s65, s65, 10")
        a(f"s_add_u32 s65, s65, {WS_QF}")
        a(f"buffer_store_dwordx4 v[{QA}:{QA+3}], v2, s[{SRD_WS}:{SRD_WS+3}], s65 offen")
        a(f"buffer_store_dwordx4 v[{QB}:{QB+3}], v2, s[{SRD_WS}:{SRD_WS+3}], s65 offen offset:1024")
    a(f"v_mfma_f32_32x32x16_bf16 v[{SA[0]}:{SA[0]+15}], v[{KF[0]}:{KF[0]+3}], v[{QA}:{QA+3}], 0")
    a(f"v_mfma_f32_32x32x16_bf16 v[{SB[0]}:{SB[0]+15}], v[{KF[0]}:{KF[0]+3}], v[{QB}:{QB+3}], 0")
    a("s_mov_b32 s73, 0")
    a("s_nop 15")
    def smf(O, V, P):
        a(f"v_smfmac_f32_32x32x32_bf16 v[{O}:{O+15}], v[{V}:{V+3}], v[{P}:{P+7}], v{IDX}")
    def tile(t):
        c = t & 1; n = c ^ 1
        sa, sb = SA[c], SB[c]
        def E(S, i): a(f"v_exp_f32 v{S+i}, v{S+i}")
        a("s_waitcnt lgkmcnt(0)")
        a(f"ds_read_b128 v[{KF[c]}:{KF[c]+3}], v{AK} offset:{(t+2)*1024}")
        E(sa, 0); E(sa, 1)
        smf(OB, VF[n] + 4, SB[n] + 8)
        a("s_mov_b64 exec, s[74:75]")
        a(f"ds_read_b128 v[{VF[n]}:{VF[n]+3}], v{AV} offset:{(t+1)*1024}")
        a(f"ds_read_b128 v[{VF[n]+4}:{VF[n]+7}], v{AV} offset:{(t+1)*1024+512}")
        a("s_mov_b64 exec, -1")
        for i in range(2, 6): E(sa, i)
        a(f"v_mfma_f32_32x32x16_bf16 v[{SA[n]}:{SA[n]+15}], v[{KF[n]}:{KF[n]+3}], v[{QA}:{QA+3}], 0")
        for i in range(6, 11): E(sa, i)
        smf(OA, VF[c], sa)
        for i in range(11, 16): E(sa, i)
        E(sb, 0); E(sb, 1)
        smf(OA, VF[c] + 4, sa + 8)
        for i in range(2, 6): E(sb, i)
        a(f"v_mfma_f32_32x32x16_bf16 v[{SB[n]}:{SB[n]+15}], v[{KF[n]}:{KF[n]+3}], v[{QB}:{QB+3}], 0")
        for i in range(6, 11): E(sb, i)
        smf(OB, VF[c], sb)
        for i in range(11, 16): E(sb, i)
    UN = 4
    a.label("L_a_loop")
    for t in range(UN):
        tile(t)
    a(f"v_add_u32 v{AK}, {UN*1024}, v{AK}")
    a(f"v_add_u32 v{AV}, {UN*1024}, v{AV}")
    a("s_cmp_lg_u32 s73, 0")
    a("s_cbranch_scc1 L_a_nosig")
    a("s_waitcnt vmcnt(0)")
    a(f"v_mov_b32 v136, {MISC}")
    a("v_mov_b32 v137, 1")
    a("s_mov_b64 exec, 1")
    a("ds_add_rtn_u32 v138, v136, v137")
    a("s_waitcnt lgkmcnt(0)")
    a("v_readfirstlane_b32 s65, v138")
    a("s_nop 3")
    a("s_cmp_lg_u32 s65, 7")
    a("s_cbranch_scc1 L_a_nosig2")
    a(f"s_lshl_b32 s65, s{S_MT}, 7")
    a(f"s_add_u32 s65, s65, {WS_FL}")
    a("v_mov_b32 v136, s65")
    a(f"global_atomic_add v136, v137, s[{S_WS}:{S_WS+1}] sc1")
    a.label("L_a_nosig2")
    a("s_mov_b64 exec, -1")
    a.label("L_a_nosig")
    a("s_add_u32 s73, s73, 1")
    a(f"s_cmp_lt_u32 s73, {32//UN}")
    a("s_cbranch_scc1 L_a_loop")
    a("s_nop 1")
    smf(OB, VF[1] + 4, SB[1] + 8)
    a("s_waitcnt lgkmcnt(0)")
    stamp(a, 5)
    a("s_nop 15")
    a("s_cmp_eq_u32 s71, 0")
    a("s_cbranch_scc1 L_a_noswap")
    for i in range(9):
        a(f"v_mov_b32 v3, v{OA+i}")
        a(f"v_mov_b32 v{OA+i}, v{OB+i}")
        a(f"v_mov_b32 v{OB+i}, v3")
    for i in range(4):
        a(f"v_mov_b32 v{QA+i}, v{QB+i}")
    a.label("L_a_noswap")
    a(f"s_mul_i32 s65, s{S_W}, {OXS}")
    a(f"s_add_u32 s65, s65, {OX}")
    a("v_add_u32 v3, s65, v2")
    a("v_lshrrev_b32 v32, 2, v2")
    a("v_add_u32 v32, s65, v32")
    a("s_barrier")
    stamp(a, 6)
    a(f"ds_write_b128 v3, v[{OB}:{OB+3}]")
    a(f"ds_write_b128 v3, v[{OB+4}:{OB+7}] offset:1024")
    a(f"ds_write_b32 v32, v{OB+8} offset:2048")
    a(f"s_xor_b32 s65, s{S_W}, 4")
    a(f"s_mul_i32 s65, s65, {OXS}")
    a(f"s_add_u32 s65, s65, {OX}")
    a("v_add_u32 v33, s65, v2")
    a("v_lshrrev_b32 v34, 2, v2")
    a("v_add_u32 v34, s65, v34")
    a("s_waitcnt lgkmcnt(0)")
    a("s_barrier")
    a(f"ds_read_b128 v[{OB}:{OB+3}], v33")
    a(f"ds_read_b128 v[{OB+4}:{OB+7}], v33 offset:1024")
    a(f"ds_read_b32 v{OB+8}, v34 offset:2048")
    a("s_waitcnt lgkmcnt(0)")
    for i in range(9):
        a(f"v_add_f32 v{OA+i}, v{OA+i}, v{OB+i}")
    a(f"v_cmp_nle_f32 vcc, {f32hex(2.0**-30)}, v{OA+8}")
    a("s_mov_b64 s[76:77], vcc")
    a(f"v_cmp_nge_f32 vcc, {f32hex(2.0**30)}, v{OA+8}")
    a("s_or_b64 s[76:77], s[76:77], vcc")
    a("v_mov_b32 v3, 0x207")
    for i in range(8):
        a(f"v_cmp_class_f32 vcc, v{OA+i}, v3")
        a("s_or_b64 s[76:77], s[76:77], vcc")
    a("s_cmp_lg_u64 s[76:77], 0")
    a("s_cbranch_scc1 L_a_fallback")
    a.label("L_a_fin")
    a(f"v_rcp_f32 v3, v{OA+8}")
    a("s_nop 0")
    a(f"v_mul_f32 v3, v3, v{VG}")
    for i in range(8):
        a(f"v_mul_f32 v{OA+i}, v{OA+i}, v3")
    for j in range(4):
        a(f"v_cvt_pk_bf16_f32 v{OA+j}, v{OA+2*j}, v{OA+2*j+1}")
    a("s_mul_i32 s65, s72, 144")
    a(f"s_lshl_b32 s73, s{S_FS}, 1")
    a("s_add_u32 s65, s65, s73")
    a("s_add_u32 s65, s65, s71")
    a("s_add_u32 s65, s65, 112")
    a("s_lshl_b32 s65, s65, 10")
    a(f"s_add_u32 s65, s65, {WS_AF}")
    a(f"buffer_store_dwordx4 v[{OA}:{OA+3}], v2, s[{SRD_WS}:{SRD_WS+3}], s65 offen sc1")
    a("s_waitcnt vmcnt(0)")
    a("s_barrier")
    a(f"s_cmp_lg_u32 s{S_W}, 0")
    a("s_cbranch_scc1 L_exit")
    a(f"s_lshl_b32 s65, s{S_MT}, 7")
    a(f"s_add_u32 s65, s65, {WS_FL+2048}")
    a("v_mov_b32 v136, s65")
    a("v_mov_b32 v137, 1")
    a("s_mov_b64 exec, 1")
    a(f"global_atomic_add v136, v137, s[{S_WS}:{S_WS+1}] sc1")
    a("s_mov_b64 exec, -1")
    stamp(a, 7)
    a("s_endpgm")
    a.label("L_a_fallback")
    S = SA[0]; M = 3
    a(f"v_mov_b32 v{M}, 0xff800000")
    a(f"v_mov_b32 v{AK}, v2")
    a("s_mov_b32 s73, 0")
    a.label("L_fb1")
    a(f"ds_read_b128 v[{KF[0]}:{KF[0]+3}], v{AK}")
    a("s_waitcnt lgkmcnt(0)")
    a(f"v_mfma_f32_32x32x16_bf16 v[{S}:{S+15}], v[{KF[0]}:{KF[0]+3}], v[{QA}:{QA+3}], 0")
    a(f"v_add_u32 v{AK}, 1024, v{AK}")
    a("s_nop 15")
    for i in range(0, 16, 2):
        a(f"v_max3_f32 v{M}, v{M}, v{S+i}, v{S+i+1}")
    a("s_add_u32 s73, s73, 1")
    a("s_cmp_lt_u32 s73, 64")
    a("s_cbranch_scc1 L_fb1")
    a(f"v_mov_b32 v32, v{M}")
    a("s_nop 1")
    a(f"v_permlane32_swap_b32 v{M}, v32")
    a("s_nop 1")
    a(f"v_max_f32 v{M}, v{M}, v32")
    for i in range(16):
        a(f"v_mov_b32 v{OA+i}, 0")
    a(f"v_mov_b32 v{AK}, v2")
    a("v_lshrrev_b32 v32, 5, v1")
    a("v_and_b32 v33, 15, v1")
    a("v_lshl_add_u32 v32, v32, 4, v33")
    a("v_lshlrev_b32 v32, 4, v32")
    a(f"v_add_u32 v{AV}, {L_V}, v32")
    a("s_mov_b32 s73, 0")
    a.label("L_fb2")
    a(f"ds_read_b128 v[{KF[0]}:{KF[0]+3}], v{AK}")
    a("s_mov_b64 exec, s[74:75]")
    a(f"ds_read_b128 v[{VF[0]}:{VF[0]+3}], v{AV}")
    a(f"ds_read_b128 v[{VF[0]+4}:{VF[0]+7}], v{AV} offset:512")
    a("s_mov_b64 exec, -1")
    a("s_waitcnt lgkmcnt(0)")
    a(f"v_mfma_f32_32x32x16_bf16 v[{S}:{S+15}], v[{KF[0]}:{KF[0]+3}], v[{QA}:{QA+3}], 0")
    a(f"v_add_u32 v{AK}, 1024, v{AK}")
    a(f"v_add_u32 v{AV}, 1024, v{AV}")
    a("s_nop 15")
    for i in range(16):
        a(f"v_sub_f32 v{S+i}, v{S+i}, v{M}")
    for i in range(16):
        a(f"v_exp_f32 v{S+i}, v{S+i}")
    a("s_nop 1")
    smf(OA, VF[0], S)
    smf(OA, VF[0] + 4, S + 8)
    a("s_nop 7")
    a("s_add_u32 s73, s73, 1")
    a("s_cmp_lt_u32 s73, 64")
    a("s_cbranch_scc1 L_fb2")
    a("s_nop 15")
    a("s_branch L_a_fin")

def gen_g(a):
    a.label("L_role_g")
    GUB = 512 * 1792 * 2
    a(f"s_sub_u32 s44, s{S_W}, 8")
    make_srd(a, 48, S_WG, GUB)
    make_srd(a, 52, S_WU, GUB)
    def gu_voff(vd, s_idx):
        a(f"s_lshl_b32 s{T0}, s{s_idx}, 6")
        a(f"v_add_u32 v{vd}, s{T0}, v1")
        a(f"v_mul_u32_u24 v4, 4682, v{vd}")
        a("v_lshrrev_b32 v4, 16, v4")
        a("v_mul_u32_u24 v5, 14, v4")
        a(f"v_sub_u32 v{vd}, v{vd}, v5")
        a(f"v_lshlrev_b32 v{vd}, 4, v{vd}")
        a("v_mul_u32_u24 v4, 3584, v4")
        a(f"v_add_u32 v{vd}, v{vd}, v4")
        a(f"s_mul_i32 s{T0}, s{S_FS}, 224")
        a(f"v_add_u32 v{vd}, s{T0}, v{vd}")
    gu_voff(8, 44)
    a("v_lshrrev_b32 v4, 2, v1")
    a("v_lshrrev_b32 v5, 4, v1")
    a("v_and_b32 v10, 3, v1")
    a("v_xor_b32 v10, v10, v5")
    a("v_lshlrev_b32 v10, 4, v10")
    a("v_lshl_add_u32 v10, v4, 10, v10")
    a(f"s_lshl_b32 s{T0}, s{S_MT}, 7")
    a(f"s_lshl_b32 s{T1}, s44, 4")
    a(f"s_add_u32 s{T0}, s{T0}, s{T1}")
    a(f"s_lshl_b32 s{T0}, s{T0}, 10")
    a(f"v_add_u32 v10, s{T0}, v10")
    a("v_add_u32 v11, 0x10000, v10")
    a("s_lshl_b32 s45, s44, 10")
    a("s_cmp_eq_u32 s44, 3")
    a("s_cbranch_scc1 L_g_q")
    make_srd(a, 56, S_WG, GUB)
    make_srd(a, 60, S_WU, GUB)
    a("s_add_u32 s46, s44, 4")
    gu_voff(9, 46)
    a("v_mov_b32 v12, v9")
    a("s_add_u32 s64, s45, 4096")
    a(f"s_add_u32 s65, s45, {O_UP+4096}")
    a(f"s_mov_b32 s66, {32*3584}")
    a("s_branch L_g_qdone")
    a.label("L_g_q")
    make_srd(a, 56, S_WQ, 512 * 512 * 2)
    make_srd(a, 60, S_WQ, 512 * 512 * 2)
    a("v_lshrrev_b32 v4, 2, v1")
    a("v_lshlrev_b32 v4, 10, v4")
    a("v_and_b32 v9, 3, v1")
    a("v_lshl_add_u32 v9, v9, 4, v4")
    a(f"s_lshl_b32 s{T0}, s{S_FS}, 6")
    a(f"v_add_u32 v9, s{T0}, v9")
    a("v_add_u32 v12, 0x4000, v9")
    a(f"s_mov_b32 s64, {O_Q}")
    a(f"s_mov_b32 s65, {O_Q+1024}")
    a(f"s_mov_b32 s66, {32*1024}")
    a.label("L_g_qdone")
    a("s_mov_b32 s67, 0")
    a("s_mov_b32 s68, 0")
    a("s_mov_b32 s69, 0")
    def issue_stage(slot):
        a(f"s_add_u32 s{T0}, s45, s{slot}")
        a(f"s_add_u32 m0, s{T0}, {O_X}")
        a("s_nop 0")
        a(f"buffer_load_dwordx4 v10, s[{SRD_X}:{SRD_X+3}], s69 offen lds")
        a(f"s_add_u32 m0, s{T0}, {O_X+4096}")
        a("s_nop 0")
        a(f"buffer_load_dwordx4 v11, s[{SRD_X}:{SRD_X+3}], s69 offen lds")
        a(f"s_mov_b32 m0, s{T0}")
        a("s_add_u32 s69, s69, 64")
        a("buffer_load_dwordx4 v8, s[48:51], s67 offen lds")
        a(f"s_add_u32 m0, s{T0}, {O_UP}")
        a("s_nop 0")
        a("buffer_load_dwordx4 v8, s[52:55], s67 offen lds")
        a(f"s_add_u32 m0, s64, s{slot}")
        a(f"s_add_u32 s67, s67, {32*3584}")
        a("buffer_load_dwordx4 v9, s[56:59], s68 offen lds")
        a(f"s_add_u32 m0, s65, s{slot}")
        a("s_nop 0")
        a("buffer_load_dwordx4 v12, s[60:63], s68 offen lds")
        a("s_add_u32 s68, s68, s66")
    a("s_mov_b32 s70, 0")
    a.label("L_g_pro")
    issue_stage(70)
    a(f"s_add_u32 s70, s70, {SLOT}")
    a(f"s_cmp_lt_u32 s70, {NS*SLOT}")
    a("s_cbranch_scc1 L_g_pro")
    a("s_barrier")
    a(f"s_waitcnt vmcnt({6*(NS-1)})")
    a("s_barrier")
    a("s_mov_b32 s70, 0")
    a("s_mov_b32 s71, 0")
    a.label("L_g_loop")
    a(f"s_waitcnt vmcnt({6*(NS-2)})")
    a("s_barrier")
    issue_stage(70)
    a(f"s_add_u32 s70, s70, {SLOT}")
    a(f"s_cmp_eq_u32 s70, {NS*SLOT}")
    a("s_cselect_b32 s70, 0, s70")
    a("s_add_u32 s71, s71, 1")
    a(f"s_cmp_lt_u32 s71, {16-NS}")
    a("s_cbranch_scc1 L_g_loop")
    groups = kv_pieces()
    def issue_kv(pieces):
        n = (len(pieces) + 3) // 4
        for q in range(n):
            idx = [pieces[min(4 * q + j, len(pieces) - 1)] for j in range(4)]
            if idx == [idx[0] + k for k in range(4)]:
                a(f"s_add_u32 s{T0}, s45, {idx[0]*1024}")
            else:
                a(f"s_mov_b32 s{T0}, {idx[0]*1024}")
                for j in range(1, 4):
                    a(f"s_cmp_eq_u32 s44, {j}")
                    a(f"s_cselect_b32 s{T0}, {idx[j]*1024}, s{T0}")
            a(f"s_mov_b32 m0, s{T0}")
            a("s_nop 0")
            a(f"buffer_load_dwordx4 v2, s[{SRD_WS}:{SRD_WS+3}], s{T0} offen lds")
        return n
    kv_out = issue_kv(groups[10])
    for s in range(11, 16):
        ring_after = max(0, 15 - (s + 1)) * 6
        if s < 15:
            a(f"s_waitcnt vmcnt({min(63, ring_after + kv_out)})")
        a("s_barrier")
        kv_out += issue_kv(groups[s])
    a("s_waitcnt vmcnt(0)")
    a("s_barrier")
    a("s_barrier")
    stamp(a, 4)
    ACC = 64; AFR = 16; WF = 40
    WO = 128
    make_srd(a, 48, S_WD, 1792 * 512 * 2)
    make_srd(a, 52, S_WO, 512 * 512 * 2)
    make_srd(a, 56, S_OUT, 2048 * 512 * 2)
    a("v_lshrrev_b32 v3, 3, v1")
    a("v_bfe_u32 v4, v1, 4, 1")
    a("v_lshlrev_b32 v4, 2, v4")
    a("v_and_b32 v5, 7, v1")
    a("v_xor_b32 v5, v5, v4")
    a("v_lshlrev_b32 v5, 4, v5")
    a("v_lshl_add_u32 v5, v3, 10, v5")
    a(f"s_lshl_b32 s{T0}, s{S_CT}, 7")
    a(f"v_add_u32 v5, s{T0}, v5")
    a("v_add_u32 v8, 0x2000, v5")
    a("v_lshrrev_b32 v3, 4, v1")
    a("v_bfe_u32 v4, v1, 2, 2")
    a("v_lshrrev_b32 v6, 1, v3")
    a("v_lshl_add_u32 v6, v6, 3, v4")
    a("v_lshlrev_b32 v6, 7, v6")
    a("v_lshrrev_b32 v4, 1, v4")
    a("v_lshl_add_u32 v6, v4, 6, v6")
    a("v_and_b32 v3, 1, v3")
    a("v_lshl_add_u32 v6, v3, 5, v6")
    a("v_and_b32 v3, 1, v1")
    a("v_lshl_add_u32 v6, v3, 4, v6")
    a("v_bfe_u32 v3, v1, 1, 1")
    a("v_lshl_add_u32 v6, v3, 3, v6")
    a(f"s_mul_i32 s46, s44, {GS_W}")
    a(f"s_add_u32 s46, s46, {GS}")
    a("v_add_u32 v6, s46, v6")
    a("v_xor_b32 v7, 64, v6")
    a(f"v_add_u32 v9, {144*1024}, v2")
    for i in range(64):
        a(f"v_mov_b32 v{ACC+i}, 0")
    a(f"s_lshl_b32 s{T0}, s{S_TP}, 8")
    a(f"s_add_u32 s{T0}, s{T0}, {WS_G}")
    a("v_and_b32 v3, 31, v1")
    a("v_lshlrev_b32 v3, 2, v3")
    a(f"buffer_load_dword v12, v3, s[{SRD_WS}:{SRD_WS+3}], s{T0} offen sc1")
    a(f"buffer_load_dword v13, v3, s[{SRD_WS}:{SRD_WS+3}], s{T0} offen offset:128 sc1")
    a(f"s_mul_i32 s64, s44, {28*16384}")
    a(f"s_lshl_b32 s{T0}, s{S_TP}, 1")
    a(f"s_mul_i32 s65, s{T0}, 144")
    a("s_mov_b32 s72, s65")
    a(f"s_mul_i32 s{T1}, s44, 28")
    a(f"s_add_u32 s65, s65, s{T1}")
    a("s_lshl_b32 s65, s65, 10")
    a(f"s_add_u32 s65, s65, {WS_AF}")
    a(f"s_lshr_b32 s{T0}, s{S_TP}, 1")
    a(f"s_lshl_b32 s{T0}, s{T0}, 7")
    a(f"s_add_u32 s73, s{T0}, {WS_FL}")
    a("v_mov_b32 v3, s73")
    poll(a, "L_h", S_WS, 3, 4, 16)
    stamp(a, 5)
    def issue(sl, srd):
        a(f"s_add_u32 m0, s46, {sl*2048}")
        a("s_nop 0")
        a(f"buffer_load_dwordx4 v5, s[{srd}:{srd+3}], s64 offen lds")
        a(f"s_add_u32 m0, s46, {sl*2048+1024}")
        a("s_nop 0")
        a(f"buffer_load_dwordx4 v8, s[{srd}:{srd+3}], s64 offen lds")
        a("s_add_u32 s64, s64, 16384")
    def issue_act(sl):
        r = AFR + sl * 8
        a(f"buffer_load_dwordx4 v[{r}:{r+3}], v2, s[{SRD_WS}:{SRD_WS+3}], s65 offen sc1")
        a(f"buffer_load_dwordx4 v[{r+4}:{r+7}], v9, s[{SRD_WS}:{SRD_WS+3}], s65 offen sc1")
        a("s_add_u32 s65, s65, 1024")
    def trreads(sl, dst):
        a(f"ds_read_b64_tr_b16 v[{dst}:{dst+1}], v6 offset:{sl*2048}")
        a(f"ds_read_b64_tr_b16 v[{dst+2}:{dst+3}], v6 offset:{sl*2048+512}")
        a(f"ds_read_b64_tr_b16 v[{dst+4}:{dst+5}], v7 offset:{sl*2048}")
        a(f"ds_read_b64_tr_b16 v[{dst+6}:{dst+7}], v7 offset:{sl*2048+512}")
    def mf4(w, r):
        for t in range(2):
            for c in range(2):
                d = ACC + (t * 2 + c) * 16
                a(f"v_mfma_f32_32x32x16_bf16 v[{d}:{d+15}], v[{w+4*c}:{w+4*c+3}], v[{r+4*t}:{r+4*t+3}], v[{d}:{d+15}]")
    for sl in range(3):
        issue(sl, 48); issue_act(sl)
    a("s_mov_b32 s71, 0")
    a.label("L_d_loop")
    for sl in range(3):
        a("s_waitcnt vmcnt(8)")
        trreads(sl, WF)
        a("s_waitcnt lgkmcnt(0)")
        mf4(WF, AFR + sl * 8)
        issue(sl, 48); issue_act(sl)
    a("s_add_u32 s71, s71, 1")
    a("s_cmp_lt_u32 s71, 8")
    a("s_cbranch_scc1 L_d_loop")
    a("s_waitcnt vmcnt(8)")
    trreads(0, WF)
    a("s_waitcnt lgkmcnt(0)")
    mf4(WF, AFR)
    issue(0, 48); issue_act(0)
    for k, sl in enumerate((1, 2, 0)):
        a(f"s_waitcnt vmcnt({8-4*k})")
        trreads(sl, WF)
        a("s_waitcnt lgkmcnt(0)")
        mf4(WF, AFR + sl * 8)
    stamp(a, 6)
    a(f"s_mul_i32 s64, s44, {8*16384}")
    WOR = [128, 136, 144, 152, 16, 24, 32, 40]
    for sl in range(3):
        issue(sl, 52)
    a("v_sub_f32 v12, 1.0, v12")
    a("v_sub_f32 v13, 1.0, v13")
    a("s_nop 7")
    for t in range(2):
        for i in range(32):
            a(f"v_mul_f32 v{ACC+t*32+i}, v{ACC+t*32+i}, v{12+t}")
    for k in range(8):
        sl = k % 3
        left = min(8, k + 3) - k - 1
        a(f"s_waitcnt vmcnt({2*left})")
        trreads(sl, WOR[k])
        a("s_waitcnt lgkmcnt(0)")
        if k + 3 < 8:
            issue(sl, 52)
    a("s_barrier")
    a("s_barrier")
    a("s_barrier")
    a("s_add_u32 s73, s73, 2048")
    a("v_mov_b32 v3, s73")
    a(f"s_lshl_b32 s{T1}, s44, 3")
    a(f"s_add_u32 s65, s72, s{T1}")
    a("s_add_u32 s65, s65, 112")
    a("s_lshl_b32 s65, s65, 10")
    a(f"s_add_u32 s65, s65, {WS_AF}")
    poll(a, "L_o", S_WS, 3, 4, 16)
    stamp(a, 7)
    AR = [48, 56, 8]
    a("v_mov_b32 v160, v9")
    def issue_o(k):
        r = AR[k % 3]
        a(f"buffer_load_dwordx4 v[{r}:{r+3}], v2, s[{SRD_WS}:{SRD_WS+3}], s65 offen offset:{(k%4)*1024} sc1")
        a(f"buffer_load_dwordx4 v[{r+4}:{r+7}], v160, s[{SRD_WS}:{SRD_WS+3}], s65 offen offset:{(k%4)*1024} sc1")
        if k == 3: a("s_add_u32 s65, s65, 4096")
    for k in range(3): issue_o(k)
    for k in range(8):
        left = min(8, k + 3) - k - 1
        a(f"s_waitcnt vmcnt({2*left})")
        mf4(WOR[k], AR[k % 3])
        if k + 3 < 8: issue_o(k + 3)
    stamp(a, 8)
    a("s_lshl_b32 s65, s44, 14")
    a("v_add_u32 v3, s65, v2")
    a("s_nop 15")
    for i in range(16):
        a(f"ds_write_b128 v3, v[{ACC+4*i}:{ACC+4*i+3}] offset:{i*1024}")
    a("s_lshl_b32 s65, s44, 12")
    a("v_add_u32 v3, s65, v2")
    a("s_waitcnt lgkmcnt(0)")
    a("s_barrier")
    for w in range(4):
        for q in range(4):
            a(f"ds_read_b128 v[{ACC+16*w+4*q}:{ACC+16*w+4*q+3}], v3 offset:{w*16384+q*1024}")
    a("s_lshr_b32 s65, s44, 1")
    a("s_lshl_b32 s65, s65, 5")
    a(f"s_lshl_b32 s{T0}, s{S_TP}, 6")
    a(f"s_add_u32 s65, s65, s{T0}")
    a("s_lshl_b32 s65, s65, 10")
    a(f"s_lshl_b32 s{T0}, s{S_CT}, 7")
    a(f"s_add_u32 s65, s65, s{T0}")
    a(f"s_and_b32 s{T0}, s44, 1")
    a(f"s_lshl_b32 s{T0}, s{T0}, 6")
    a(f"s_add_u32 s65, s65, s{T0}")
    a("v_and_b32 v3, 31, v1")
    a("v_lshlrev_b32 v3, 10, v3")
    a("v_lshrrev_b32 v4, 5, v1")
    a("v_lshl_add_u32 v3, v4, 4, v3")
    a("s_waitcnt lgkmcnt(0)")
    for w in range(1, 4):
        for i in range(16):
            a(f"v_add_f32 v{ACC+i}, v{ACC+i}, v{ACC+16*w+i}")
    for j in range(8):
        a(f"v_cvt_pk_bf16_f32 v{ACC+j}, v{ACC+2*j}, v{ACC+2*j+1}")
    a(f"buffer_store_dwordx4 v[{ACC}:{ACC+3}], v3, s[56:59], s65 offen")
    a(f"buffer_store_dwordx4 v[{ACC+4}:{ACC+7}], v3, s[56:59], s65 offen offset:32")
    stamp(a, 9)

def main(out):
    a = Asm()
    gen(a)
    txt = HEADER
    txt += f"; @launch grid=(256,1,1) block=(768,1,1) lds={LDS}\n"
    txt += '.amdgcn_target "amdgcn-amd-amdhsa--gfx950"\n.text\n' + a.text()
    txt += '.section .rodata,"a"\n'
    txt += kernel_desc(KN, 168)
    open(out, "w").write(txt)

if __name__ == "__main__":
    if "stamps" in sys.argv: STAMPS = True
    FLAGS.update(sys.argv[2:])
    main(sys.argv[1] if len(sys.argv) > 1 else f"cdna_kernels/{NAME}.s")
```

```python
import sys, math
from common import *

WS_KF = 0
WS_VF = 65536
WS_G = 131072
WS_FL = 0x30000
WS_QF = 0x40000
WS_AF = 0x400000
WS_ST = 0x2000000
WS_BYTES = 0x10000000
LOG2E = 1.4426950408889634
QSCALE = 0.25 * LOG2E
STAMPS = False
FLAGS = set()
KN = NAME + "_kernel"

SLOT = 24832; NS = 5; NPRE = 3
O_UP = 7296; O_Q = 14464; O_X = 16640
PA = NS * SLOT; PA_W = 9472
L_K = 0; L_V = 65536
GS = 131072; GS_W = 6144
QX = 131072
MISC = 163072
OX = 131072; OXS = 2304
LDS = 163840
SPIN = 200000

S_X, S_WQ, S_WK, S_WV, S_WO = 4, 6, 8, 10, 12
S_WG, S_WU, S_WD, S_GW = 16, 18, 20, 22
S_OUT, S_DBG, S_WS = 24, 26, 28
S_W, S_MT, S_FS, S_TP, S_CT = 30, 31, 32, 33, 34
T0, T1, T2 = 14, 15, 35
SRD_X, SRD_WS = 36, 40

def stamp(a, idx, sreg=None):
    if not STAMPS: return
    a("s_memtime s[90:91]")
    a("s_memrealtime s[92:93]")
    a(f"s_lshl_b32 s94, s2, 4")
    a(f"s_add_u32 s94, s94, s{S_W}")
    a(f"s_lshl_b32 s94, s94, 8")
    a(f"s_add_u32 s94, s94, {WS_ST + idx*8}")
    if sreg is not None:
        a(f"s_lshl_b32 s95, s{sreg}, 3")
        a("s_add_u32 s94, s94, s95")
    a("s_waitcnt lgkmcnt(0)")
    a("v_mov_b32 v164, s90")
    a("v_mov_b32 v165, s92")
    a("v_mov_b32 v166, 0")
    a(f"buffer_store_dwordx2 v[164:165], v166, s[{SRD_WS}:{SRD_WS+3}], s94 offen")

def tr_lane(a, v_mat, v_row, v_colb, t):
    a(f"v_lshrrev_b32 v{v_mat}, 4, v1")
    a(f"v_bfe_u32 v{v_row}, v1, 2, 2")
    a(f"v_and_b32 v{t}, 1, v1")
    a(f"v_lshlrev_b32 v{v_colb}, 4, v{t}")
    a(f"v_bfe_u32 v{t}, v1, 1, 1")
    a(f"v_lshl_or_b32 v{v_colb}, v{t}, 3, v{v_colb}")
    a(f"v_lshrrev_b32 v{t}, 1, v{v_mat}")
    a(f"v_lshl_add_u32 v{v_row}, v{t}, 3, v{v_row}")
    a(f"v_and_b32 v{v_mat}, 1, v{v_mat}")

def poll(a, nm, base_pair, voff_reg, vtmp, target, nwords=1, sleep=4):
    a(f"s_mov_b64 exec, {(1 << nwords) - 1}")
    a(f"s_mov_b32 s{T2}, 0")
    a.label(f"{nm}_poll")
    a(f"global_load_dword v{vtmp}, v{voff_reg}, s[{base_pair}:{base_pair+1}] sc1")
    a(f"s_add_u32 s{T2}, s{T2}, 1")
    a("s_waitcnt vmcnt(0)")
    a(f"v_cmp_gt_u32 vcc, {target}, v{vtmp}")
    a(f"s_cmp_ge_u32 s{T2}, {SPIN}")
    a(f"s_cbranch_scc1 {nm}_pdone")
    a("s_nop 1")
    a(f"s_cbranch_vccz {nm}_pdone")
    a(f"s_sleep {sleep}")
    a(f"s_branch {nm}_poll")
    a.label(f"{nm}_pdone")
    a("s_mov_b64 exec, -1")

def kv_pieces():
    last = {s % NS: s for s in range(16)}
    groups = {}
    for i in range(128):
        lo, hi = i * 1024, i * 1024 + 1023
        need = 11
        for sl in range(NS):
            if lo < (sl + 1) * SLOT and hi >= sl * SLOT:
                need = max(need, last[sl])
        groups.setdefault(need, []).append(i)
    return groups

def gen(a):
    name = KN
    kernel_begin(a, name)
    a("s_cmp_ge_u32 s2, 256")
    a(f"s_cbranch_scc1 L_exit")
    a("s_load_dwordx8 s[4:11], s[0:1], 0")
    a("s_load_dwordx2 s[12:13], s[0:1], 32")
    a("s_load_dwordx8 s[16:23], s[0:1], 48")
    a("s_load_dwordx4 s[24:27], s[0:1], 80")
    a("s_load_dwordx2 s[28:29], s[0:1], 96")
    a("v_lshrrev_b32 v2, 6, v0")
    a("v_and_b32 v1, 63, v0")
    a(f"v_readfirstlane_b32 s{S_W}, v2")
    a(f"s_and_b32 s{T0}, s2, 7")
    a(f"s_lshr_b32 s{T1}, s2, 3")
    a(f"s_and_b32 s{S_MT}, s{T0}, 1")
    a(f"s_lshl_b32 s{S_MT}, s{S_MT}, 3")
    a(f"s_and_b32 s{S_FS}, s{T1}, 7")
    a(f"s_add_u32 s{S_MT}, s{S_MT}, s{S_FS}")
    a(f"s_lshr_b32 s{S_FS}, s{T0}, 1")
    a(f"s_lshl_b32 s{S_FS}, s{S_FS}, 2")
    a(f"s_lshr_b32 s{T2}, s{T1}, 3")
    a(f"s_add_u32 s{S_FS}, s{S_FS}, s{T2}")
    a(f"s_lshl_b32 s{S_TP}, s{T0}, 2")
    a(f"s_and_b32 s{T2}, s{T1}, 3")
    a(f"s_add_u32 s{S_TP}, s{S_TP}, s{T2}")
    a(f"s_lshr_b32 s{S_CT}, s{T1}, 2")
    a("v_lshlrev_b32 v2, 4, v1")
    a("s_waitcnt lgkmcnt(0)")
    make_srd(a, SRD_X, S_X, 2048 * 512 * 2)
    make_srd(a, SRD_WS, S_WS, WS_BYTES)
    stamp(a, 0)
    a(f"s_cmp_lt_u32 s{S_W}, 8")
    a("s_cbranch_scc1 L_role_c")
    gen_g1(a)
    gen_c(a)
    gen_g2(a)
    a.label("L_exit")
    a("s_endpgm")
    a.label("L_code_end")

def gen_c(a):
    a.label("L_role_c")
    a(f"s_lshr_b32 s47, s2, 3")
    tr_lane(a, 3, 4, 5, 6)
    a(f"s_and_b32 s60, s{S_W}, 1")
    a(f"s_lshr_b32 s61, s{S_W}, 1")
    a("v_and_b32 v6, 31, v1")
    a("v_bfe_u32 v60, v1, 2, 2")
    a("v_lshrrev_b32 v61, 5, v1")
    a("v_xor_b32 v61, v61, v60")
    a("v_xor_b32 v60, 2, v61")
    a("v_lshlrev_b32 v6, 6, v6")
    a(f"s_lshl_b32 s{T0}, s60, 12")
    a(f"s_add_u32 s{T0}, s{T0}, {O_X}")
    a(f"v_add_u32 v6, s{T0}, v6")
    a("v_lshl_add_u32 v53, v61, 4, v6")
    a("v_lshl_add_u32 v54, v60, 4, v6")
    a(f"v_mul_u32_u24 v6, {O_UP}, v3")
    a("v_mul_u32_u24 v60, 224, v4")
    a("v_add3_u32 v6, v6, v60, v5")
    a(f"s_lshl_b32 s{T0}, s61, 6")
    a(f"v_add_u32 v55, s{T0}, v6")
    a("v_add_u32 v56, 32, v55")
    a(f"s_mov_b32 s{T0}, {4*224}")
    a("s_cmp_eq_u32 s61, 3")
    a("s_cbranch_scc0 L_c_u1done")
    a("v_lshlrev_b32 v6, 6, v4")
    a("v_lshl_add_u32 v6, v3, 5, v6")
    a("v_add_u32 v6, v6, v5")
    a(f"v_add_u32 v56, {O_Q}, v6")
    a(f"s_mov_b32 s{T0}, {4*64}")
    a.label("L_c_u1done")
    a(f"s_lshl_b32 s{T1}, s{T0}, 2")
    a(f"v_add_u32 v57, s{T0}, v56")
    a(f"v_add_u32 v58, s{T1}, v56")
    a(f"v_add_u32 v59, s{T0}, v58")
    a(f"s_cmp_eq_u32 s{S_W}, 3")
    a("s_cselect_b32 s69, 11, 99")
    XA = (8, 12); WA = (16, 20)
    XB = (28, 32); WB = (36, 40)
    def rd_list(ks, X, W, c_x, c_w0, c_w1a, c_w1b):
        return [f"ds_read_b128 v[{X[0]}:{X[0]+3}], v{c_x}",
                f"ds_read_b64_tr_b16 v[{W[0]}:{W[0]+1}], v{c_w0} offset:{(16*ks)*224}",
                f"ds_read_b64_tr_b16 v[{W[0]+2}:{W[0]+3}], v{c_w0} offset:{(16*ks+4)*224}",
                f"ds_read_b64_tr_b16 v[{W[1]}:{W[1]+1}], v{c_w1a}",
                f"ds_read_b64_tr_b16 v[{W[1]+2}:{W[1]+3}], v{c_w1b}",
                f"ds_read_b128 v[{X[1]}:{X[1]+3}], v{c_x} offset:2048"]
    def mf_rd(X, W, rds, first=False):
        rds = list(rds)
        for t in range(2):
            for u in range(2):
                d = 64 + (t * 2 + u) * 16
                c = "0" if first else f"v[{d}:{d+15}]"
                a(f"v_mfma_f32_32x32x16_bf16 v[{d}:{d+15}], v[{W[u]}:{W[u]+3}], v[{X[t]}:{X[t]+3}], {c}")
                for _ in range(3):
                    if rds: a(rds.pop(0))
    def cur(slot):
        for d, b in ((128, 53), (129, 55), (130, 56), (131, 57), (132, 54), (133, 58), (134, 59)):
            a(f"v_add_u32 v{d}, s{slot}, v{b}")
    RA = rd_list(0, XA, WA, 128, 129, 130, 131)
    RB = rd_list(1, XB, WB, 132, 129, 133, 134)
    a(f"s_mov_b32 s63, {SLOT}")
    a("s_mov_b32 s64, 0")
    a("s_barrier")
    stamp(a, 2)
    for r in rd_list(0, XA, WA, 53, 55, 56, 57): a(r)
    a("s_waitcnt lgkmcnt(0)")
    mf_rd(XA, WA, rd_list(1, XB, WB, 54, 55, 58, 59), first=True)
    a("s_branch L_c_mid")
    a.label("L_c_loop")
    a("s_waitcnt lgkmcnt(0)")
    mf_rd(XA, WA, RB)
    a.label("L_c_mid")
    cur(63)
    a("s_cmp_eq_u32 s64, s69")
    a("s_cbranch_scc1 L_c_side")
    a.label("L_c_noside")
    a("s_waitcnt lgkmcnt(0)")
    a("s_barrier")
    if "stagest" in FLAGS: stamp(a, 16, 64)
    mf_rd(XB, WB, RA)
    a(f"s_add_u32 s63, s63, {SLOT}")
    a(f"s_cmp_eq_u32 s63, {NS*SLOT}")
    a("s_cselect_b32 s63, 0, s63")
    a("s_add_u32 s64, s64, 1")
    a("s_cmp_lt_u32 s64, 16")
    a("s_cbranch_scc1 L_c_loop")
    a("s_branch L_c_p1end")
    a.label("L_c_side")
    a.label("L_c_side10")
    a("s_mov_b32 s69, 99")
    a("v_lshlrev_b32 v6, 7, v1")
    poll(a, "L_kv", S_DBG, 6, 7, 64, nwords=2, sleep=32)
    a("s_branch L_c_noside")
    a.label("L_c_p1end")
    stamp(a, 3)
    a("s_waitcnt lgkmcnt(0)")
    a("s_nop 7")
    a(f"s_lshl_b32 s66, s{S_MT}, 2")
    a("s_lshl_b32 s65, s60, 1")
    a("s_add_u32 s66, s66, s65")
    def h_tile(t, u):
        d = 64 + (t * 2 + u) * 16
        for j in range(8):
            a(f"v_mul_f32 v{d+j}, v{d+j}, v{d+8+j}")
        for j in range(4):
            a(f"v_cvt_pk_bf16_f32 v{d+j}, v{d+2*j}, v{d+2*j+1}")
        a(f"buffer_store_dwordx4 v[{d}:{d+3}], v2, s[{SRD_WS}:{SRD_WS+3}], s{67+t} offen offset:{1024*u} sc1")
    a("s_mul_i32 s67, s66, 144")
    a(f"s_mul_i32 s65, s{S_FS}, 7")
    a("s_add_u32 s67, s67, s65")
    a("s_lshl_b32 s65, s61, 1")
    a("s_add_u32 s67, s67, s65")
    a("s_lshl_b32 s67, s67, 10")
    a(f"s_add_u32 s67, s67, {WS_AF}")
    a(f"s_add_u32 s68, s67, {144*1024}")
    h_tile(0, 0)
    h_tile(1, 0)
    a("s_cmp_eq_u32 s61, 3")
    a("s_cbranch_scc1 L_c_qep")
    h_tile(0, 1)
    h_tile(1, 1)
    a("s_branch L_c_epdone")
    a.label("L_c_qep")
    a(f"s_lshl_b32 s65, s60, 12")
    a(f"s_add_u32 s65, s65, {QX}")
    a("v_add_u32 v6, s65, v2")
    for t in range(2):
        d = 64 + (t * 2 + 1) * 16
        for j in range(16):
            a(f"v_mul_f32 v{d+j}, {f32hex(QSCALE)}, v{d+j}")
        for j in range(8):
            a(f"v_cvt_pk_bf16_f32 v{d+j}, v{d+2*j}, v{d+2*j+1}")
        a(f"ds_write_b128 v6, v[{d}:{d+3}] offset:{t*2048}")
        a(f"ds_write_b128 v6, v[{d+4}:{d+7}] offset:{t*2048+1024}")
    a.label("L_c_epdone")
    SA = (32, 48); SB = (64, 80); OA = 96; OB = 112
    QA = 4; QB = 8; KF = (12, 16); VF = (20, 128)
    IDX = 28; AK = 29; AV = 30; VG = 31
    a(f"s_and_b32 s70, s{S_W}, 3")
    a(f"s_lshr_b32 s71, s{S_W}, 2")
    a(f"s_lshl_b32 s72, s{S_MT}, 2")
    a("s_add_u32 s72, s72, s70")
    a("s_lshl_b32 s65, s70, 11")
    a(f"s_add_u32 s65, s65, {QX}")
    a("v_add_u32 v3, s65, v2")
    a("s_waitcnt lgkmcnt(0)")
    a("s_barrier")
    stamp(a, 4)
    a(f"ds_read_b128 v[{QA}:{QA+3}], v3")
    a(f"ds_read_b128 v[{QB}:{QB+3}], v3 offset:1024")
    a("s_lshl_b32 s65, s72, 7")
    a(f"s_add_u32 s65, s65, {WS_G}")
    a("v_and_b32 v3, 31, v1")
    a("v_lshlrev_b32 v3, 2, v3")
    a(f"buffer_load_dword v{VG}, v3, s[{SRD_WS}:{SRD_WS+3}], s65 offen sc1")
    a("s_lshl_b32 s65, s71, 15")
    a(f"v_add_u32 v{AK}, s65, v2")
    a("v_lshrrev_b32 v3, 5, v1")
    a("v_and_b32 v32, 15, v1")
    a("v_lshl_add_u32 v3, v3, 4, v32")
    a("v_lshlrev_b32 v3, 4, v3")
    a(f"s_add_u32 s65, s65, {L_V}")
    a(f"v_add_u32 v{AV}, s65, v3")
    a(f"ds_read_b128 v[{KF[0]}:{KF[0]+3}], v{AK}")
    a(f"ds_read_b128 v[{KF[1]}:{KF[1]+3}], v{AK} offset:1024")
    a(f"v_mov_b32 v{IDX}, 0xdddddddd")
    a("v_and_b32 v3, 27, v1")
    a("v_cmp_eq_u32 vcc, 16, v3")
    a("v_mov_b32 v3, 0x3f803f80")
    a("s_nop 0")
    a("v_cndmask_b32 v3, 0, v3, vcc")
    for b in VF:
        for i in range(8):
            a(f"v_mov_b32 v{b+i}, v3")
    a("s_mov_b32 s74, 0x0000ffff")
    a("s_mov_b32 s75, 0x0000ffff")
    a("s_mov_b64 exec, s[74:75]")
    a(f"ds_read_b128 v[{VF[0]}:{VF[0]+3}], v{AV}")
    a(f"ds_read_b128 v[{VF[0]+4}:{VF[0]+7}], v{AV} offset:512")
    a("s_mov_b64 exec, -1")
    for i in range(16):
        a(f"v_mov_b32 v{OA+i}, 0")
        a(f"v_mov_b32 v{OB+i}, 0")
    for i in range(8, 16):
        a(f"v_mov_b32 v{SB[1]+i}, 0")
    a("s_waitcnt vmcnt(0) lgkmcnt(0)")
    a("s_barrier")
    if "dumpq" in FLAGS:
        a("s_lshl_b32 s65, s72, 5")
        a(f"s_lshl_b32 s73, s{S_FS}, 1")
        a("s_add_u32 s65, s65, s73")
        a("s_lshl_b32 s65, s65, 10")
        a(f"s_add_u32 s65, s65, {WS_QF}")
        a(f"buffer_store_dwordx4 v[{QA}:{QA+3}], v2, s[{SRD_WS}:{SRD_WS+3}], s65 offen")
        a(f"buffer_store_dwordx4 v[{QB}:{QB+3}], v2, s[{SRD_WS}:{SRD_WS+3}], s65 offen offset:1024")
    a(f"v_mfma_f32_32x32x16_bf16 v[{SA[0]}:{SA[0]+15}], v[{KF[0]}:{KF[0]+3}], v[{QA}:{QA+3}], 0")
    a(f"v_mfma_f32_32x32x16_bf16 v[{SB[0]}:{SB[0]+15}], v[{KF[0]}:{KF[0]+3}], v[{QB}:{QB+3}], 0")
    a("s_mov_b32 s73, 0")
    a("s_nop 15")
    def smf(O, V, P):
        a(f"v_smfmac_f32_32x32x32_bf16 v[{O}:{O+15}], v[{V}:{V+3}], v[{P}:{P+7}], v{IDX}")
    def tile(t):
        c = t & 1; n = c ^ 1
        sa, sb = SA[c], SB[c]
        def E(S, i): a(f"v_exp_f32 v{S+i}, v{S+i}")
        a("s_waitcnt lgkmcnt(0)")
        a(f"ds_read_b128 v[{KF[c]}:{KF[c]+3}], v{AK} offset:{(t+2)*1024}")
        E(sa, 0); E(sa, 1)
        smf(OB, VF[n] + 4, SB[n] + 8)
        a("s_mov_b64 exec, s[74:75]")
        a(f"ds_read_b128 v[{VF[n]}:{VF[n]+3}], v{AV} offset:{(t+1)*1024}")
        a(f"ds_read_b128 v[{VF[n]+4}:{VF[n]+7}], v{AV} offset:{(t+1)*1024+512}")
        a("s_mov_b64 exec, -1")
        for i in range(2, 6): E(sa, i)
        a(f"v_mfma_f32_32x32x16_bf16 v[{SA[n]}:{SA[n]+15}], v[{KF[n]}:{KF[n]+3}], v[{QA}:{QA+3}], 0")
        for i in range(6, 11): E(sa, i)
        smf(OA, VF[c], sa)
        for i in range(11, 16): E(sa, i)
        E(sb, 0); E(sb, 1)
        smf(OA, VF[c] + 4, sa + 8)
        for i in range(2, 6): E(sb, i)
        a(f"v_mfma_f32_32x32x16_bf16 v[{SB[n]}:{SB[n]+15}], v[{KF[n]}:{KF[n]+3}], v[{QB}:{QB+3}], 0")
        for i in range(6, 11): E(sb, i)
        smf(OB, VF[c], sb)
        for i in range(11, 16): E(sb, i)
    UN = 4
    a.label("L_a_loop")
    for t in range(UN):
        tile(t)
    a(f"v_add_u32 v{AK}, {UN*1024}, v{AK}")
    a(f"v_add_u32 v{AV}, {UN*1024}, v{AV}")
    a("s_add_u32 s73, s73, 1")
    a(f"s_cmp_lt_u32 s73, {32//UN}")
    a("s_cbranch_scc1 L_a_loop")
    a("s_nop 1")
    smf(OB, VF[1] + 4, SB[1] + 8)
    a("s_waitcnt lgkmcnt(0)")
    stamp(a, 5)
    a("s_nop 15")
    a("s_cmp_eq_u32 s71, 0")
    a("s_cbranch_scc1 L_a_noswap")
    for i in range(9):
        a(f"v_mov_b32 v3, v{OA+i}")
        a(f"v_mov_b32 v{OA+i}, v{OB+i}")
        a(f"v_mov_b32 v{OB+i}, v3")
    for i in range(4):
        a(f"v_mov_b32 v{QA+i}, v{QB+i}")
    a.label("L_a_noswap")
    a(f"s_mul_i32 s65, s{S_W}, {OXS}")
    a(f"s_add_u32 s65, s65, {OX}")
    a("v_add_u32 v3, s65, v2")
    a("v_lshrrev_b32 v32, 2, v2")
    a("v_add_u32 v32, s65, v32")
    a("s_barrier")
    stamp(a, 6)
    a(f"ds_write_b128 v3, v[{OB}:{OB+3}]")
    a(f"ds_write_b128 v3, v[{OB+4}:{OB+7}] offset:1024")
    a(f"ds_write_b32 v32, v{OB+8} offset:2048")
    a(f"s_xor_b32 s65, s{S_W}, 4")
    a(f"s_mul_i32 s65, s65, {OXS}")
    a(f"s_add_u32 s65, s65, {OX}")
    a("v_add_u32 v33, s65, v2")
    a("v_lshrrev_b32 v34, 2, v2")
    a("v_add_u32 v34, s65, v34")
    a("s_waitcnt lgkmcnt(0)")
    a("s_barrier")
    a(f"ds_read_b128 v[{OB}:{OB+3}], v33")
    a(f"ds_read_b128 v[{OB+4}:{OB+7}], v33 offset:1024")
    a(f"ds_read_b32 v{OB+8}, v34 offset:2048")
    a("s_waitcnt lgkmcnt(0)")
    for i in range(9):
        a(f"v_add_f32 v{OA+i}, v{OA+i}, v{OB+i}")
    a(f"v_cmp_nle_f32 vcc, {f32hex(2.0**-30)}, v{OA+8}")
    a("s_mov_b64 s[76:77], vcc")
    a(f"v_cmp_nge_f32 vcc, {f32hex(2.0**30)}, v{OA+8}")
    a("s_or_b64 s[76:77], s[76:77], vcc")
    a("v_mov_b32 v3, 0x207")
    for i in range(8):
        a(f"v_cmp_class_f32 vcc, v{OA+i}, v3")
        a("s_or_b64 s[76:77], s[76:77], vcc")
    a("s_cmp_lg_u64 s[76:77], 0")
    a("s_cbranch_scc1 L_a_fallback")
    a.label("L_a_fin")
    a(f"v_rcp_f32 v3, v{OA+8}")
    a("s_nop 0")
    a(f"v_mul_f32 v3, v3, v{VG}")
    for i in range(8):
        a(f"v_mul_f32 v{OA+i}, v{OA+i}, v3")
    for j in range(4):
        a(f"v_cvt_pk_bf16_f32 v{OA+j}, v{OA+2*j}, v{OA+2*j+1}")
    a("s_mul_i32 s65, s72, 144")
    a(f"s_lshl_b32 s73, s{S_FS}, 1")
    a("s_add_u32 s65, s65, s73")
    a("s_add_u32 s65, s65, s71")
    a("s_add_u32 s65, s65, 112")
    a("s_lshl_b32 s65, s65, 10")
    a(f"s_add_u32 s65, s65, {WS_AF}")
    a(f"buffer_store_dwordx4 v[{OA}:{OA+3}], v2, s[{SRD_WS}:{SRD_WS+3}], s65 offen sc1")
    a("s_waitcnt vmcnt(0)")
    a("s_barrier")
    a(f"s_cmp_lg_u32 s{S_W}, 0")
    a("s_cbranch_scc1 L_exit")
    a(f"s_lshl_b32 s65, s{S_MT}, 7")
    a(f"s_add_u32 s65, s65, {WS_FL+2048}")
    a("v_mov_b32 v136, s65")
    a("v_mov_b32 v137, 1")
    a("s_mov_b64 exec, 1")
    a(f"global_atomic_add v136, v137, s[{S_WS}:{S_WS+1}] sc1")
    a("s_mov_b64 exec, -1")
    stamp(a, 7)
    a("s_endpgm")
    a.label("L_a_fallback")
    S = SA[0]; M = 3
    a(f"v_mov_b32 v{M}, 0xff800000")
    a(f"v_mov_b32 v{AK}, v2")
    a("s_mov_b32 s73, 0")
    a.label("L_fb1")
    a(f"ds_read_b128 v[{KF[0]}:{KF[0]+3}], v{AK}")
    a("s_waitcnt lgkmcnt(0)")
    a(f"v_mfma_f32_32x32x16_bf16 v[{S}:{S+15}], v[{KF[0]}:{KF[0]+3}], v[{QA}:{QA+3}], 0")
    a(f"v_add_u32 v{AK}, 1024, v{AK}")
    a("s_nop 15")
    for i in range(0, 16, 2):
        a(f"v_max3_f32 v{M}, v{M}, v{S+i}, v{S+i+1}")
    a("s_add_u32 s73, s73, 1")
    a("s_cmp_lt_u32 s73, 64")
    a("s_cbranch_scc1 L_fb1")
    a(f"v_mov_b32 v32, v{M}")
    a("s_nop 1")
    a(f"v_permlane32_swap_b32 v{M}, v32")
    a("s_nop 1")
    a(f"v_max_f32 v{M}, v{M}, v32")
    for i in range(16):
        a(f"v_mov_b32 v{OA+i}, 0")
    a(f"v_mov_b32 v{AK}, v2")
    a("v_lshrrev_b32 v32, 5, v1")
    a("v_and_b32 v33, 15, v1")
    a("v_lshl_add_u32 v32, v32, 4, v33")
    a("v_lshlrev_b32 v32, 4, v32")
    a(f"v_add_u32 v{AV}, {L_V}, v32")
    a("s_mov_b32 s73, 0")
    a.label("L_fb2")
    a(f"ds_read_b128 v[{KF[0]}:{KF[0]+3}], v{AK}")
    a("s_mov_b64 exec, s[74:75]")
    a(f"ds_read_b128 v[{VF[0]}:{VF[0]+3}], v{AV}")
    a(f"ds_read_b128 v[{VF[0]+4}:{VF[0]+7}], v{AV} offset:512")
    a("s_mov_b64 exec, -1")
    a("s_waitcnt lgkmcnt(0)")
    a(f"v_mfma_f32_32x32x16_bf16 v[{S}:{S+15}], v[{KF[0]}:{KF[0]+3}], v[{QA}:{QA+3}], 0")
    a(f"v_add_u32 v{AK}, 1024, v{AK}")
    a(f"v_add_u32 v{AV}, 1024, v{AV}")
    a("s_nop 15")
    for i in range(16):
        a(f"v_sub_f32 v{S+i}, v{S+i}, v{M}")
    for i in range(16):
        a(f"v_exp_f32 v{S+i}, v{S+i}")
    a("s_nop 1")
    smf(OA, VF[0], S)
    smf(OA, VF[0] + 4, S + 8)
    a("s_nop 7")
    a("s_add_u32 s73, s73, 1")
    a("s_cmp_lt_u32 s73, 64")
    a("s_cbranch_scc1 L_fb2")
    a("s_nop 15")
    a("s_branch L_a_fin")

def gen_g1(a):
    a("s_setprio 3")
    GUB = 512 * 1792 * 2
    a(f"s_sub_u32 s44, s{S_W}, 8")
    a("s_lshl_b32 s45, s44, 10")
    a(f"s_mul_i32 s76, s44, {PA_W}")
    a(f"s_add_u32 s76, s76, {PA}")
    a(f"s_lshl_b32 s77, s{S_MT}, 3")
    a(f"s_lshr_b32 s{T0}, s{S_FS}, 2")
    a(f"s_lshl_b32 s{T0}, s{T0}, 1")
    a(f"s_add_u32 s77, s77, s{T0}")
    a(f"s_and_b32 s{T0}, s{S_FS}, 1")
    a(f"s_add_u32 s77, s77, s{T0}")
    a("s_mov_b32 s78, 0xffff")
    a("s_mov_b32 s79, 0xffff")
    a("s_cmp_ge_u32 s2, 128")
    a("s_cbranch_scc1 L_g_noA1")
    make_srd(a, 48, S_WK, 16384)
    make_srd(a, 52, S_WV, 16384)
    make_srd(a, 56, S_GW, 1024)
    a(f"s_lshl_b32 s{T0}, s44, 12")
    a("s_mov_b32 m0, s76")
    a("v_and_b32 v7, 31, v1")
    for i in range(4):
        a(f"buffer_load_dwordx4 v2, s[48:51], s{T0} offen offset:{1024*i} lds")
    a("s_add_u32 m0, s76, 4224")
    a("v_lshlrev_b32 v7, 10, v7")
    for i in range(4):
        a(f"buffer_load_dwordx4 v2, s[52:55], s{T0} offen offset:{1024*i} lds")
    a("s_add_u32 m0, s76, 8448")
    a(f"s_lshl_b32 s{T0}, s77, 14")
    a("buffer_load_dwordx4 v2, s[56:59], 0 offen lds")
    a(f"s_lshl_b32 s{T1}, s44, 8")
    a(f"s_add_u32 s{T0}, s{T0}, s{T1}")
    a("v_lshrrev_b32 v6, 5, v1")
    a("v_lshl_add_u32 v7, v6, 4, v7")
    a("s_mov_b64 exec, s[78:79]")
    for s_ in range(8):
        a(f"buffer_load_dwordx4 v[{96+4*s_}:{99+4*s_}], v7, s[{SRD_X}:{SRD_X+3}], s{T0} offen offset:{32*s_}")
    a("s_mov_b64 exec, -1")
    a.label("L_g_noA1")
    make_srd(a, 48, S_WG, GUB)
    make_srd(a, 52, S_WU, GUB)
    def gu_voff(vd, s_idx):
        a(f"s_lshl_b32 s{T0}, s{s_idx}, 6")
        a(f"v_add_u32 v{vd}, s{T0}, v1")
        a(f"v_mul_u32_u24 v4, 4682, v{vd}")
        a("v_lshrrev_b32 v4, 16, v4")
        a(f"v_lshlrev_b32 v{vd}, 4, v{vd}")
        a(f"v_mul_u32_u24 v4, {3584-224}, v4")
        a(f"s_mul_i32 s{T0}, s{S_FS}, 224")
        a(f"v_add3_u32 v{vd}, v{vd}, v4, s{T0}")
    gu_voff(8, 44)
    a("v_lshrrev_b32 v4, 2, v1")
    a("v_lshrrev_b32 v5, 4, v1")
    a("v_and_b32 v10, 3, v1")
    a("v_xor_b32 v10, v10, v5")
    a("v_lshlrev_b32 v10, 4, v10")
    a("v_lshl_add_u32 v10, v4, 10, v10")
    a(f"s_lshl_b32 s{T0}, s{S_MT}, 7")
    a(f"s_lshl_b32 s{T1}, s44, 4")
    a(f"s_add_u32 s{T0}, s{T0}, s{T1}")
    a(f"s_lshl_b32 s{T0}, s{T0}, 10")
    a(f"v_add_u32 v10, s{T0}, v10")
    a("v_add_u32 v11, 0x10000, v10")
    a("s_cmp_eq_u32 s44, 3")
    a("s_cbranch_scc1 L_g_q")
    make_srd(a, 56, S_WG, GUB)
    make_srd(a, 60, S_WU, GUB)
    a("s_add_u32 s46, s44, 4")
    gu_voff(9, 46)
    a("v_mov_b32 v12, v9")
    a("s_add_u32 s64, s45, 4096")
    a(f"s_add_u32 s65, s45, {O_UP+4096}")
    a(f"s_mov_b32 s66, {32*3584}")
    a("s_branch L_g_qdone")
    a.label("L_g_q")
    make_srd(a, 56, S_WQ, 512 * 512 * 2)
    make_srd(a, 60, S_WQ, 512 * 512 * 2)
    a("v_lshlrev_b32 v4, 10, v4")
    a("v_and_b32 v9, 3, v1")
    a("v_lshl_add_u32 v9, v9, 4, v4")
    a(f"s_lshl_b32 s{T0}, s{S_FS}, 6")
    a(f"v_add_u32 v9, s{T0}, v9")
    a("v_add_u32 v12, 0x4000, v9")
    a(f"s_mov_b32 s64, {O_Q}")
    a(f"s_mov_b32 s65, {O_Q+1024}")
    a(f"s_mov_b32 s66, {32*1024}")
    a.label("L_g_qdone")
    a("s_mov_b32 s67, 0")
    a("s_mov_b32 s68, 0")
    a("s_mov_b32 s69, 0")
    def issue_stage(slot):
        a(f"s_add_u32 s{T0}, s45, s{slot}")
        a(f"s_add_u32 m0, s{T0}, {O_X}")
        a("s_nop 0")
        a(f"buffer_load_dwordx4 v10, s[{SRD_X}:{SRD_X+3}], s69 offen lds")
        a(f"s_add_u32 m0, s{T0}, {O_X+4096}")
        a("s_nop 0")
        a(f"buffer_load_dwordx4 v11, s[{SRD_X}:{SRD_X+3}], s69 offen lds")
        a(f"s_mov_b32 m0, s{T0}")
        a("s_add_u32 s69, s69, 64")
        a("buffer_load_dwordx4 v8, s[48:51], s67 offen lds")
        a(f"s_add_u32 m0, s{T0}, {O_UP}")
        a("s_nop 0")
        a("buffer_load_dwordx4 v8, s[52:55], s67 offen lds")
        a(f"s_add_u32 m0, s64, s{slot}")
        a(f"s_add_u32 s67, s67, {32*3584}")
        a("buffer_load_dwordx4 v9, s[56:59], s68 offen lds")
        a(f"s_add_u32 m0, s65, s{slot}")
        a("s_nop 0")
        a("buffer_load_dwordx4 v12, s[60:63], s68 offen lds")
        a("s_add_u32 s68, s68, s66")
        a(f"s_add_u32 s{slot}, s{slot}, {SLOT}")
        a(f"s_cmp_eq_u32 s{slot}, {NS*SLOT}")
        a(f"s_cselect_b32 s{slot}, 0, s{slot}")
    a("s_mov_b32 s70, 0")
    a("s_mov_b32 s71, 0")
    a.label("L_g_loop")
    issue_stage(70)
    a("s_add_u32 s71, s71, 1")
    a("s_cmp_gt_u32 s71, 7")
    a("s_cbranch_scc1 L_g_plain")
    a("s_cmp_eq_u32 s71, 2")
    a("s_cbranch_scc1 L_g_ev_pa")
    a("s_cmp_eq_u32 s71, 4")
    a("s_cbranch_scc1 L_g_ev_start")
    a("s_cmp_lt_u32 s71, 5")
    a("s_cbranch_scc1 L_g_loop")
    a("s_cmp_ge_u32 s2, 128")
    a("s_cbranch_scc1 L_g_plain")
    a("s_cmp_eq_u32 s71, 6")
    a("s_cbranch_scc1 L_g_ev_drain")
    a("s_cmp_eq_u32 s71, 7")
    a("s_cbranch_scc1 L_g_ev_sig")
    a.label("L_g_plain")
    a("s_cmp_eq_u32 s71, 16")
    a("s_cbranch_scc1 L_g_tail")
    a(f"s_waitcnt vmcnt({6*(NS-2)})")
    a("s_barrier")
    a("s_branch L_g_loop")
    a.label("L_g_ev_pf")
    a("s_lshr_b32 s72, s2, 3")
    a("s_and_b32 s73, s2, 7")
    a("v_lshlrev_b32 v6, 7, v1")
    a(f"s_and_b32 s{T0}, s73, 1")
    a(f"s_lshl_b32 s{T0}, s{T0}, 20")
    a(f"s_lshl_b32 s{T1}, s72, 15")
    a(f"s_add_u32 s{T0}, s{T0}, s{T1}")
    a(f"s_lshl_b32 s{T1}, s44, 13")
    a(f"s_add_u32 s{T0}, s{T0}, s{T1}")
    if "nopf" in FLAGS: a("s_mov_b64 exec, 1")
    a(f"buffer_load_dword v13, v6, s[{SRD_X}:{SRD_X+3}], s{T0} offen")
    a("s_cmp_ge_u32 s44, 2")
    a("s_cbranch_scc1 L_pf_q")
    a(f"s_lshl_b32 s{T0}, s44, 6")
    a(f"v_add_u32 v6, s{T0}, v1")
    a("v_min_u32 v6, 111, v6")
    a("v_mul_u32_u24 v7, 9363, v6")
    a("v_lshrrev_b32 v7, 16, v7")
    a("v_lshlrev_b32 v6, 7, v6")
    a(f"v_mul_u32_u24 v7, {3584-896}, v7")
    a("v_add_u32 v6, v6, v7")
    a(f"s_mul_i32 s{T0}, s72, {16*3584}")
    a(f"s_lshr_b32 s{T1}, s73, 1")
    a(f"s_mul_i32 s{T1}, s{T1}, 896")
    a(f"s_add_u32 s{T0}, s{T0}, s{T1}")
    a(f"buffer_load_dword v14, v6, s[48:51], s{T0} offen")
    a(f"buffer_load_dword v15, v6, s[52:55], s{T0} offen")
    a("s_mov_b64 exec, -1")
    a("s_branch L_g_loop")
    a.label("L_pf_q")
    a("s_cmp_eq_u32 s44, 3")
    a("s_cbranch_scc0 L_pf_code")
    a("v_bfe_u32 v6, v1, 1, 4")
    a("v_lshlrev_b32 v6, 10, v6")
    a("v_and_b32 v7, 1, v1")
    a("v_lshl_add_u32 v6, v7, 7, v6")
    a(f"s_lshl_b32 s{T0}, s72, 14")
    a(f"s_lshr_b32 s{T1}, s73, 1")
    a(f"s_lshl_b32 s{T1}, s{T1}, 8")
    a(f"s_add_u32 s{T0}, s{T0}, s{T1}")
    a(f"buffer_load_dword v14, v6, s[56:59], s{T0} offen")
    a("s_mov_b64 exec, 1")
    a(f"buffer_load_dword v15, v6, s[56:59], s{T0} offen")
    a("s_mov_b64 exec, -1")
    a("s_branch L_g_loop")
    a.label("L_pf_code")
    a("s_getpc_b64 s[80:81]")
    a.label("L_pc_ref")
    a("s_mov_b32 s82, L_code_end-L_pc_ref")
    a("s_mov_b32 s83, 0x00020000")
    a("buffer_load_dword v14, v6, s[80:83], 0 offen")
    a(f"s_mov_b32 s{T0}, 8192")
    a(f"buffer_load_dword v15, v6, s[80:83], s{T0} offen")
    a("s_mov_b64 exec, -1")
    a("s_branch L_g_loop")
    a.label("L_g_ev_start")
    a("s_waitcnt vmcnt(21) lgkmcnt(0)")
    a("s_barrier")
    a("s_cmp_lt_u32 s2, 128")
    a("s_cbranch_scc1 L_g_ev_red")
    a("s_branch L_g_loop")
    a.label("L_g_ev_pa")
    a("s_cmp_ge_u32 s2, 128")
    a("s_cbranch_scc1 L_g_ev_pf")
    tr_lane(a, 3, 4, 5, 6)
    a("v_mul_u32_u24 v6, 4224, v3")
    a("v_lshl_add_u32 v6, v4, 5, v6")
    a("v_add3_u32 v6, v6, v5, s76")
    a("v_lshrrev_b32 v7, 5, v1")
    a("v_lshlrev_b32 v7, 4, v7")
    a(f"s_lshl_b32 s{T0}, s44, 8")
    a(f"s_add_u32 s{T0}, s{T0}, s76")
    a(f"v_add_u32 v7, s{T0}, v7")
    a("s_waitcnt vmcnt(12)")
    stamp(a, 1)
    for s_ in range(8):
        for j in range(2):
            a(f"ds_read_b64_tr_b16 v[{128+4*s_+2*j}:{129+4*s_+2*j}], v6 offset:{(16*s_+4*j)*32}")
        if s_ == 3: a("s_waitcnt lgkmcnt(0)")
    a("s_waitcnt lgkmcnt(0)")
    for s_ in range(8):
        a(f"ds_read_b128 v[{16+4*s_}:{19+4*s_}], v7 offset:{8448+32*s_}")
    for s_ in range(8):
        c = "0" if s_ == 0 else "v[64:79]"
        a(f"v_mfma_f32_32x32x16_bf16 v[64:79], v[{128+4*s_}:{131+4*s_}], v[{96+4*s_}:{99+4*s_}], {c}")
    a("s_waitcnt lgkmcnt(0)")
    for s_ in range(8):
        c = "0" if s_ == 0 else "v[80:95]"
        a(f"v_mfma_f32_32x32x16_bf16 v[80:95], v[{16+4*s_}:{19+4*s_}], v[{96+4*s_}:{99+4*s_}], {c}")
    a("v_and_b32 v6, 31, v1")
    a("v_lshrrev_b32 v60, 5, v1")
    a("v_lshl_add_u32 v61, v6, 1, v60")
    a("v_lshlrev_b32 v61, 5, v61")
    a("v_add_u32 v7, s76, v61")
    a("v_lshlrev_b32 v60, 10, v60")
    a("v_lshl_add_u32 v60, v6, 2, v60")
    a("v_add_u32 v60, s76, v60")
    a("v_lshlrev_b32 v6, 2, v6")
    a("v_add_u32 v5, s76, v6")
    a("ds_write_b128 v7, v[64:67]")
    a("ds_write_b128 v7, v[68:71] offset:16")
    for j in range(8):
        a(f"ds_write_b32 v60, v{72+j} offset:{2048+128*j}")
    a("s_nop 3")
    a("ds_write_b32 v5, v80 offset:4096")
    a("s_branch L_g_ev_pf")
    a.label("L_g_ev_red")
    a("s_cmp_eq_u32 s44, 3")
    a("s_cbranch_scc1 L_g_loop")
    a("s_cmp_eq_u32 s44, 2")
    a("s_cbranch_scc1 L_g_pa_z")
    a(f"s_lshr_b32 s{T0}, s77, 1")
    a(f"s_lshl_b32 s{T0}, s{T0}, 10")
    a(f"s_and_b32 s{T1}, s77, 1")
    a(f"s_lshl_b32 s{T1}, s{T1}, 8")
    a(f"s_add_u32 s{T0}, s{T0}, s{T1}")
    a("v_and_b32 v6, 31, v1")
    a("v_lshrrev_b32 v60, 5, v1")
    a("v_lshl_add_u32 v61, v6, 1, v60")
    a("v_lshlrev_b32 v61, 5, v61")
    a("s_cmp_eq_u32 s44, 0")
    a("s_cbranch_scc1 L_g_pa_red")
    a(f"s_add_u32 s{T0}, s{T0}, s{T1}")
    a("s_mov_b32 s78, -1")
    a("s_mov_b32 s79, 0")
    a("v_bfe_u32 v60, v1, 2, 1")
    a("v_lshlrev_b32 v60, 3, v60")
    a("v_bfe_u32 v61, v1, 3, 1")
    a("v_lshl_add_u32 v60, v61, 2, v60")
    a("v_and_b32 v61, 3, v1")
    a("v_add_u32 v60, v60, v61")
    a("v_lshlrev_b32 v60, 7, v60")
    a("v_lshrrev_b32 v61, 4, v1")
    a("v_lshl_add_u32 v61, v61, 5, v60")
    a("v_add_u32 v61, 2048, v61")
    a(f"s_add_u32 s{T0}, s{T0}, {WS_VF}")
    a.label("L_g_pa_red")
    a(f"v_add_u32 v61, {PA}, v61")
    for w in range(4):
        a(f"ds_read_b128 v[{64+8*w}:{67+8*w}], v61 offset:{w*PA_W}")
        a(f"ds_read_b128 v[{68+8*w}:{71+8*w}], v61 offset:{w*PA_W+16}")
    a("s_waitcnt lgkmcnt(0)")
    for w in (2, 1):
        for q in range(w):
            for j in range(0, 8, 2):
                d = 64 + 8 * q + j; e = d + 8 * w
                a(f"v_pk_add_f32 v[{d}:{d+1}], v[{d}:{d+1}], v[{e}:{e+1}]")
    for j in range(4):
        a(f"v_cvt_pk_bf16_f32 v{140+j}, v{64+2*j}, v{65+2*j}")
    a("s_mov_b64 exec, s[78:79]")
    a(f"buffer_store_dwordx4 v[140:143], v2, s[{SRD_WS}:{SRD_WS+3}], s{T0} offen sc1")
    a("s_mov_b64 exec, -1")
    a("s_branch L_g_loop")
    a.label("L_g_pa_z")
    a("v_and_b32 v6, 15, v1")
    a("v_lshlrev_b32 v6, 2, v6")
    a(f"v_add_u32 v60, {PA}, v6")
    for w in range(4):
        a(f"ds_read_b32 v{64+w}, v60 offset:{w*PA_W+4096}")
    a(f"s_cmp_lg_u32 s{S_FS}, 0")
    a("s_cbranch_scc1 L_g_nofl")
    a("v_mov_b32 v7, 0")
    a(f"s_lshl_b32 s{T0}, s{S_MT}, 7")
    a(f"s_add_u32 s{T0}, s{T0}, {WS_FL}")
    a(f"buffer_store_dword v7, v7, s[{SRD_WS}:{SRD_WS+3}], s{T0} offen sc1")
    a(f"buffer_store_dword v7, v7, s[{SRD_WS}:{SRD_WS+3}], s{T0} offen offset:2048 sc1")
    a.label("L_g_nofl")
    a("s_waitcnt lgkmcnt(0)")
    for w in range(1, 4):
        a(f"v_add_f32 v64, v64, v{64+w}")
    a(f"v_mul_f32 v64, {f32hex(-LOG2E)}, v64")
    a("v_exp_f32 v64, v64")
    a(f"s_lshl_b32 s{T0}, s77, 6")
    a("v_add_f32 v64, 1.0, v64")
    a("v_rcp_f32 v140, v64")
    a(f"s_add_u32 s{T0}, s{T0}, {WS_G}")
    a(f"buffer_store_dword v140, v6, s[{SRD_WS}:{SRD_WS+3}], s{T0} offen sc1")
    a("s_branch L_g_loop")
    a.label("L_g_ev_drain")
    a("s_waitcnt vmcnt(12)")
    a("s_branch L_g_plain")
    a.label("L_g_ev_sig")
    a("s_cmp_lg_u32 s44, 0")
    a("s_cbranch_scc1 L_g_plain")
    a("s_and_b32 s72, s2, 1")
    a("s_lshl_b32 s72, s72, 7")
    a("v_mov_b32 v6, s72")
    a("v_mov_b32 v7, 1")
    a("s_mov_b64 exec, 1")
    a(f"global_atomic_add v6, v7, s[{S_DBG}:{S_DBG+1}] sc1")
    a("s_mov_b64 exec, -1")
    stamp(a, 2)
    a("s_branch L_g_plain")
    a.label("L_g_tail")
    groups = kv_pieces()
    def issue_kv(pieces):
        n = (len(pieces) + 3) // 4
        for q in range(n):
            idx = [pieces[min(4 * q + j, len(pieces) - 1)] for j in range(4)]
            if idx == [idx[0] + k for k in range(4)]:
                a(f"s_add_u32 s{T0}, s45, {idx[0]*1024}")
            else:
                a(f"s_mov_b32 s{T0}, {idx[0]*1024}")
                for j in range(1, 4):
                    a(f"s_cmp_eq_u32 s44, {j}")
                    a(f"s_cselect_b32 s{T0}, {idx[j]*1024}, s{T0}")
            a(f"s_mov_b32 m0, s{T0}")
            a("s_nop 0")
            a(f"buffer_load_dwordx4 v2, s[{SRD_WS}:{SRD_WS+3}], s{T0} offen sc1 lds")
        return n
    kv_out = 0
    for s in range(11, 16):
        ring_after = max(0, 15 - (s + 1)) * 6
        if s < 15:
            a(f"s_waitcnt vmcnt({min(63, ring_after + kv_out)})")
        a("s_barrier")
        kv_out += issue_kv(groups[s])
    a("s_waitcnt vmcnt(0)")
    a("s_barrier")
    a("s_barrier")
    a("s_branch L_g2")

def gen_g2(a):
    a.label("L_g2")
    stamp(a, 4)
    a("s_cmp_lg_u32 s44, 0")
    a("s_cbranch_scc1 L_g_nosig")
    a(f"s_lshl_b32 s{T0}, s{S_MT}, 7")
    a(f"s_add_u32 s{T0}, s{T0}, {WS_FL}")
    a(f"v_mov_b32 v3, s{T0}")
    a("v_mov_b32 v4, 1")
    a("s_mov_b64 exec, 1")
    a(f"global_atomic_add v3, v4, s[{S_WS}:{S_WS+1}] sc1")
    a("s_mov_b64 exec, -1")
    a.label("L_g_nosig")
    ACC = 64; AFR = 16; WF = 40
    WO = 128
    make_srd(a, 48, S_WD, 1792 * 512 * 2)
    make_srd(a, 52, S_WO, 512 * 512 * 2)
    make_srd(a, 56, S_OUT, 2048 * 512 * 2)
    a("v_lshlrev_b32 v3, 7, v1")
    a("s_lshr_b32 s64, s2, 3")
    a(f"s_mul_i32 s65, s64, 57344")
    a(f"s_lshl_b32 s{T0}, s44, 14")
    a(f"s_add_u32 s65, s65, s{T0}")
    a("buffer_load_dword v14, v3, s[48:51], s65 offen")
    a("s_add_u32 s65, s65, 8192")
    a("s_cmp_eq_u32 s44, 3")
    a("s_cbranch_scc1 L_g_pfo")
    a("buffer_load_dword v15, v3, s[48:51], s65 offen")
    a("s_branch L_g_pfd")
    a.label("L_g_pfo")
    a("s_lshl_b32 s65, s64, 14")
    a("buffer_load_dword v15, v3, s[52:55], s65 offen")
    a("s_add_u32 s65, s65, 8192")
    a("buffer_load_dword v14, v3, s[52:55], s65 offen")
    a.label("L_g_pfd")
    a("v_lshrrev_b32 v3, 3, v1")
    a("v_bfe_u32 v4, v1, 4, 1")
    a("v_lshlrev_b32 v4, 2, v4")
    a("v_and_b32 v5, 7, v1")
    a("v_xor_b32 v5, v5, v4")
    a("v_lshlrev_b32 v5, 4, v5")
    a("v_lshl_add_u32 v5, v3, 10, v5")
    a(f"s_lshl_b32 s{T0}, s{S_CT}, 7")
    a(f"v_add_u32 v5, s{T0}, v5")
    a("v_add_u32 v8, 0x2000, v5")
    a("v_lshrrev_b32 v3, 4, v1")
    a("v_bfe_u32 v4, v1, 2, 2")
    a("v_lshrrev_b32 v6, 1, v3")
    a("v_lshl_add_u32 v6, v6, 3, v4")
    a("v_lshlrev_b32 v6, 7, v6")
    a("v_lshrrev_b32 v4, 1, v4")
    a("v_lshl_add_u32 v6, v4, 6, v6")
    a("v_and_b32 v3, 1, v3")
    a("v_lshl_add_u32 v6, v3, 5, v6")
    a("v_and_b32 v3, 1, v1")
    a("v_lshl_add_u32 v6, v3, 4, v6")
    a("v_bfe_u32 v3, v1, 1, 1")
    a("v_lshl_add_u32 v6, v3, 3, v6")
    a(f"s_mul_i32 s46, s44, {GS_W}")
    a(f"s_add_u32 s46, s46, {GS}")
    a("v_add_u32 v6, s46, v6")
    a("v_xor_b32 v7, 64, v6")
    a(f"v_add_u32 v9, {144*1024}, v2")
    for i in range(64):
        a(f"v_mov_b32 v{ACC+i}, 0")
    a(f"s_lshl_b32 s{T0}, s{S_TP}, 8")
    a(f"s_add_u32 s{T0}, s{T0}, {WS_G}")
    a("v_and_b32 v3, 31, v1")
    a("v_lshlrev_b32 v3, 2, v3")
    a(f"buffer_load_dword v12, v3, s[{SRD_WS}:{SRD_WS+3}], s{T0} offen sc1")
    a(f"buffer_load_dword v13, v3, s[{SRD_WS}:{SRD_WS+3}], s{T0} offen offset:128 sc1")
    a(f"s_mul_i32 s64, s44, {28*16384}")
    a(f"s_lshl_b32 s{T0}, s{S_TP}, 1")
    a(f"s_mul_i32 s65, s{T0}, 144")
    a("s_mov_b32 s72, s65")
    a(f"s_mul_i32 s{T1}, s44, 28")
    a(f"s_add_u32 s65, s65, s{T1}")
    a("s_lshl_b32 s65, s65, 10")
    a(f"s_add_u32 s65, s65, {WS_AF}")
    a(f"s_lshr_b32 s{T0}, s{S_TP}, 1")
    a(f"s_lshl_b32 s{T0}, s{T0}, 7")
    a(f"s_add_u32 s73, s{T0}, {WS_FL}")
    a("v_mov_b32 v3, s73")
    poll(a, "L_h", S_WS, 3, 4, 16, sleep=16)
    stamp(a, 5)
    def issue(sl, srd):
        a(f"s_add_u32 m0, s46, {sl*2048}")
        a("s_nop 0")
        a(f"buffer_load_dwordx4 v5, s[{srd}:{srd+3}], s64 offen lds")
        a(f"s_add_u32 m0, s46, {sl*2048+1024}")
        a("s_nop 0")
        a(f"buffer_load_dwordx4 v8, s[{srd}:{srd+3}], s64 offen lds")
        a("s_add_u32 s64, s64, 16384")
    def issue_act(sl):
        r = AFR + sl * 8
        a(f"buffer_load_dwordx4 v[{r}:{r+3}], v2, s[{SRD_WS}:{SRD_WS+3}], s65 offen sc1")
        a(f"buffer_load_dwordx4 v[{r+4}:{r+7}], v9, s[{SRD_WS}:{SRD_WS+3}], s65 offen sc1")
        a("s_add_u32 s65, s65, 1024")
    def trreads(sl, dst):
        a(f"ds_read_b64_tr_b16 v[{dst}:{dst+1}], v6 offset:{sl*2048}")
        a(f"ds_read_b64_tr_b16 v[{dst+2}:{dst+3}], v6 offset:{sl*2048+512}")
        a(f"ds_read_b64_tr_b16 v[{dst+4}:{dst+5}], v7 offset:{sl*2048}")
        a(f"ds_read_b64_tr_b16 v[{dst+6}:{dst+7}], v7 offset:{sl*2048+512}")
    def mf4(w, r):
        for t in range(2):
            for c in range(2):
                d = ACC + (t * 2 + c) * 16
                a(f"v_mfma_f32_32x32x16_bf16 v[{d}:{d+15}], v[{w+4*c}:{w+4*c+3}], v[{r+4*t}:{r+4*t+3}], v[{d}:{d+15}]")
    for sl in range(3):
        issue(sl, 48); issue_act(sl)
    a("s_mov_b32 s71, 0")
    a.label("L_d_loop")
    for sl in range(3):
        a("s_waitcnt vmcnt(8)")
        trreads(sl, WF)
        a("s_waitcnt lgkmcnt(0)")
        mf4(WF, AFR + sl * 8)
        issue(sl, 48); issue_act(sl)
    a("s_add_u32 s71, s71, 1")
    a("s_cmp_lt_u32 s71, 8")
    a("s_cbranch_scc1 L_d_loop")
    a("s_waitcnt vmcnt(8)")
    trreads(0, WF)
    a("s_waitcnt lgkmcnt(0)")
    mf4(WF, AFR)
    issue(0, 48); issue_act(0)
    for k, sl in enumerate((1, 2, 0)):
        a(f"s_waitcnt vmcnt({8-4*k})")
        trreads(sl, WF)
        a("s_waitcnt lgkmcnt(0)")
        mf4(WF, AFR + sl * 8)
    stamp(a, 6)
    a(f"s_mul_i32 s64, s44, {8*16384}")
    WOR = [128, 136, 144, 152, 16, 24, 32, 40]
    for sl in range(3):
        issue(sl, 52)
    a("v_sub_f32 v12, 1.0, v12")
    a("v_sub_f32 v13, 1.0, v13")
    a("s_nop 7")
    for t in range(2):
        for i in range(32):
            a(f"v_mul_f32 v{ACC+t*32+i}, v{ACC+t*32+i}, v{12+t}")
    for k in range(8):
        sl = k % 3
        left = min(8, k + 3) - k - 1
        a(f"s_waitcnt vmcnt({2*left})")
        trreads(sl, WOR[k])
        a("s_waitcnt lgkmcnt(0)")
        if k + 3 < 8:
            issue(sl, 52)
    a("s_barrier")
    a("s_barrier")
    a("s_barrier")
    a("s_add_u32 s73, s73, 2048")
    a("v_mov_b32 v3, s73")
    a(f"s_lshl_b32 s{T1}, s44, 3")
    a(f"s_add_u32 s65, s72, s{T1}")
    a("s_add_u32 s65, s65, 112")
    a("s_lshl_b32 s65, s65, 10")
    a(f"s_add_u32 s65, s65, {WS_AF}")
    poll(a, "L_o", S_WS, 3, 4, 16)
    stamp(a, 7)
    AR = [48, 56, 8]
    a("v_mov_b32 v160, v9")
    def issue_o(k):
        r = AR[k % 3]
        a(f"buffer_load_dwordx4 v[{r}:{r+3}], v2, s[{SRD_WS}:{SRD_WS+3}], s65 offen offset:{(k%4)*1024} sc1")
        a(f"buffer_load_dwordx4 v[{r+4}:{r+7}], v160, s[{SRD_WS}:{SRD_WS+3}], s65 offen offset:{(k%4)*1024} sc1")
        if k == 3: a("s_add_u32 s65, s65, 4096")
    for k in range(3): issue_o(k)
    for k in range(8):
        left = min(8, k + 3) - k - 1
        a(f"s_waitcnt vmcnt({2*left})")
        mf4(WOR[k], AR[k % 3])
        if k + 3 < 8: issue_o(k + 3)
    stamp(a, 8)
    a("s_lshl_b32 s65, s44, 14")
    a("v_add_u32 v3, s65, v2")
    a("s_nop 15")
    for i in range(16):
        a(f"ds_write_b128 v3, v[{ACC+4*i}:{ACC+4*i+3}] offset:{i*1024}")
    a("s_lshl_b32 s65, s44, 12")
    a("v_add_u32 v3, s65, v2")
    a("s_waitcnt lgkmcnt(0)")
    a("s_barrier")
    for w in range(4):
        for q in range(4):
            a(f"ds_read_b128 v[{ACC+16*w+4*q}:{ACC+16*w+4*q+3}], v3 offset:{w*16384+q*1024}")
    a("s_lshr_b32 s65, s44, 1")
    a("s_lshl_b32 s65, s65, 5")
    a(f"s_lshl_b32 s{T0}, s{S_TP}, 6")
    a(f"s_add_u32 s65, s65, s{T0}")
    a("s_lshl_b32 s65, s65, 10")
    a(f"s_lshl_b32 s{T0}, s{S_CT}, 7")
    a(f"s_add_u32 s65, s65, s{T0}")
    a(f"s_and_b32 s{T0}, s44, 1")
    a(f"s_lshl_b32 s{T0}, s{T0}, 6")
    a(f"s_add_u32 s65, s65, s{T0}")
    a("v_and_b32 v3, 31, v1")
    a("v_lshlrev_b32 v3, 10, v3")
    a("v_lshrrev_b32 v4, 5, v1")
    a("v_lshl_add_u32 v3, v4, 4, v3")
    a("s_waitcnt lgkmcnt(0)")
    for w in range(1, 4):
        for i in range(16):
            a(f"v_add_f32 v{ACC+i}, v{ACC+i}, v{ACC+16*w+i}")
    for j in range(8):
        a(f"v_cvt_pk_bf16_f32 v{ACC+j}, v{ACC+2*j}, v{ACC+2*j+1}")
    a(f"buffer_store_dwordx4 v[{ACC}:{ACC+3}], v3, s[56:59], s65 offen")
    a(f"buffer_store_dwordx4 v[{ACC+4}:{ACC+7}], v3, s[56:59], s65 offen offset:32")
    stamp(a, 9)

def main(out):
    a = Asm()
    gen(a)
    txt = HEADER
    txt += f"; @launch grid=(256,1,1) block=(768,1,1) lds={LDS}\n"
    txt += '.amdgcn_target "amdgcn-amd-amdhsa--gfx950"\n.text\n' + a.text()
    txt += '.section .rodata,"a"\n'
    txt += kernel_desc(KN, 168)
    open(out, "w").write(txt)

if __name__ == "__main__":
    if "stamps" in sys.argv: STAMPS = True
    FLAGS.update(sys.argv[2:])
    main(sys.argv[1] if len(sys.argv) > 1 else f"cdna_kernels/{NAME}.s")
```

```python
import sys, math
from common import *

WS_KF = 0
WS_VF = 65536
WS_G = 131072
WS_FL = 0x30000
WS_QF = 0x40000
WS_AF = 0x400000
WS_ST = 0x2000000
WS_BYTES = 0x10000000
LOG2E = 1.4426950408889634
QSCALE = 0.25 * LOG2E
STAMPS = False
FLAGS = set()
KN = NAME + "_kernel"

SLOT = 24832; NS = 5; NPRE = 3
O_UP = 7296; O_Q = 14464; O_X = 16640
PA = NS * SLOT; PA_W = 9472
L_K = 0; L_V = 65536
GS = 131072; GS_W = 6144
QX = 131072
MISC = 162304
OX = 131072; OXS = 4608
M_CNT, M_FIN, M_RDY, M_GD, M_CD = MISC, MISC + 16, MISC + 32, MISC + 48, MISC + 52
LDS = 163840
SPIN = 200000

S_X, S_WQ, S_WK, S_WV, S_WO = 4, 6, 8, 10, 12
S_WG, S_WU, S_WD, S_GW = 16, 18, 20, 22
S_OUT, S_DBG, S_WS = 24, 26, 28
S_W, S_MT, S_FS, S_TP, S_CT = 30, 31, 32, 33, 34
T0, T1, T2 = 14, 15, 35
SRD_X, SRD_WS = 36, 40

def stamp(a, idx, sreg=None):
    if not STAMPS: return
    a("s_memtime s[90:91]")
    a("s_memrealtime s[92:93]")
    a(f"s_lshl_b32 s94, s2, 4")
    a(f"s_add_u32 s94, s94, s{S_W}")
    a(f"s_lshl_b32 s94, s94, 8")
    a(f"s_add_u32 s94, s94, {WS_ST + idx*8}")
    if sreg is not None:
        a(f"s_lshl_b32 s95, s{sreg}, 3")
        a("s_add_u32 s94, s94, s95")
    a("s_waitcnt lgkmcnt(0)")
    a("v_mov_b32 v164, s90")
    a("v_mov_b32 v165, s92")
    a("v_mov_b32 v166, 0")
    a(f"buffer_store_dwordx2 v[164:165], v166, s[{SRD_WS}:{SRD_WS+3}], s94 offen")

def tr_lane(a, v_mat, v_row, v_colb, t):
    a(f"v_lshrrev_b32 v{v_mat}, 4, v1")
    a(f"v_bfe_u32 v{v_row}, v1, 2, 2")
    a(f"v_and_b32 v{t}, 1, v1")
    a(f"v_lshlrev_b32 v{v_colb}, 4, v{t}")
    a(f"v_bfe_u32 v{t}, v1, 1, 1")
    a(f"v_lshl_or_b32 v{v_colb}, v{t}, 3, v{v_colb}")
    a(f"v_lshrrev_b32 v{t}, 1, v{v_mat}")
    a(f"v_lshl_add_u32 v{v_row}, v{t}, 3, v{v_row}")
    a(f"v_and_b32 v{v_mat}, 1, v{v_mat}")

def poll(a, nm, base_pair, voff_reg, vtmp, target, nwords=1, sleep=4):
    a(f"s_mov_b64 exec, {(1 << nwords) - 1}")
    a(f"s_mov_b32 s{T2}, 0")
    a.label(f"{nm}_poll")
    a(f"global_load_dword v{vtmp}, v{voff_reg}, s[{base_pair}:{base_pair+1}] sc1")
    a(f"s_add_u32 s{T2}, s{T2}, 1")
    a("s_waitcnt vmcnt(0)")
    a(f"v_cmp_gt_u32 vcc, {target}, v{vtmp}")
    a(f"s_cmp_ge_u32 s{T2}, {SPIN}")
    a(f"s_cbranch_scc1 {nm}_pdone")
    a("s_nop 1")
    a(f"s_cbranch_vccz {nm}_pdone")
    a(f"s_sleep {sleep}")
    a(f"s_branch {nm}_poll")
    a.label(f"{nm}_pdone")
    a("s_mov_b64 exec, -1")

def kv_pieces():
    last = {s % NS: s for s in range(16)}
    groups = {}
    for i in range(128):
        lo, hi = i * 1024, i * 1024 + 1023
        need = 11
        for sl in range(NS):
            if lo < (sl + 1) * SLOT and hi >= sl * SLOT:
                need = max(need, last[sl])
        groups.setdefault(need, []).append(i)
    return groups

def gen(a):
    name = KN
    kernel_begin(a, name)
    a("s_cmp_ge_u32 s2, 256")
    a(f"s_cbranch_scc1 L_exit")
    a("s_load_dwordx8 s[4:11], s[0:1], 0")
    a("s_load_dwordx2 s[12:13], s[0:1], 32")
    a("s_load_dwordx8 s[16:23], s[0:1], 48")
    a("s_load_dwordx4 s[24:27], s[0:1], 80")
    a("s_load_dwordx2 s[28:29], s[0:1], 96")
    a("v_lshrrev_b32 v2, 6, v0")
    a("v_and_b32 v1, 63, v0")
    a(f"v_readfirstlane_b32 s{S_W}, v2")
    a(f"s_and_b32 s{T0}, s2, 7")
    a(f"s_lshr_b32 s{T1}, s2, 3")
    a(f"s_and_b32 s{S_MT}, s{T0}, 1")
    a(f"s_lshl_b32 s{S_MT}, s{S_MT}, 3")
    a(f"s_and_b32 s{S_FS}, s{T1}, 7")
    a(f"s_add_u32 s{S_MT}, s{S_MT}, s{S_FS}")
    a(f"s_lshr_b32 s{S_FS}, s{T0}, 1")
    a(f"s_lshl_b32 s{S_FS}, s{S_FS}, 2")
    a(f"s_lshr_b32 s{T2}, s{T1}, 3")
    a(f"s_add_u32 s{S_FS}, s{S_FS}, s{T2}")
    a(f"s_lshl_b32 s{S_TP}, s{T0}, 2")
    a(f"s_and_b32 s{T2}, s{T1}, 3")
    a(f"s_add_u32 s{S_TP}, s{S_TP}, s{T2}")
    a(f"s_lshr_b32 s{S_CT}, s{T1}, 2")
    a("v_lshlrev_b32 v2, 4, v1")
    a("s_waitcnt lgkmcnt(0)")
    make_srd(a, SRD_X, S_X, 2048 * 512 * 2)
    make_srd(a, SRD_WS, S_WS, WS_BYTES)
    stamp(a, 0)
    a(f"s_cmp_lt_u32 s{S_W}, 8")
    a("s_cbranch_scc1 L_role_c")
    gen_g1(a)
    gen_c(a)
    gen_g2(a)
    a.label("L_exit")
    a("s_endpgm")
    a.label("L_code_end")

def gen_c(a):
    a.label("L_role_c")
    a(f"s_and_b32 s70, s{S_W}, 3")
    a(f"s_lshr_b32 s71, s{S_W}, 2")
    a(f"s_lshl_b32 s72, s{S_MT}, 2")
    a("s_add_u32 s72, s72, s70")
    a("s_mul_i32 s78, s72, 144")
    a(f"s_lshl_b32 s73, s{S_FS}, 1")
    a("s_add_u32 s78, s78, s73")
    a("s_add_u32 s78, s78, 112")
    a("s_lshl_b32 s78, s78, 10")
    a(f"s_add_u32 s78, s78, {WS_AF}")
    a("s_lshl_b32 s73, s71, 10")
    a("s_add_u32 s73, s73, s78")
    for i in range(4):
        a(f"v_mov_b32 v{8+i}, -1")
    a(f"buffer_store_dwordx4 v[8:11], v2, s[{SRD_WS}:{SRD_WS+3}], s73 offen sc1")
    tr_lane(a, 3, 4, 5, 6)
    a(f"s_and_b32 s60, s{S_W}, 1")
    a(f"s_lshr_b32 s61, s{S_W}, 1")
    a("v_and_b32 v6, 31, v1")
    a("v_bfe_u32 v60, v1, 2, 2")
    a("v_lshrrev_b32 v61, 5, v1")
    a("v_xor_b32 v61, v61, v60")
    a("v_xor_b32 v60, 2, v61")
    a("v_lshlrev_b32 v6, 6, v6")
    a(f"s_lshl_b32 s{T0}, s60, 12")
    a(f"s_add_u32 s{T0}, s{T0}, {O_X}")
    a(f"v_add_u32 v6, s{T0}, v6")
    a("v_lshl_add_u32 v53, v61, 4, v6")
    a("v_lshl_add_u32 v54, v60, 4, v6")
    a(f"v_mul_u32_u24 v6, {O_UP}, v3")
    a("v_mul_u32_u24 v60, 224, v4")
    a("v_add3_u32 v6, v6, v60, v5")
    a(f"s_lshl_b32 s{T0}, s61, 6")
    a(f"v_add_u32 v55, s{T0}, v6")
    a("v_add_u32 v56, 32, v55")
    a(f"s_mov_b32 s{T0}, {4*224}")
    a("s_cmp_eq_u32 s61, 3")
    a("s_cbranch_scc0 L_c_u1done")
    a("v_lshlrev_b32 v6, 6, v4")
    a("v_lshl_add_u32 v6, v3, 5, v6")
    a("v_add_u32 v6, v6, v5")
    a(f"v_add_u32 v56, {O_Q}, v6")
    a(f"s_mov_b32 s{T0}, {4*64}")
    a.label("L_c_u1done")
    a(f"s_lshl_b32 s{T1}, s{T0}, 2")
    a(f"v_add_u32 v57, s{T0}, v56")
    a(f"v_add_u32 v58, s{T1}, v56")
    a(f"v_add_u32 v59, s{T0}, v58")
    a(f"s_cmp_eq_u32 s{S_W}, 3")
    a("s_cselect_b32 s69, 11, 99")
    XA = (8, 12); WA = (16, 20)
    XB = (28, 32); WB = (36, 40)
    def rd_list(ks, X, W, c_x, c_w0, c_w1a, c_w1b):
        return [f"ds_read_b128 v[{X[0]}:{X[0]+3}], v{c_x}",
                f"ds_read_b64_tr_b16 v[{W[0]}:{W[0]+1}], v{c_w0} offset:{(16*ks)*224}",
                f"ds_read_b64_tr_b16 v[{W[0]+2}:{W[0]+3}], v{c_w0} offset:{(16*ks+4)*224}",
                f"ds_read_b64_tr_b16 v[{W[1]}:{W[1]+1}], v{c_w1a}",
                f"ds_read_b64_tr_b16 v[{W[1]+2}:{W[1]+3}], v{c_w1b}",
                f"ds_read_b128 v[{X[1]}:{X[1]+3}], v{c_x} offset:2048"]
    def mf_rd(X, W, rds, first=False):
        rds = list(rds)
        for t in range(2):
            for u in range(2):
                d = 64 + (t * 2 + u) * 16
                c = "0" if first else f"v[{d}:{d+15}]"
                a(f"v_mfma_f32_32x32x16_bf16 v[{d}:{d+15}], v[{W[u]}:{W[u]+3}], v[{X[t]}:{X[t]+3}], {c}")
                for _ in range(3):
                    if rds: a(rds.pop(0))
    def cur(slot):
        for d, b in ((128, 53), (129, 55), (130, 56), (131, 57), (132, 54), (133, 58), (134, 59)):
            a(f"v_add_u32 v{d}, s{slot}, v{b}")
    RA = rd_list(0, XA, WA, 128, 129, 130, 131)
    RB = rd_list(1, XB, WB, 132, 129, 133, 134)
    a(f"s_mov_b32 s63, {SLOT}")
    a("s_mov_b32 s64, 0")
    a("s_barrier")
    stamp(a, 2)
    for r in rd_list(0, XA, WA, 53, 55, 56, 57): a(r)
    a("s_waitcnt lgkmcnt(0)")
    mf_rd(XA, WA, rd_list(1, XB, WB, 54, 55, 58, 59), first=True)
    a("s_branch L_c_mid")
    a.label("L_c_loop")
    a("s_waitcnt lgkmcnt(0)")
    mf_rd(XA, WA, RB)
    a.label("L_c_mid")
    cur(63)
    a("s_cmp_eq_u32 s64, s69")
    a("s_cbranch_scc1 L_c_side")
    a.label("L_c_noside")
    a("s_waitcnt lgkmcnt(0)")
    a("s_barrier")
    if "stagest" in FLAGS: stamp(a, 16, 64)
    mf_rd(XB, WB, RA)
    a(f"s_add_u32 s63, s63, {SLOT}")
    a(f"s_cmp_eq_u32 s63, {NS*SLOT}")
    a("s_cselect_b32 s63, 0, s63")
    a("s_add_u32 s64, s64, 1")
    a("s_cmp_lt_u32 s64, 16")
    a("s_cbranch_scc1 L_c_loop")
    a("s_branch L_c_p1end")
    a.label("L_c_side")
    a.label("L_c_side10")
    a("s_mov_b32 s69, 99")
    a("v_lshlrev_b32 v6, 7, v1")
    poll(a, "L_kv", S_DBG, 6, 7, 64, nwords=2, sleep=32)
    a("s_branch L_c_noside")
    a.label("L_c_p1end")
    stamp(a, 3)
    a("s_waitcnt lgkmcnt(0)")
    a("s_nop 7")
    a(f"s_lshl_b32 s66, s{S_MT}, 2")
    a("s_lshl_b32 s65, s60, 1")
    a("s_add_u32 s66, s66, s65")
    def h_tile(t, u):
        d = 64 + (t * 2 + u) * 16
        for j in range(8):
            a(f"v_mul_f32 v{d+j}, v{d+j}, v{d+8+j}")
        for j in range(4):
            a(f"v_cvt_pk_bf16_f32 v{d+j}, v{d+2*j}, v{d+2*j+1}")
        a(f"buffer_store_dwordx4 v[{d}:{d+3}], v2, s[{SRD_WS}:{SRD_WS+3}], s{67+t} offen offset:{1024*u} sc1")
    a("s_mul_i32 s67, s66, 144")
    a(f"s_mul_i32 s65, s{S_FS}, 7")
    a("s_add_u32 s67, s67, s65")
    a("s_lshl_b32 s65, s61, 1")
    a("s_add_u32 s67, s67, s65")
    a("s_lshl_b32 s67, s67, 10")
    a(f"s_add_u32 s67, s67, {WS_AF}")
    a(f"s_add_u32 s68, s67, {144*1024}")
    h_tile(0, 0)
    h_tile(1, 0)
    a("s_cmp_eq_u32 s61, 3")
    a("s_cbranch_scc1 L_c_qep")
    h_tile(0, 1)
    h_tile(1, 1)
    a("s_branch L_c_epdone")
    a.label("L_c_qep")
    a(f"s_lshl_b32 s65, s60, 12")
    a(f"s_add_u32 s65, s65, {QX}")
    a("v_add_u32 v6, s65, v2")
    for t in range(2):
        d = 64 + (t * 2 + 1) * 16
        for j in range(16):
            a(f"v_mul_f32 v{d+j}, {f32hex(QSCALE)}, v{d+j}")
        for j in range(8):
            a(f"v_cvt_pk_bf16_f32 v{d+j}, v{d+2*j}, v{d+2*j+1}")
        a(f"ds_write_b128 v6, v[{d}:{d+3}] offset:{t*2048}")
        a(f"ds_write_b128 v6, v[{d+4}:{d+7}] offset:{t*2048+1024}")
    a.label("L_c_epdone")
    SA = (32, 48); SB = (64, 80); OA = 96; OB = 112
    QA = 4; QB = 8; KF = (12, 16); VF = (20, 128)
    IDX = 28; AK = 29; AV = 30; VG = 31
    AKN = 136; AVN = 137; VB = 138; MA = 139; ONE = 140; NX = 141
    a("s_lshl_b32 s65, s72, 7")
    a(f"s_add_u32 s65, s65, {WS_G}")
    a("v_and_b32 v3, 31, v1")
    a("v_lshlrev_b32 v3, 2, v3")
    a(f"buffer_load_dword v{VG}, v3, s[{SRD_WS}:{SRD_WS+3}], s65 offen sc1")
    a("s_lshl_b32 s65, s71, 12")
    a(f"v_add_u32 v{AK}, s65, v2")
    a("v_lshrrev_b32 v3, 5, v1")
    a("v_and_b32 v32, 15, v1")
    a("v_lshl_add_u32 v3, v3, 4, v32")
    a("v_lshlrev_b32 v3, 4, v3")
    a(f"v_add_u32 v{VB}, {L_V}, v3")
    a(f"v_add_u32 v{AV}, s65, v{VB}")
    a(f"v_mov_b32 v{IDX}, 0xdddddddd")
    a("v_and_b32 v3, 27, v1")
    a("v_cmp_eq_u32 vcc, 16, v3")
    a("v_mov_b32 v3, 0x3f803f80")
    a("s_lshl_b32 s65, s70, 2")
    a("v_cndmask_b32 v3, 0, v3, vcc")
    for b in VF:
        for i in range(8):
            a(f"v_mov_b32 v{b+i}, v3")
    a("s_mov_b32 s74, 0x0000ffff")
    a("s_mov_b32 s75, 0x0000ffff")
    a(f"s_add_u32 s65, s65, {MISC}")
    a(f"v_mov_b32 v{MA}, s65")
    a(f"v_mov_b32 v{ONE}, 1")
    a("s_lshl_b32 s65, s70, 11")
    a(f"s_add_u32 s65, s65, {QX}")
    a("v_add_u32 v3, s65, v2")
    a(f"v_mov_b32 v33, {M_CD}")
    a("s_waitcnt vmcnt(0) lgkmcnt(0)")
    for i in range(16):
        a(f"v_mov_b32 v{OA+i}, 0")
        a(f"v_mov_b32 v{OB+i}, 0")
    for i in range(8, 16):
        a(f"v_mov_b32 v{SB[1]+i}, 0")
    a("s_barrier")
    stamp(a, 4)
    a(f"ds_read_b128 v[{QA}:{QA+3}], v3")
    a(f"ds_read_b128 v[{KF[0]}:{KF[0]+3}], v{AK}")
    a(f"ds_read_b128 v[{QB}:{QB+3}], v3 offset:1024")
    a(f"ds_read_b128 v[{KF[1]}:{KF[1]+3}], v{AK} offset:1024")
    a("s_mov_b64 exec, s[74:75]")
    a(f"ds_read_b128 v[{VF[0]}:{VF[0]+3}], v{AV}")
    a(f"ds_read_b128 v[{VF[0]+4}:{VF[0]+7}], v{AV} offset:512")
    a("s_mov_b64 exec, 1")
    a(f"ds_add_u32 v33, v{ONE}")
    a("s_mov_b64 exec, -1")
    a("s_waitcnt lgkmcnt(0)")
    if "dumpq" in FLAGS:
        a("s_lshl_b32 s65, s72, 5")
        a(f"s_lshl_b32 s73, s{S_FS}, 1")
        a("s_add_u32 s65, s65, s73")
        a("s_lshl_b32 s65, s65, 10")
        a(f"s_add_u32 s65, s65, {WS_QF}")
        a(f"buffer_store_dwordx4 v[{QA}:{QA+3}], v2, s[{SRD_WS}:{SRD_WS+3}], s65 offen")
        a(f"buffer_store_dwordx4 v[{QB}:{QB+3}], v2, s[{SRD_WS}:{SRD_WS+3}], s65 offen offset:1024")
    a(f"v_mfma_f32_32x32x16_bf16 v[{SA[0]}:{SA[0]+15}], v[{KF[0]}:{KF[0]+3}], v[{QA}:{QA+3}], 0")
    a(f"v_mfma_f32_32x32x16_bf16 v[{SB[0]}:{SB[0]+15}], v[{KF[0]}:{KF[0]+3}], v[{QB}:{QB+3}], 0")
    a("s_nop 15")
    def smf(O, V, P):
        a(f"v_smfmac_f32_32x32x32_bf16 v[{O}:{O+15}], v[{V}:{V+3}], v[{P}:{P+7}], v{IDX}")
    UN = 4
    def tile(t):
        c = t & 1; n = c ^ 1
        sa, sb = SA[c], SB[c]
        def E(S, i): a(f"v_exp_f32 v{S+i}, v{S+i}")
        a("s_waitcnt lgkmcnt(0)")
        if t == 1:
            a(f"v_readfirstlane_b32 s73, v{NX}")
        if t + 2 < UN: a(f"ds_read_b128 v[{KF[c]}:{KF[c]+3}], v{AK} offset:{(t+2)*1024}")
        else:          a(f"ds_read_b128 v[{KF[c]}:{KF[c]+3}], v{AKN} offset:{(t+2-UN)*1024}")
        E(sa, 0); E(sa, 1)
        smf(OB, VF[n] + 4, SB[n] + 8)
        a("s_mov_b64 exec, s[74:75]")
        av, vo = (AV, (t + 1) * 1024) if t + 1 < UN else (AVN, 0)
        a(f"ds_read_b128 v[{VF[n]}:{VF[n]+3}], v{av} offset:{vo}")
        a(f"ds_read_b128 v[{VF[n]+4}:{VF[n]+7}], v{av} offset:{vo+512}")
        if t == 0:
            a("s_mov_b64 exec, 1")
            a(f"ds_add_rtn_u32 v{NX}, v{MA}, v{ONE}")
        a("s_mov_b64 exec, -1")
        if t == 1:
            a("s_lshl_b32 s65, s73, 12")
        for i in range(2, 6): E(sa, i)
        a(f"v_mfma_f32_32x32x16_bf16 v[{SA[n]}:{SA[n]+15}], v[{KF[n]}:{KF[n]+3}], v[{QA}:{QA+3}], 0")
        if t == 1:
            a(f"v_add_u32 v{AKN}, s65, v2")
            a(f"v_add_u32 v{AVN}, s65, v{VB}")
        for i in range(6, 11): E(sa, i)
        smf(OA, VF[c], sa)
        for i in range(11, 16): E(sa, i)
        E(sb, 0); E(sb, 1)
        smf(OA, VF[c] + 4, sa + 8)
        for i in range(2, 6): E(sb, i)
        a(f"v_mfma_f32_32x32x16_bf16 v[{SB[n]}:{SB[n]+15}], v[{KF[n]}:{KF[n]+3}], v[{QB}:{QB+3}], 0")
        for i in range(6, 11): E(sb, i)
        smf(OB, VF[c], sb)
        if t == UN - 1:
            a(f"v_mov_b32 v{AK}, v{AKN}")
            a(f"v_mov_b32 v{AV}, v{AVN}")
        for i in range(11, 16): E(sb, i)
    stamp(a, 6)
    a.label("L_a_loop")
    for t in range(UN):
        tile(t)
    a(f"s_cmp_lt_u32 s73, {64//UN}")
    a("s_cbranch_scc1 L_a_loop")
    a("s_mov_b64 exec, 1")
    a(f"ds_add_rtn_u32 v{NX}, v{MA}, v{ONE} offset:16")
    a(f"v_mov_b32 v3, {M_GD}")
    a("s_mov_b64 exec, -1")
    smf(OB, VF[1] + 4, SB[1] + 8)
    a(f"s_mul_i32 s65, s70, {OXS}")
    a(f"s_add_u32 s65, s65, {OX}")
    a("v_add_u32 v32, s65, v2")
    a("v_lshrrev_b32 v33, 1, v2")
    a("v_add_u32 v33, s65, v33")
    a("s_waitcnt lgkmcnt(0)")
    a(f"v_readfirstlane_b32 s73, v{NX}")
    stamp(a, 5)
    a("s_nop 3")
    a("s_cmp_lg_u32 s73, 0")
    a("s_cbranch_scc1 L_a_second")
    a("s_mov_b64 exec, 1")
    a("s_mov_b32 s65, 0")
    a.label("L_a_gd")
    a("ds_read_b32 v34, v3")
    a("s_add_u32 s65, s65, 1")
    a("s_waitcnt lgkmcnt(0)")
    a("v_cmp_gt_u32 vcc, 4, v34")
    a(f"s_cmp_ge_u32 s65, {SPIN*4}")
    a("s_cbranch_scc1 L_a_gd2")
    a("s_nop 1")
    a("s_cbranch_vccnz L_a_gd")
    a.label("L_a_gd2")
    a("s_mov_b64 exec, -1")
    a(f"v_mov_b32 v{OA+9}, v{OB+8}")
    a(f"ds_write_b128 v32, v[{OA}:{OA+3}]")
    a(f"ds_write_b128 v32, v[{OA+4}:{OA+7}] offset:1024")
    a(f"ds_write_b128 v32, v[{OB}:{OB+3}] offset:2048")
    a(f"ds_write_b128 v32, v[{OB+4}:{OB+7}] offset:3072")
    a(f"ds_write_b64 v33, v[{OA+8}:{OA+9}] offset:4096")
    a("s_waitcnt lgkmcnt(0)")
    a("s_mov_b64 exec, 1")
    a(f"ds_write_b32 v{MA}, v{ONE} offset:32")
    a("s_endpgm")
    a.label("L_a_second")
    a("s_mov_b64 exec, 1")
    a("s_mov_b32 s65, 0")
    a.label("L_a_rdy")
    a(f"ds_read_b32 v34, v{MA} offset:32")
    a("s_add_u32 s65, s65, 1")
    a("s_waitcnt lgkmcnt(0)")
    a("v_cmp_eq_u32 vcc, 0, v34")
    a(f"s_cmp_ge_u32 s65, {SPIN*4}")
    a("s_cbranch_scc1 L_a_rdy2")
    a("s_nop 1")
    a("s_cbranch_vccnz L_a_rdy")
    a.label("L_a_rdy2")
    a("s_mov_b64 exec, -1")
    a("ds_read_b128 v[64:67], v32")
    a("ds_read_b128 v[68:71], v32 offset:1024")
    a("ds_read_b128 v[72:75], v32 offset:2048")
    a("ds_read_b128 v[76:79], v32 offset:3072")
    a("ds_read_b64 v[80:81], v33 offset:4096")
    a("s_mov_b32 s79, 0")
    a("s_waitcnt lgkmcnt(0)")
    for i in range(0, 8, 2):
        a(f"v_pk_add_f32 v[{OA+i}:{OA+i+1}], v[{OA+i}:{OA+i+1}], v[{64+i}:{65+i}]")
        a(f"v_pk_add_f32 v[{OB+i}:{OB+i+1}], v[{OB+i}:{OB+i+1}], v[{72+i}:{73+i}]")
    a(f"v_add_f32 v{OA+8}, v{OA+8}, v80")
    a(f"v_add_f32 v{OB+8}, v{OB+8}, v81")
    a.label("L_a_finloop")
    a(f"v_add_f32 v35, v{OA}, v{OA+1}")
    a(f"v_add_f32 v36, v{OA+2}, v{OA+3}")
    a(f"v_add_f32 v37, v{OA+4}, v{OA+5}")
    a(f"v_add_f32 v34, v{OA+6}, v{OA+7}")
    a("v_add_f32 v35, v35, v36")
    a("v_add_f32 v34, v34, v37")
    a("v_add_f32 v35, v35, v34")
    a(f"v_fma_f32 v35, v35, 0, v{OA+8}")
    a(f"v_cmp_nle_f32 vcc, {f32hex(2.0**-30)}, v35")
    a("s_mov_b64 s[76:77], vcc")
    a(f"v_cmp_nge_f32 vcc, {f32hex(2.0**30)}, v35")
    a("s_or_b64 s[76:77], s[76:77], vcc")
    a("s_cmp_lg_u64 s[76:77], 0")
    a("s_cbranch_scc1 L_a_fallback")
    a.label("L_a_fin")
    a(f"v_rcp_f32 v32, v{OA+8}")
    a("s_nop 0")
    a(f"v_mul_f32 v32, v32, v{VG}")
    for i in range(8):
        a(f"v_mul_f32 v{OA+i}, v{OA+i}, v32")
    for j in range(4):
        a(f"v_cvt_pk_bf16_f32 v{36+j}, v{OA+2*j}, v{OA+2*j+1}")
    for j in range(4):
        a(f"v_min_u32 v{36+j}, -2, v{36+j}")
    a(f"buffer_store_dwordx4 v[36:39], v2, s[{SRD_WS}:{SRD_WS+3}], s78 offen sc1")
    a("s_cmp_lg_u32 s79, 0")
    a("s_cbranch_scc1 L_a_done")
    a("s_mov_b32 s79, 1")
    a("s_add_u32 s78, s78, 1024")
    for i in range(9):
        a(f"v_mov_b32 v{OA+i}, v{OB+i}")
    for i in range(4):
        a(f"v_mov_b32 v{QA+i}, v{QB+i}")
    a("s_branch L_a_finloop")
    a.label("L_a_done")
    stamp(a, 7)
    a("s_endpgm")
    a.label("L_a_fallback")
    S = SA[1]; M = 3
    a(f"v_mov_b32 v{M}, 0xff800000")
    a(f"v_mov_b32 v{AK}, v2")
    a("s_mov_b32 s73, 0")
    a.label("L_fb1")
    a(f"ds_read_b128 v[{KF[0]}:{KF[0]+3}], v{AK}")
    a("s_waitcnt lgkmcnt(0)")
    a(f"v_mfma_f32_32x32x16_bf16 v[{S}:{S+15}], v[{KF[0]}:{KF[0]+3}], v[{QA}:{QA+3}], 0")
    a(f"v_add_u32 v{AK}, 1024, v{AK}")
    a("s_nop 15")
    for i in range(0, 16, 2):
        a(f"v_max3_f32 v{M}, v{M}, v{S+i}, v{S+i+1}")
    a("s_add_u32 s73, s73, 1")
    a("s_cmp_lt_u32 s73, 64")
    a("s_cbranch_scc1 L_fb1")
    a(f"v_mov_b32 v32, v{M}")
    a("s_nop 1")
    a(f"v_permlane32_swap_b32 v{M}, v32")
    a("s_nop 1")
    a(f"v_max_f32 v{M}, v{M}, v32")
    for i in range(16):
        a(f"v_mov_b32 v{OA+i}, 0")
    a(f"v_mov_b32 v{AK}, v2")
    a(f"v_mov_b32 v{AV}, v{VB}")
    a("s_mov_b32 s73, 0")
    a.label("L_fb2")
    a(f"ds_read_b128 v[{KF[0]}:{KF[0]+3}], v{AK}")
    a("s_mov_b64 exec, s[74:75]")
    a(f"ds_read_b128 v[{VF[0]}:{VF[0]+3}], v{AV}")
    a(f"ds_read_b128 v[{VF[0]+4}:{VF[0]+7}], v{AV} offset:512")
    a("s_mov_b64 exec, -1")
    a("s_waitcnt lgkmcnt(0)")
    a(f"v_mfma_f32_32x32x16_bf16 v[{S}:{S+15}], v[{KF[0]}:{KF[0]+3}], v[{QA}:{QA+3}], 0")
    a(f"v_add_u32 v{AK}, 1024, v{AK}")
    a(f"v_add_u32 v{AV}, 1024, v{AV}")
    a("s_nop 15")
    for i in range(16):
        a(f"v_sub_f32 v{S+i}, v{S+i}, v{M}")
    for i in range(16):
        a(f"v_exp_f32 v{S+i}, v{S+i}")
    a("s_nop 1")
    smf(OA, VF[0], S)
    smf(OA, VF[0] + 4, S + 8)
    a("s_nop 7")
    a("s_add_u32 s73, s73, 1")
    a("s_cmp_lt_u32 s73, 64")
    a("s_cbranch_scc1 L_fb2")
    a("s_nop 15")
    a("s_branch L_a_fin")

def gen_g1(a):
    a("s_setprio %d" % (1 if "prio1" in FLAGS else 3))
    GUB = 512 * 1792 * 2
    a(f"s_sub_u32 s44, s{S_W}, 8")
    a("s_lshl_b32 s45, s44, 10")
    a(f"s_mul_i32 s76, s44, {PA_W}")
    a(f"s_add_u32 s76, s76, {PA}")
    a(f"s_lshl_b32 s77, s{S_MT}, 3")
    a(f"s_lshr_b32 s{T0}, s{S_FS}, 2")
    a(f"s_lshl_b32 s{T0}, s{T0}, 1")
    a(f"s_add_u32 s77, s77, s{T0}")
    a(f"s_and_b32 s{T0}, s{S_FS}, 1")
    a(f"s_add_u32 s77, s77, s{T0}")
    a("s_mov_b32 s78, 0xffff")
    a("s_mov_b32 s79, 0xffff")
    a("s_cmp_ge_u32 s2, 128")
    a("s_cbranch_scc1 L_g_noA1")
    make_srd(a, 48, S_WK, 16384)
    make_srd(a, 52, S_WV, 16384)
    make_srd(a, 56, S_GW, 1024)
    a(f"s_lshl_b32 s{T0}, s44, 12")
    a("s_mov_b32 m0, s76")
    a("v_and_b32 v7, 31, v1")
    for i in range(4):
        a(f"buffer_load_dwordx4 v2, s[48:51], s{T0} offen offset:{1024*i} lds")
    a("s_add_u32 m0, s76, 4224")
    a("v_lshlrev_b32 v7, 10, v7")
    for i in range(4):
        a(f"buffer_load_dwordx4 v2, s[52:55], s{T0} offen offset:{1024*i} lds")
    a("s_add_u32 m0, s76, 8448")
    a(f"s_lshl_b32 s{T0}, s77, 14")
    a("buffer_load_dwordx4 v2, s[56:59], 0 offen lds")
    a(f"s_lshl_b32 s{T1}, s44, 8")
    a(f"s_add_u32 s{T0}, s{T0}, s{T1}")
    a("v_lshrrev_b32 v6, 5, v1")
    a("v_lshl_add_u32 v7, v6, 4, v7")
    a("s_mov_b64 exec, s[78:79]")
    for s_ in range(8):
        a(f"buffer_load_dwordx4 v[{96+4*s_}:{99+4*s_}], v7, s[{SRD_X}:{SRD_X+3}], s{T0} offen offset:{32*s_}")
    a("s_mov_b64 exec, -1")
    a.label("L_g_noA1")
    make_srd(a, 48, S_WG, GUB)
    make_srd(a, 52, S_WU, GUB)
    def gu_voff(vd, s_idx):
        a(f"s_lshl_b32 s{T0}, s{s_idx}, 6")
        a(f"v_add_u32 v{vd}, s{T0}, v1")
        a(f"v_mul_u32_u24 v4, 4682, v{vd}")
        a("v_lshrrev_b32 v4, 16, v4")
        a(f"v_lshlrev_b32 v{vd}, 4, v{vd}")
        a(f"v_mul_u32_u24 v4, {3584-224}, v4")
        a(f"s_mul_i32 s{T0}, s{S_FS}, 224")
        a(f"v_add3_u32 v{vd}, v{vd}, v4, s{T0}")
    gu_voff(8, 44)
    a("v_lshrrev_b32 v4, 2, v1")
    a("v_lshrrev_b32 v5, 4, v1")
    a("v_and_b32 v10, 3, v1")
    a("v_xor_b32 v10, v10, v5")
    a("v_lshlrev_b32 v10, 4, v10")
    a("v_lshl_add_u32 v10, v4, 10, v10")
    a(f"s_lshl_b32 s{T0}, s{S_MT}, 7")
    a(f"s_lshl_b32 s{T1}, s44, 4")
    a(f"s_add_u32 s{T0}, s{T0}, s{T1}")
    a(f"s_lshl_b32 s{T0}, s{T0}, 10")
    a(f"v_add_u32 v10, s{T0}, v10")
    a("v_add_u32 v11, 0x10000, v10")
    a("s_cmp_eq_u32 s44, 3")
    a("s_cbranch_scc1 L_g_q")
    make_srd(a, 56, S_WG, GUB)
    make_srd(a, 60, S_WU, GUB)
    a("s_add_u32 s46, s44, 4")
    gu_voff(9, 46)
    a("v_mov_b32 v12, v9")
    a("s_add_u32 s64, s45, 4096")
    a(f"s_add_u32 s65, s45, {O_UP+4096}")
    a(f"s_mov_b32 s66, {32*3584}")
    a("s_branch L_g_qdone")
    a.label("L_g_q")
    make_srd(a, 56, S_WQ, 512 * 512 * 2)
    make_srd(a, 60, S_WQ, 512 * 512 * 2)
    a("v_lshlrev_b32 v4, 10, v4")
    a("v_and_b32 v9, 3, v1")
    a("v_lshl_add_u32 v9, v9, 4, v4")
    a(f"s_lshl_b32 s{T0}, s{S_FS}, 6")
    a(f"v_add_u32 v9, s{T0}, v9")
    a("v_add_u32 v12, 0x4000, v9")
    a(f"s_mov_b32 s64, {O_Q}")
    a(f"s_mov_b32 s65, {O_Q+1024}")
    a(f"s_mov_b32 s66, {32*1024}")
    a.label("L_g_qdone")
    a("s_mov_b32 s67, 0")
    a("s_mov_b32 s68, 0")
    a("s_mov_b32 s69, 0")
    def issue_stage(slot):
        a(f"s_add_u32 s{T0}, s45, s{slot}")
        a(f"s_add_u32 m0, s{T0}, {O_X}")
        a("s_nop 0")
        a(f"buffer_load_dwordx4 v10, s[{SRD_X}:{SRD_X+3}], s69 offen lds")
        a(f"s_add_u32 m0, s{T0}, {O_X+4096}")
        a("s_nop 0")
        a(f"buffer_load_dwordx4 v11, s[{SRD_X}:{SRD_X+3}], s69 offen lds")
        a(f"s_mov_b32 m0, s{T0}")
        a("s_add_u32 s69, s69, 64")
        a("buffer_load_dwordx4 v8, s[48:51], s67 offen lds")
        a(f"s_add_u32 m0, s{T0}, {O_UP}")
        a("s_nop 0")
        a("buffer_load_dwordx4 v8, s[52:55], s67 offen lds")
        a(f"s_add_u32 m0, s64, s{slot}")
        a(f"s_add_u32 s67, s67, {32*3584}")
        a("buffer_load_dwordx4 v9, s[56:59], s68 offen lds")
        a(f"s_add_u32 m0, s65, s{slot}")
        a("s_nop 0")
        a("buffer_load_dwordx4 v12, s[60:63], s68 offen lds")
        a("s_add_u32 s68, s68, s66")
        a(f"s_add_u32 s{slot}, s{slot}, {SLOT}")
        a(f"s_cmp_eq_u32 s{slot}, {NS*SLOT}")
        a(f"s_cselect_b32 s{slot}, 0, s{slot}")
    a("s_mov_b32 s70, 0")
    a("s_mov_b32 s71, 0")
    a.label("L_g_loop")
    issue_stage(70)
    a("s_add_u32 s71, s71, 1")
    a("s_cmp_gt_u32 s71, 7")
    a("s_cbranch_scc1 L_g_plain")
    a("s_cmp_eq_u32 s71, 2")
    a("s_cbranch_scc1 L_g_ev_pa")
    a("s_cmp_eq_u32 s71, 4")
    a("s_cbranch_scc1 L_g_ev_start")
    a("s_cmp_lt_u32 s71, 5")
    a("s_cbranch_scc1 L_g_loop")
    a("s_cmp_ge_u32 s2, 128")
    a("s_cbranch_scc1 L_g_plain")
    a("s_cmp_eq_u32 s71, 6")
    a("s_cbranch_scc1 L_g_ev_drain")
    a("s_cmp_eq_u32 s71, 7")
    a("s_cbranch_scc1 L_g_ev_sig")
    a.label("L_g_plain")
    a("s_cmp_eq_u32 s71, 16")
    a("s_cbranch_scc1 L_g_tail")
    a(f"s_waitcnt vmcnt({6*(NS-2)})")
    a("s_barrier")
    a("s_branch L_g_loop")
    a.label("L_g_ev_pf")
    a("s_lshr_b32 s72, s2, 3")
    a("s_and_b32 s73, s2, 7")
    a("v_lshlrev_b32 v6, 7, v1")
    a(f"s_and_b32 s{T0}, s73, 1")
    a(f"s_lshl_b32 s{T0}, s{T0}, 20")
    a(f"s_lshl_b32 s{T1}, s72, 15")
    a(f"s_add_u32 s{T0}, s{T0}, s{T1}")
    a(f"s_lshl_b32 s{T1}, s44, 13")
    a(f"s_add_u32 s{T0}, s{T0}, s{T1}")
    if "nopf" in FLAGS or "pfw" in FLAGS: a("s_mov_b64 exec, 1")
    a(f"buffer_load_dword v13, v6, s[{SRD_X}:{SRD_X+3}], s{T0} offen")
    if "pfw" in FLAGS: a("s_mov_b64 exec, -1")
    a("s_cmp_ge_u32 s44, 2")
    a("s_cbranch_scc1 L_pf_q")
    a(f"s_lshl_b32 s{T0}, s44, 6")
    a(f"v_add_u32 v6, s{T0}, v1")
    a("v_min_u32 v6, 111, v6")
    a("v_mul_u32_u24 v7, 9363, v6")
    a("v_lshrrev_b32 v7, 16, v7")
    a("v_lshlrev_b32 v6, 7, v6")
    a(f"v_mul_u32_u24 v7, {3584-896}, v7")
    a("v_add_u32 v6, v6, v7")
    a(f"s_mul_i32 s{T0}, s72, {16*3584}")
    a(f"s_lshr_b32 s{T1}, s73, 1")
    a(f"s_mul_i32 s{T1}, s{T1}, 896")
    a(f"s_add_u32 s{T0}, s{T0}, s{T1}")
    if "pfx" in FLAGS: a("s_mov_b64 exec, 1")
    a(f"buffer_load_dword v14, v6, s[48:51], s{T0} offen")
    a(f"buffer_load_dword v15, v6, s[52:55], s{T0} offen")
    a("s_mov_b64 exec, -1")
    a("s_branch L_g_loop")
    a.label("L_pf_q")
    a("s_cmp_eq_u32 s44, 3")
    a("s_cbranch_scc0 L_pf_code")
    a("v_bfe_u32 v6, v1, 1, 4")
    a("v_lshlrev_b32 v6, 10, v6")
    a("v_and_b32 v7, 1, v1")
    a("v_lshl_add_u32 v6, v7, 7, v6")
    a(f"s_lshl_b32 s{T0}, s72, 14")
    a(f"s_lshr_b32 s{T1}, s73, 1")
    a(f"s_lshl_b32 s{T1}, s{T1}, 8")
    a(f"s_add_u32 s{T0}, s{T0}, s{T1}")
    a(f"buffer_load_dword v14, v6, s[56:59], s{T0} offen")
    a("s_mov_b64 exec, 1")
    a(f"buffer_load_dword v15, v6, s[56:59], s{T0} offen")
    a("s_mov_b64 exec, -1")
    a("s_branch L_g_loop")
    a.label("L_pf_code")
    a("s_getpc_b64 s[80:81]")
    a.label("L_pc_ref")
    a("s_mov_b32 s82, L_code_end-L_pc_ref")
    a("s_mov_b32 s83, 0x00020000")
    a("buffer_load_dword v14, v6, s[80:83], 0 offen")
    a(f"s_mov_b32 s{T0}, 8192")
    a(f"buffer_load_dword v15, v6, s[80:83], s{T0} offen")
    a("s_mov_b64 exec, -1")
    a("s_branch L_g_loop")
    a.label("L_g_ev_start")
    a("s_waitcnt vmcnt(21) lgkmcnt(0)")
    a("s_barrier")
    a("s_cmp_lt_u32 s2, 128")
    a("s_cbranch_scc1 L_g_ev_red")
    a("s_branch L_g_loop")
    a.label("L_g_ev_pa")
    a("s_cmp_ge_u32 s2, 128")
    a("s_cbranch_scc1 L_g_ev_pf")
    tr_lane(a, 3, 4, 5, 6)
    a("v_mul_u32_u24 v6, 4224, v3")
    a("v_lshl_add_u32 v6, v4, 5, v6")
    a("v_add3_u32 v6, v6, v5, s76")
    a("v_lshrrev_b32 v7, 5, v1")
    a("v_lshlrev_b32 v7, 4, v7")
    a(f"s_lshl_b32 s{T0}, s44, 8")
    a(f"s_add_u32 s{T0}, s{T0}, s76")
    a(f"v_add_u32 v7, s{T0}, v7")
    a("s_waitcnt vmcnt(12)")
    stamp(a, 1)
    for s_ in range(8):
        for j in range(2):
            a(f"ds_read_b64_tr_b16 v[{128+4*s_+2*j}:{129+4*s_+2*j}], v6 offset:{(16*s_+4*j)*32}")
        if s_ == 3: a("s_waitcnt lgkmcnt(0)")
    a("s_waitcnt lgkmcnt(0)")
    for s_ in range(8):
        a(f"ds_read_b128 v[{16+4*s_}:{19+4*s_}], v7 offset:{8448+32*s_}")
    for s_ in range(8):
        c = "0" if s_ == 0 else "v[64:79]"
        a(f"v_mfma_f32_32x32x16_bf16 v[64:79], v[{128+4*s_}:{131+4*s_}], v[{96+4*s_}:{99+4*s_}], {c}")
    a("s_waitcnt lgkmcnt(0)")
    for s_ in range(8):
        c = "0" if s_ == 0 else "v[80:95]"
        a(f"v_mfma_f32_32x32x16_bf16 v[80:95], v[{16+4*s_}:{19+4*s_}], v[{96+4*s_}:{99+4*s_}], {c}")
    a("v_and_b32 v6, 31, v1")
    a("v_lshrrev_b32 v60, 5, v1")
    a("v_lshl_add_u32 v61, v6, 1, v60")
    a("v_lshlrev_b32 v61, 5, v61")
    a("v_add_u32 v7, s76, v61")
    a("v_lshlrev_b32 v60, 10, v60")
    a("v_lshl_add_u32 v60, v6, 2, v60")
    a("v_add_u32 v60, s76, v60")
    a("v_lshlrev_b32 v6, 2, v6")
    a("v_add_u32 v5, s76, v6")
    a("ds_write_b128 v7, v[64:67]")
    a("ds_write_b128 v7, v[68:71] offset:16")
    for j in range(8):
        a(f"ds_write_b32 v60, v{72+j} offset:{2048+128*j}")
    a("s_nop 3")
    a("ds_write_b32 v5, v80 offset:4096")
    a("s_branch L_g_ev_pf")
    a.label("L_g_ev_red")
    a("s_cmp_eq_u32 s44, 3")
    a("s_cbranch_scc1 L_g_loop")
    a("s_cmp_eq_u32 s44, 2")
    a("s_cbranch_scc1 L_g_pa_z")
    a(f"s_lshr_b32 s{T0}, s77, 1")
    a(f"s_lshl_b32 s{T0}, s{T0}, 10")
    a(f"s_and_b32 s{T1}, s77, 1")
    a(f"s_lshl_b32 s{T1}, s{T1}, 8")
    a(f"s_add_u32 s{T0}, s{T0}, s{T1}")
    a("v_and_b32 v6, 31, v1")
    a("v_lshrrev_b32 v60, 5, v1")
    a("v_lshl_add_u32 v61, v6, 1, v60")
    a("v_lshlrev_b32 v61, 5, v61")
    a("s_cmp_eq_u32 s44, 0")
    a("s_cbranch_scc1 L_g_pa_red")
    a(f"s_add_u32 s{T0}, s{T0}, s{T1}")
    a("s_mov_b32 s78, -1")
    a("s_mov_b32 s79, 0")
    a("v_bfe_u32 v60, v1, 2, 1")
    a("v_lshlrev_b32 v60, 3, v60")
    a("v_bfe_u32 v61, v1, 3, 1")
    a("v_lshl_add_u32 v60, v61, 2, v60")
    a("v_and_b32 v61, 3, v1")
    a("v_add_u32 v60, v60, v61")
    a("v_lshlrev_b32 v60, 7, v60")
    a("v_lshrrev_b32 v61, 4, v1")
    a("v_lshl_add_u32 v61, v61, 5, v60")
    a("v_add_u32 v61, 2048, v61")
    a(f"s_add_u32 s{T0}, s{T0}, {WS_VF}")
    a.label("L_g_pa_red")
    a(f"v_add_u32 v61, {PA}, v61")
    for w in range(4):
        a(f"ds_read_b128 v[{64+8*w}:{67+8*w}], v61 offset:{w*PA_W}")
        a(f"ds_read_b128 v[{68+8*w}:{71+8*w}], v61 offset:{w*PA_W+16}")
    a("s_waitcnt lgkmcnt(0)")
    for w in (2, 1):
        for q in range(w):
            for j in range(0, 8, 2):
                d = 64 + 8 * q + j; e = d + 8 * w
                a(f"v_pk_add_f32 v[{d}:{d+1}], v[{d}:{d+1}], v[{e}:{e+1}]")
    for j in range(4):
        a(f"v_cvt_pk_bf16_f32 v{140+j}, v{64+2*j}, v{65+2*j}")
    a("s_mov_b64 exec, s[78:79]")
    a(f"buffer_store_dwordx4 v[140:143], v2, s[{SRD_WS}:{SRD_WS+3}], s{T0} offen sc1")
    a("s_mov_b64 exec, -1")
    a("s_branch L_g_loop")
    a.label("L_g_pa_z")
    a("v_and_b32 v6, 15, v1")
    a("v_lshlrev_b32 v6, 2, v6")
    a(f"v_add_u32 v60, {PA}, v6")
    for w in range(4):
        a(f"ds_read_b32 v{64+w}, v60 offset:{w*PA_W+4096}")
    a(f"s_cmp_lg_u32 s{S_FS}, 0")
    a("s_cbranch_scc1 L_g_nofl")
    a("v_mov_b32 v7, 0")
    a(f"s_lshl_b32 s{T0}, s{S_MT}, 7")
    a(f"s_add_u32 s{T0}, s{T0}, {WS_FL}")
    a(f"buffer_store_dword v7, v7, s[{SRD_WS}:{SRD_WS+3}], s{T0} offen sc1")
    a.label("L_g_nofl")
    a("s_waitcnt lgkmcnt(0)")
    for w in range(1, 4):
        a(f"v_add_f32 v64, v64, v{64+w}")
    a(f"v_mul_f32 v64, {f32hex(-LOG2E)}, v64")
    a("v_exp_f32 v64, v64")
    a(f"s_lshl_b32 s{T0}, s77, 6")
    a("v_add_f32 v64, 1.0, v64")
    a("v_rcp_f32 v140, v64")
    a(f"s_add_u32 s{T0}, s{T0}, {WS_G}")
    a(f"buffer_store_dword v140, v6, s[{SRD_WS}:{SRD_WS+3}], s{T0} offen sc1")
    a("s_branch L_g_loop")
    a.label("L_g_ev_drain")
    a("s_waitcnt vmcnt(12)")
    a("s_branch L_g_plain")
    a.label("L_g_ev_sig")
    a("s_cmp_lg_u32 s44, 0")
    a("s_cbranch_scc1 L_g_plain")
    a("s_and_b32 s72, s2, 1")
    a("s_lshl_b32 s72, s72, 7")
    a("v_mov_b32 v6, s72")
    a("v_mov_b32 v7, 1")
    a("s_mov_b64 exec, 1")
    a(f"global_atomic_add v6, v7, s[{S_DBG}:{S_DBG+1}] sc1")
    a("s_mov_b64 exec, -1")
    stamp(a, 2)
    a("s_branch L_g_plain")
    a.label("L_g_tail")
    groups = kv_pieces()
    def issue_kv(pieces):
        n = (len(pieces) + 3) // 4
        for q in range(n):
            idx = [pieces[min(4 * q + j, len(pieces) - 1)] for j in range(4)]
            if idx == [idx[0] + k for k in range(4)]:
                a(f"s_add_u32 s{T0}, s45, {idx[0]*1024}")
            else:
                a(f"s_mov_b32 s{T0}, {idx[0]*1024}")
                for j in range(1, 4):
                    a(f"s_cmp_eq_u32 s44, {j}")
                    a(f"s_cselect_b32 s{T0}, {idx[j]*1024}, s{T0}")
            a(f"s_mov_b32 m0, s{T0}")
            a("s_nop 0")
            a(f"buffer_load_dwordx4 v2, s[{SRD_WS}:{SRD_WS+3}], s{T0} offen sc1 lds")
        return n
    kv_out = 0
    for s in range(11, 16):
        ring_after = max(0, 15 - (s + 1)) * 6
        if s < 15:
            a(f"s_waitcnt vmcnt({min(63, ring_after + kv_out)})")
        a("s_barrier")
        kv_out += issue_kv(groups[s])
    a("v_cmp_gt_u32 vcc, 4, v1")
    a("v_lshlrev_b32 v3, 2, v1")
    a(f"v_add_u32 v3, {MISC}, v3")
    a("v_cndmask_b32 v4, 0, 2, vcc".replace("v_cndmask_b32 ", "v_cndmask_b32_e64 "))
    a("s_mov_b64 exec, 0xffff")
    a("ds_write_b32 v3, v4")
    a("s_mov_b64 exec, -1")
    a("s_waitcnt vmcnt(0) lgkmcnt(0)")
    a("s_barrier")
    a("s_branch L_g2")

def gen_g2(a):
    a.label("L_g2")
    stamp(a, 4)
    a("s_cmp_lg_u32 s44, 0")
    a("s_cbranch_scc1 L_g_nosig")
    a(f"s_lshl_b32 s{T0}, s{S_MT}, 7")
    a(f"s_add_u32 s{T0}, s{T0}, {WS_FL}")
    a(f"v_mov_b32 v3, s{T0}")
    a("v_mov_b32 v4, 1")
    a("s_mov_b64 exec, 1")
    a(f"global_atomic_add v3, v4, s[{S_WS}:{S_WS+1}] sc1")
    a("s_mov_b64 exec, -1")
    a.label("L_g_nosig")
    ACC = 64; AFR = 16; WF = 40
    WO = 128
    make_srd(a, 48, S_WD, 1792 * 512 * 2)
    make_srd(a, 52, S_WO, 512 * 512 * 2)
    make_srd(a, 56, S_OUT, 2048 * 512 * 2)
    a("v_lshlrev_b32 v3, 7, v1")
    a("s_lshr_b32 s64, s2, 3")
    a(f"s_mul_i32 s65, s64, 57344")
    a(f"s_lshl_b32 s{T0}, s44, 14")
    a(f"s_add_u32 s65, s65, s{T0}")
    a("buffer_load_dword v14, v3, s[48:51], s65 offen")
    a("s_add_u32 s65, s65, 8192")
    a("s_cmp_eq_u32 s44, 3")
    a("s_cbranch_scc1 L_g_pfo")
    a("buffer_load_dword v15, v3, s[48:51], s65 offen")
    a("s_branch L_g_pfd")
    a.label("L_g_pfo")
    a("s_lshl_b32 s65, s64, 14")
    a("buffer_load_dword v15, v3, s[52:55], s65 offen")
    a("s_add_u32 s65, s65, 8192")
    a("buffer_load_dword v14, v3, s[52:55], s65 offen")
    a.label("L_g_pfd")
    a("v_lshrrev_b32 v3, 3, v1")
    a("v_bfe_u32 v4, v1, 4, 1")
    a("v_lshlrev_b32 v4, 2, v4")
    a("v_and_b32 v5, 7, v1")
    a("v_xor_b32 v5, v5, v4")
    a("v_lshlrev_b32 v5, 4, v5")
    a("v_lshl_add_u32 v5, v3, 10, v5")
    a(f"s_lshl_b32 s{T0}, s{S_CT}, 7")
    a(f"v_add_u32 v5, s{T0}, v5")
    a("v_add_u32 v8, 0x2000, v5")
    a("v_lshrrev_b32 v3, 4, v1")
    a("v_bfe_u32 v4, v1, 2, 2")
    a("v_lshrrev_b32 v6, 1, v3")
    a("v_lshl_add_u32 v6, v6, 3, v4")
    a("v_lshlrev_b32 v6, 7, v6")
    a("v_lshrrev_b32 v4, 1, v4")
    a("v_lshl_add_u32 v6, v4, 6, v6")
    a("v_and_b32 v3, 1, v3")
    a("v_lshl_add_u32 v6, v3, 5, v6")
    a("v_and_b32 v3, 1, v1")
    a("v_lshl_add_u32 v6, v3, 4, v6")
    a("v_bfe_u32 v3, v1, 1, 1")
    a("v_lshl_add_u32 v6, v3, 3, v6")
    a(f"s_mul_i32 s46, s44, {GS_W}")
    a(f"s_add_u32 s46, s46, {GS}")
    a("v_add_u32 v6, s46, v6")
    a("v_xor_b32 v7, 64, v6")
    a(f"v_add_u32 v9, {144*1024}, v2")
    for i in range(64):
        a(f"v_mov_b32 v{ACC+i}, 0")
    a(f"s_lshl_b32 s{T0}, s{S_TP}, 8")
    a(f"s_add_u32 s{T0}, s{T0}, {WS_G}")
    a("v_and_b32 v3, 31, v1")
    a("v_lshlrev_b32 v3, 2, v3")
    a(f"buffer_load_dword v12, v3, s[{SRD_WS}:{SRD_WS+3}], s{T0} offen sc1")
    a(f"buffer_load_dword v13, v3, s[{SRD_WS}:{SRD_WS+3}], s{T0} offen offset:128 sc1")
    a(f"s_mul_i32 s64, s44, {28*16384}")
    a(f"s_lshl_b32 s{T0}, s{S_TP}, 1")
    a(f"s_mul_i32 s65, s{T0}, 144")
    a("s_mov_b32 s72, s65")
    a(f"s_mul_i32 s{T1}, s44, 28")
    a(f"s_add_u32 s65, s65, s{T1}")
    a("s_lshl_b32 s65, s65, 10")
    a(f"s_add_u32 s65, s65, {WS_AF}")
    a(f"s_lshr_b32 s{T0}, s{S_TP}, 1")
    a(f"s_lshl_b32 s{T0}, s{T0}, 7")
    a(f"s_add_u32 s73, s{T0}, {WS_FL}")
    a("v_mov_b32 v3, s73")
    poll(a, "L_h", S_WS, 3, 4, 16, sleep=16)
    a(f"v_mov_b32 v3, {M_CD}")
    a("s_mov_b32 s71, 0")
    a.label("L_g_qr")
    a("ds_read_b32 v4, v3")
    a("s_add_u32 s71, s71, 1")
    a("s_waitcnt lgkmcnt(0)")
    a("v_cmp_gt_u32 vcc, 8, v4")
    a(f"s_cmp_ge_u32 s71, {SPIN*4}")
    a("s_cbranch_scc1 L_g_qr2")
    a("s_nop 1")
    a("s_cbranch_vccnz L_g_qr")
    a.label("L_g_qr2")
    stamp(a, 5)
    def issue(sl, srd):
        a(f"s_add_u32 m0, s46, {sl*2048}")
        a("s_nop 0")
        a(f"buffer_load_dwordx4 v5, s[{srd}:{srd+3}], s64 offen lds")
        a(f"s_add_u32 m0, s46, {sl*2048+1024}")
        a("s_nop 0")
        a(f"buffer_load_dwordx4 v8, s[{srd}:{srd+3}], s64 offen lds")
        a("s_add_u32 s64, s64, 16384")
    def issue_act(sl):
        r = AFR + sl * 8
        a(f"buffer_load_dwordx4 v[{r}:{r+3}], v2, s[{SRD_WS}:{SRD_WS+3}], s65 offen sc1")
        a(f"buffer_load_dwordx4 v[{r+4}:{r+7}], v9, s[{SRD_WS}:{SRD_WS+3}], s65 offen sc1")
        a("s_add_u32 s65, s65, 1024")
    def trreads(sl, dst):
        a(f"ds_read_b64_tr_b16 v[{dst}:{dst+1}], v6 offset:{sl*2048}")
        a(f"ds_read_b64_tr_b16 v[{dst+2}:{dst+3}], v6 offset:{sl*2048+512}")
        a(f"ds_read_b64_tr_b16 v[{dst+4}:{dst+5}], v7 offset:{sl*2048}")
        a(f"ds_read_b64_tr_b16 v[{dst+6}:{dst+7}], v7 offset:{sl*2048+512}")
    def mf4(w, r):
        for t in range(2):
            for c in range(2):
                d = ACC + (t * 2 + c) * 16
                a(f"v_mfma_f32_32x32x16_bf16 v[{d}:{d+15}], v[{w+4*c}:{w+4*c+3}], v[{r+4*t}:{r+4*t+3}], v[{d}:{d+15}]")
    for sl in range(3):
        issue(sl, 48); issue_act(sl)
    WF2 = (WF, 48)
    def dstep(sl, wcur, wnext, issue_next, rd_next, vm):
        r = AFR + sl * 8
        def mf(t, c):
            if "nog" in FLAGS: return
            d = ACC + (t * 2 + c) * 16
            a(f"v_mfma_f32_32x32x16_bf16 v[{d}:{d+15}], v[{wcur+4*c}:{wcur+4*c+3}], v[{r+4*t}:{r+4*t+3}], v[{d}:{d+15}]")
        a("s_waitcnt lgkmcnt(0)")
        mf(0, 0)
        if issue_next:
            a(f"s_add_u32 m0, s46, {sl*2048}")
            a("s_nop 0")
            a(f"buffer_load_dwordx4 v5, s[48:51], s64 offen lds")
            a(f"s_add_u32 m0, s46, {sl*2048+1024}")
            a("s_nop 0")
            a(f"buffer_load_dwordx4 v8, s[48:51], s64 offen lds")
            a("s_add_u32 s64, s64, 16384")
        mf(0, 1)
        if issue_next:
            a(f"buffer_load_dwordx4 v[{r}:{r+3}], v2, s[{SRD_WS}:{SRD_WS+3}], s65 offen sc1")
        if rd_next:
            a(f"s_waitcnt vmcnt({vm})")
        mf(1, 0)
        if rd_next:
            trreads((sl + 1) % 3, wnext)
        mf(1, 1)
        if issue_next:
            a(f"buffer_load_dwordx4 v[{r+4}:{r+7}], v9, s[{SRD_WS}:{SRD_WS+3}], s65 offen sc1")
            a("s_add_u32 s65, s65, 1024")
    a("s_waitcnt vmcnt(8)")
    trreads(0, WF2[0])
    a("s_mov_b32 s71, 0")
    a.label("L_d_loop")
    for st in range(6):
        dstep(st % 3, WF2[st % 2], WF2[(st + 1) % 2], True, True, 7)
    a("s_add_u32 s71, s71, 1")
    a("s_cmp_lt_u32 s71, %d" % (1 if "nog2" in FLAGS else 4))
    a("s_cbranch_scc1 L_d_loop")
    dstep(0, WF2[0], WF2[1], True, True, 7)
    dstep(1, WF2[1], WF2[0], False, True, 4)
    dstep(2, WF2[0], WF2[1], False, True, 0)
    dstep(0, WF2[1], WF2[0], False, False, 0)
    stamp(a, 6)
    a(f"s_mul_i32 s64, s44, {8*16384}")
    WOR = [128, 136, 144, 152, 16, 24, 32, 40]
    for sl in range(3):
        issue(sl, 52)
    a("v_sub_f32 v12, 1.0, v12")
    a("v_sub_f32 v13, 1.0, v13")
    a("s_nop 7")
    for t in range(2):
        for i in range(32):
            a(f"v_mul_f32 v{ACC+t*32+i}, v{ACC+t*32+i}, v{12+t}")
    for k in range(8):
        sl = k % 3
        left = min(8, k + 3) - k - 1
        a(f"s_waitcnt vmcnt({2*left})")
        trreads(sl, WOR[k])
        a("s_waitcnt lgkmcnt(0)")
        if k + 3 < 8:
            issue(sl, 52)
    a(f"v_mov_b32 v3, {M_GD}")
    a("v_mov_b32 v4, 1")
    a("s_mov_b64 exec, 1")
    a("ds_add_u32 v3, v4")
    a(f"s_lshl_b32 s{T1}, s44, 3")
    a(f"s_add_u32 s65, s72, s{T1}")
    a("s_add_u32 s65, s65, 112")
    a("s_lshl_b32 s65, s65, 10")
    a(f"s_add_u32 s65, s65, {WS_AF}")
    a("s_add_u32 s66, s65, 4096")
    a("s_waitcnt lgkmcnt(0)")
    a("s_barrier")
    a("s_mov_b64 exec, -1")
    stamp(a, 7)
    AR = [48, 56, 8]
    a("v_mov_b32 v160, v9")
    a("s_mov_b32 s71, 0")
    def issue_o(k):
        r = AR[k % 3]
        so = 65 if k < 4 else 66
        a(f"buffer_load_dwordx4 v[{r}:{r+3}], v2, s[{SRD_WS}:{SRD_WS+3}], s{so} offen offset:{(k%4)*1024} sc1")
        a(f"buffer_load_dwordx4 v[{r+4}:{r+7}], v160, s[{SRD_WS}:{SRD_WS+3}], s{so} offen offset:{(k%4)*1024} sc1")
    for k in range(3): issue_o(k)
    for k in range(8):
        r = AR[k % 3]
        left = min(8, k + 3) - k - 1
        a(f"s_waitcnt vmcnt({2*left})")
        a.label(f"L_o_chk{k}")
        a(f"v_max3_u32 v3, v{r}, v{r+1}, v{r+2}")
        a(f"v_max3_u32 v4, v{r+3}, v{r+4}, v{r+5}")
        a(f"v_max3_u32 v3, v3, v{r+6}, v{r+7}")
        a("v_max_u32 v3, v3, v4")
        a("v_cmp_eq_u32 vcc, -1, v3")
        a(f"s_cmp_ge_u32 s71, {SPIN}")
        a(f"s_cbranch_scc1 L_o_ok{k}")
        a("s_nop 0")
        a(f"s_cbranch_vccz L_o_ok{k}")
        a("s_add_u32 s71, s71, 1")
        issue_o(k)
        a("s_waitcnt vmcnt(0)")
        a(f"s_branch L_o_chk{k}")
        a.label(f"L_o_ok{k}")
        mf4(WOR[k], r)
        if k + 3 < 8: issue_o(k + 3)
    stamp(a, 8)
    a("s_lshl_b32 s65, s44, 14")
    a("v_add_u32 v3, s65, v2")
    a("s_nop 15")
    for i in range(16):
        a(f"ds_write_b128 v3, v[{ACC+4*i}:{ACC+4*i+3}] offset:{i*1024}")
    a("s_lshl_b32 s65, s44, 12")
    a("v_add_u32 v3, s65, v2")
    a("s_waitcnt lgkmcnt(0)")
    a("s_barrier")
    for w in range(4):
        for q in range(4):
            a(f"ds_read_b128 v[{ACC+16*w+4*q}:{ACC+16*w+4*q+3}], v3 offset:{w*16384+q*1024}")
    a("s_lshr_b32 s65, s44, 1")
    a("s_lshl_b32 s65, s65, 5")
    a(f"s_lshl_b32 s{T0}, s{S_TP}, 6")
    a(f"s_add_u32 s65, s65, s{T0}")
    a("s_lshl_b32 s65, s65, 10")
    a(f"s_lshl_b32 s{T0}, s{S_CT}, 7")
    a(f"s_add_u32 s65, s65, s{T0}")
    a(f"s_and_b32 s{T0}, s44, 1")
    a(f"s_lshl_b32 s{T0}, s{T0}, 6")
    a(f"s_add_u32 s65, s65, s{T0}")
    a("v_and_b32 v3, 31, v1")
    a("v_lshlrev_b32 v3, 10, v3")
    a("v_lshrrev_b32 v4, 5, v1")
    a("v_lshl_add_u32 v3, v4, 4, v3")
    a("s_waitcnt lgkmcnt(0)")
    for w in range(1, 4):
        for i in range(16):
            a(f"v_add_f32 v{ACC+i}, v{ACC+i}, v{ACC+16*w+i}")
    for j in range(8):
        a(f"v_cvt_pk_bf16_f32 v{ACC+j}, v{ACC+2*j}, v{ACC+2*j+1}")
    a(f"buffer_store_dwordx4 v[{ACC}:{ACC+3}], v3, s[56:59], s65 offen")
    a(f"buffer_store_dwordx4 v[{ACC+4}:{ACC+7}], v3, s[56:59], s65 offen offset:32")
    stamp(a, 9)

def main(out):
    a = Asm()
    gen(a)
    txt = HEADER
    txt += f"; @launch grid=(256,1,1) block=(768,1,1) lds={LDS}\n"
    txt += '.amdgcn_target "amdgcn-amd-amdhsa--gfx950"\n.text\n' + a.text()
    txt += '.section .rodata,"a"\n'
    txt += kernel_desc(KN, 168)
    open(out, "w").write(txt)

if __name__ == "__main__":
    if "stamps" in sys.argv: STAMPS = True
    FLAGS.update(sys.argv[2:])
    main(sys.argv[1] if len(sys.argv) > 1 else f"cdna_kernels/{NAME}.s")
```

```python
import sys, math
from common import *

WS_KF = 0
WS_VF = 65536
WS_G = 131072
WS_FL = 0x30000
WS_QF = 0x40000
WS_AF = 0x400000
WS_ST = 0x2000000
WS_BYTES = 0x10000000
LOG2E = 1.4426950408889634
QSCALE = 0.25 * LOG2E
STAMPS = False
FLAGS = set()
KN = NAME + "_kernel"

SLOT = 24832; NS = 5; NPRE = 4
O_UP = 7296; O_Q = 14464; O_X = 16640
PA = NS * SLOT; PA_W = 9472
L_K = 0; L_V = 65536
GS = 131072; GS_W = 6144
QX = 131072
MISC = 162304
OX = 131072; OXS = 4608
M_CNT, M_FIN, M_RDY, M_GD, M_CD, M_HD, M_KV = MISC, MISC + 16, MISC + 32, MISC + 48, MISC + 52, MISC + 56, MISC + 60
CROT = 7
LDS = 163840
SPIN = 200000
GATE = 18
NINIT = 8
PSTEP = 1

S_X, S_WQ, S_WK, S_WV, S_WO = 4, 6, 8, 10, 12
S_WG, S_WU, S_WD, S_GW = 16, 18, 20, 22
S_OUT, S_DBG, S_WS = 24, 26, 28
S_W, S_MT, S_FS, S_TP, S_CT = 30, 31, 32, 33, 34
T0, T1, T2 = 14, 15, 35
SRD_X, SRD_WS = 36, 40

DBGMAP_C = {2: 3, 3: 4, 6: 5, 5: 6}
DBGMAP_G = {1: 8, 2: 9, 5: 10, 6: 11, 7: 12, 8: 13}
ROLE = ["c"]
def dstamp(a, idx):
    u = a.new_label("ds")
    if idx == 0 or idx == 9:
        a("s_memrealtime s[92:93]")
        a("s_waitcnt lgkmcnt(0)")
        if idx == 0: a("s_not_b32 s92, s92")
        a(f"s_cmp_lg_u32 s{S_W}, 8")
        a(f"s_cbranch_scc1 {u}")
        a("v_mov_b32 v164, s92")
        a(f"v_mov_b32 v165, {4 if idx == 0 else 8}")
        a("s_mov_b64 exec, 1")
        a(f"global_atomic_umax v165, v164, s[{S_DBG}:{S_DBG+1}] sc1")
        a("s_mov_b64 exec, -1")
        a.label(u)
        return
    m = DBGMAP_C if ROLE[0] == "c" else DBGMAP_G
    if idx not in m: return
    a(f"s_lshl_b32 s94, s2, 4")
    a(f"s_add_u32 s94, s94, s{S_W}")
    a(f"s_cmp_lg_u32 s94, {0 if ROLE[0] == 'c' else 8}")
    a(f"s_cbranch_scc1 {u}")
    a("s_memrealtime s[92:93]")
    a("s_waitcnt lgkmcnt(0)")
    a("v_mov_b32 v164, s92")
    a(f"v_mov_b32 v165, {4*m[idx]}")
    a(f"global_store_dword v165, v164, s[{S_DBG}:{S_DBG+1}]")
    a.label(u)

def stamp(a, idx, sreg=None):
    if "dstamp" in FLAGS: return dstamp(a, idx)
    if not STAMPS: return
    a("s_memtime s[90:91]")
    a("s_memrealtime s[92:93]")
    a(f"s_lshl_b32 s94, s2, 4")
    a(f"s_add_u32 s94, s94, s{S_W}")
    a(f"s_lshl_b32 s94, s94, 8")
    a(f"s_add_u32 s94, s94, {WS_ST + idx*8}")
    if sreg is not None:
        a(f"s_lshl_b32 s95, s{sreg}, 3")
        a("s_add_u32 s94, s94, s95")
    a("s_waitcnt lgkmcnt(0)")
    a("v_mov_b32 v164, s90")
    a("v_mov_b32 v165, s92")
    a("v_mov_b32 v166, 0")
    a(f"buffer_store_dwordx2 v[164:165], v166, s[{SRD_WS}:{SRD_WS+3}], s94 offen")

def tr_lane(a, v_mat, v_row, v_colb, t):
    a(f"v_lshrrev_b32 v{v_mat}, 4, v1")
    a(f"v_bfe_u32 v{v_row}, v1, 2, 2")
    a(f"v_and_b32 v{t}, 1, v1")
    a(f"v_lshlrev_b32 v{v_colb}, 4, v{t}")
    a(f"v_bfe_u32 v{t}, v1, 1, 1")
    a(f"v_lshl_or_b32 v{v_colb}, v{t}, 3, v{v_colb}")
    a(f"v_lshrrev_b32 v{t}, 1, v{v_mat}")
    a(f"v_lshl_add_u32 v{v_row}, v{t}, 3, v{v_row}")
    a(f"v_and_b32 v{v_mat}, 1, v{v_mat}")

def poll(a, nm, base_pair, voff_reg, vtmp, target, nwords=1, sleep=4):
    a(f"s_mov_b64 exec, {(1 << nwords) - 1}")
    a(f"s_mov_b32 s{T2}, 0")
    a.label(f"{nm}_poll")
    a(f"global_load_dword v{vtmp}, v{voff_reg}, s[{base_pair}:{base_pair+1}] sc1")
    a(f"s_add_u32 s{T2}, s{T2}, 1")
    a("s_waitcnt vmcnt(0)")
    a(f"v_cmp_gt_u32 vcc, {target}, v{vtmp}")
    a(f"s_cmp_ge_u32 s{T2}, {SPIN}")
    a(f"s_cbranch_scc1 {nm}_pdone")
    a("s_nop 1")
    a(f"s_cbranch_vccz {nm}_pdone")
    a(f"s_sleep {sleep}")
    a(f"s_branch {nm}_poll")
    a.label(f"{nm}_pdone")
    a("s_mov_b64 exec, -1")

def kv_pieces():
    last = {s % NS: s for s in range(16)}
    groups = {}
    for i in range(128):
        lo, hi = i * 1024, i * 1024 + 1023
        need = 11
        for sl in range(NS):
            if lo < (sl + 1) * SLOT and hi >= sl * SLOT:
                need = max(need, last[sl])
        groups.setdefault(need, []).append(i)
    return groups

def gen(a):
    name = KN
    kernel_begin(a, name)
    a("s_cmp_ge_u32 s2, 256")
    a(f"s_cbranch_scc1 L_exit")
    a("s_load_dwordx8 s[4:11], s[0:1], 0")
    a("s_load_dwordx2 s[12:13], s[0:1], 32")
    a("s_load_dwordx8 s[16:23], s[0:1], 48")
    a("s_load_dwordx4 s[24:27], s[0:1], 80")
    a("s_load_dwordx2 s[28:29], s[0:1], 96")
    a("s_getpc_b64 s[80:81]")
    a.label("L_pc_ref")
    a("s_mov_b32 s82, L_code_end-L_pc_ref")
    a("s_mov_b32 s83, 0x00020000")
    a("v_lshlrev_b32 v3, 7, v0")
    if "nocpf" not in FLAGS:
        a("buffer_load_dword v163, v3, s[80:83], 0 offen")
    a("v_lshrrev_b32 v2, 6, v0")
    a("v_and_b32 v1, 63, v0")
    a(f"v_readfirstlane_b32 s{S_W}, v2")
    a(f"s_and_b32 s{T0}, s2, 7")
    a(f"s_lshr_b32 s{T1}, s2, 3")
    a(f"s_and_b32 s{S_MT}, s{T0}, 1")
    a(f"s_lshl_b32 s{S_MT}, s{S_MT}, 3")
    a(f"s_and_b32 s{S_FS}, s{T1}, 7")
    a(f"s_add_u32 s{S_MT}, s{S_MT}, s{S_FS}")
    a(f"s_lshr_b32 s{S_FS}, s{T0}, 1")
    a(f"s_lshl_b32 s{S_FS}, s{S_FS}, 2")
    a(f"s_lshr_b32 s{T2}, s{T1}, 3")
    a(f"s_add_u32 s{S_FS}, s{S_FS}, s{T2}")
    a(f"s_lshl_b32 s{S_TP}, s{T0}, 2")
    a(f"s_and_b32 s{T2}, s{T1}, 3")
    a(f"s_add_u32 s{S_TP}, s{S_TP}, s{T2}")
    a(f"s_lshr_b32 s{S_CT}, s{T1}, 2")
    a("v_lshlrev_b32 v2, 4, v1")
    a("s_waitcnt lgkmcnt(0)")
    make_srd(a, SRD_X, S_X, 2048 * 512 * 2)
    make_srd(a, SRD_WS, S_WS, WS_BYTES)
    stamp(a, 0)
    a(f"s_cmp_lt_u32 s{S_W}, 8")
    a("s_cbranch_scc1 L_role_c")
    gen_g1(a)
    gen_c(a)
    gen_g2(a)
    a.label("L_exit")
    a("s_endpgm")
    a.label("L_code_end")

def gen_c(a):
    ROLE[0] = "c"
    a.label("L_role_c")
    a("s_lshr_b32 s44, s2, 3")
    a("s_and_b32 s45, s2, 7")
    a("s_lshr_b32 s46, s45, 1")
    a(f"s_lshl_b32 s47, s{S_W}, 6")
    a("s_add_u32 s47, s47, s44")
    a("v_bfe_u32 v3, v1, 4, 1")
    a("v_lshl_add_u32 v3, v3, 5, s47")
    a("v_and_b32 v4, 15, v1")
    a("s_mul_i32 s48, s46, 896")
    a("v_mul_u32_u24 v5, 3584, v3")
    a("v_lshl_add_u32 v5, v4, 7, v5")
    a("v_add_u32 v5, s48, v5")
    a(f"v_mov_b32 v6, s{S_WG}")
    a(f"v_mov_b32 v7, s{S_WG+1}")
    a("v_cmp_lt_u32 vcc, 6, v4")
    a(f"v_mov_b32 v8, s{S_WU}")
    a(f"v_mov_b32 v9, s{S_WU+1}")
    a("v_subrev_u32 v10, 896, v5")
    a("v_cndmask_b32 v6, v6, v8, vcc")
    a("v_cndmask_b32 v7, v7, v9, vcc")
    a("v_cndmask_b32 v5, v5, v10, vcc")
    a("v_cmp_lt_u32 vcc, 13, v4")
    a(f"v_mov_b32 v8, s{S_WQ}")
    a(f"v_mov_b32 v9, s{S_WQ+1}")
    a("v_lshlrev_b32 v10, 10, v3")
    a("v_and_b32 v11, 1, v1")
    a("v_lshl_add_u32 v10, v11, 7, v10")
    a("s_lshl_b32 s48, s46, 8")
    a("v_add_u32 v10, s48, v10")
    a("v_cndmask_b32 v6, v6, v8, vcc")
    a("v_cndmask_b32 v7, v7, v9, vcc")
    a("v_cndmask_b32 v5, v5, v10, vcc")
    a("v_cmp_lt_u32 vcc, 31, v1")
    a(f"v_mov_b32 v8, s{S_X}")
    a(f"v_mov_b32 v9, s{S_X+1}")
    a("s_and_b32 s48, s45, 1")
    a("s_lshl_b32 s48, s48, 5")
    a("s_add_u32 s48, s48, s44")
    a("s_lshl_b32 s48, s48, 15")
    a(f"s_lshl_b32 s49, s{S_W}, 7")
    a("s_add_u32 s48, s48, s49")
    a("v_and_b32 v10, 31, v1")
    a("v_lshlrev_b32 v10, 10, v10")
    a("v_add_u32 v10, s48, v10")
    a("v_cndmask_b32 v6, v6, v8, vcc")
    a("v_cndmask_b32 v7, v7, v9, vcc")
    a("v_cndmask_b32 v5, v5, v10, vcc")
    a("v_add_co_u32 v158, vcc, v6, v5")
    a("s_nop 1")
    a("v_addc_co_u32 v159, vcc, 0, v7, vcc")
    a(f"s_cmp_ge_u32 s{S_W}, {NINIT}")
    a("s_cbranch_scc1 L_c_latepf")
    a("global_load_dword v160, v[158:159], off")
    a.label("L_c_latepf")
    a(f"s_and_b32 s70, s{S_W}, 3")
    a(f"s_lshr_b32 s71, s{S_W}, 2")
    a(f"s_lshl_b32 s72, s{S_MT}, 2")
    a("s_add_u32 s72, s72, s70")
    a("s_mul_i32 s78, s72, 144")
    a(f"s_lshl_b32 s73, s{S_FS}, 1")
    a("s_add_u32 s78, s78, s73")
    a("s_add_u32 s78, s78, 112")
    a("s_lshl_b32 s78, s78, 10")
    a(f"s_add_u32 s78, s78, {WS_AF}")
    a("s_lshl_b32 s73, s71, 10")
    a("s_add_u32 s73, s73, s78")
    for i in range(4):
        a(f"v_mov_b32 v{8+i}, -1")
    a(f"buffer_store_dwordx4 v[8:11], v2, s[{SRD_WS}:{SRD_WS+3}], s73 offen sc1")
    tr_lane(a, 3, 4, 5, 6)
    a(f"s_and_b32 s60, s{S_W}, 1")
    a(f"s_lshr_b32 s61, s{S_W}, 1")
    a("v_and_b32 v6, 31, v1")
    a("v_bfe_u32 v60, v1, 2, 2")
    a("v_lshrrev_b32 v61, 5, v1")
    a("v_xor_b32 v61, v61, v60")
    a("v_xor_b32 v60, 2, v61")
    a("v_lshlrev_b32 v6, 6, v6")
    a(f"s_lshl_b32 s{T0}, s60, 12")
    a(f"s_add_u32 s{T0}, s{T0}, {O_X}")
    a(f"v_add_u32 v6, s{T0}, v6")
    a("v_lshl_add_u32 v53, v61, 4, v6")
    a("v_lshl_add_u32 v54, v60, 4, v6")
    a(f"v_mul_u32_u24 v6, {O_UP}, v3")
    a("v_mul_u32_u24 v60, 224, v4")
    a("v_add3_u32 v6, v6, v60, v5")
    a(f"s_lshl_b32 s{T0}, s61, 6")
    a(f"v_add_u32 v55, s{T0}, v6")
    a("v_add_u32 v56, 32, v55")
    a(f"s_mov_b32 s{T0}, {4*224}")
    a("s_cmp_eq_u32 s61, 3")
    a("s_cbranch_scc0 L_c_u1done")
    a("v_lshlrev_b32 v6, 6, v4")
    a("v_lshl_add_u32 v6, v3, 5, v6")
    a("v_add_u32 v6, v6, v5")
    a(f"v_add_u32 v56, {O_Q}, v6")
    a(f"s_mov_b32 s{T0}, {4*64}")
    a.label("L_c_u1done")
    a(f"s_lshl_b32 s{T1}, s{T0}, 2")
    a(f"v_add_u32 v57, s{T0}, v56")
    a(f"v_add_u32 v58, s{T1}, v56")
    a(f"v_add_u32 v59, s{T0}, v58")
    a(f"s_sub_u32 s69, s{S_W}, {NINIT}")
    a(f"s_mul_i32 s69, s69, {PSTEP}")
    a(f"s_cmp_eq_u32 s{S_W}, 0")
    a("s_cselect_b32 s69, 11, s69")
    XA = (8, 12); WA = (16, 20)
    XB = (28, 32); WB = (36, 40)
    def rd_list(ks, X, W, c_x, c_w0, c_w1a, c_w1b):
        return [f"ds_read_b128 v[{X[0]}:{X[0]+3}], v{c_x}",
                f"ds_read_b64_tr_b16 v[{W[0]}:{W[0]+1}], v{c_w0} offset:{(16*ks)*224}",
                f"ds_read_b64_tr_b16 v[{W[0]+2}:{W[0]+3}], v{c_w0} offset:{(16*ks+4)*224}",
                f"ds_read_b64_tr_b16 v[{W[1]}:{W[1]+1}], v{c_w1a}",
                f"ds_read_b64_tr_b16 v[{W[1]+2}:{W[1]+3}], v{c_w1b}",
                f"ds_read_b128 v[{X[1]}:{X[1]+3}], v{c_x} offset:2048"]
    def mf_rd(X, W, rds, first=False):
        rds = list(rds)
        for t in range(2):
            for u in range(2):
                d = 64 + (t * 2 + u) * 16
                c = "0" if first else f"v[{d}:{d+15}]"
                a(f"v_mfma_f32_32x32x16_bf16 v[{d}:{d+15}], v[{W[u]}:{W[u]+3}], v[{X[t]}:{X[t]+3}], {c}")
                for _ in range(3):
                    if rds: a(rds.pop(0))
    def cur(slot):
        for d, b in ((128, 53), (129, 55), (130, 56), (131, 57), (132, 54), (133, 58), (134, 59)):
            a(f"v_add_u32 v{d}, s{slot}, v{b}")
    RA = rd_list(0, XA, WA, 128, 129, 130, 131)
    RB = rd_list(1, XB, WB, 132, 129, 133, 134)
    a(f"s_mov_b32 s63, {SLOT}")
    a("s_mov_b32 s64, 0")
    a("s_barrier")
    stamp(a, 2)
    for r in rd_list(0, XA, WA, 53, 55, 56, 57): a(r)
    a("s_waitcnt lgkmcnt(0)")
    mf_rd(XA, WA, rd_list(1, XB, WB, 54, 55, 58, 59), first=True)
    a("s_branch L_c_mid")
    a.label("L_c_loop")
    a("s_waitcnt lgkmcnt(0)")
    mf_rd(XA, WA, RB)
    a.label("L_c_mid")
    cur(63)
    a("s_cmp_eq_u32 s64, s69")
    a("s_cbranch_scc1 L_c_side")
    a.label("L_c_noside")
    a("s_waitcnt lgkmcnt(0)")
    a("s_barrier")
    if "stagest" in FLAGS: stamp(a, 16, 64)
    mf_rd(XB, WB, RA)
    a(f"s_add_u32 s63, s63, {SLOT}")
    a(f"s_cmp_eq_u32 s63, {NS*SLOT}")
    a("s_cselect_b32 s63, 0, s63")
    a("s_add_u32 s64, s64, 1")
    a("s_cmp_lt_u32 s64, 16")
    a("s_cbranch_scc1 L_c_loop")
    a("s_branch L_c_p1end")
    a.label("L_c_side")
    a(f"s_cmp_eq_u32 s{S_W}, 0")
    a("s_cbranch_scc1 L_c_side10")
    a("global_load_dword v160, v[158:159], off")
    a("s_branch L_c_noside")
    a.label("L_c_side10")
    a("s_mov_b32 s69, 99")
    a("v_lshlrev_b32 v6, 7, v1")
    poll(a, "L_kv", S_DBG, 6, 7, 64, nwords=2, sleep=32)
    a("s_branch L_c_noside")
    a.label("L_c_p1end")
    stamp(a, 3)
    a("s_waitcnt lgkmcnt(0)")
    a("s_nop 7")
    a(f"s_lshl_b32 s66, s{S_MT}, 2")
    a("s_lshl_b32 s65, s60, 1")
    a("s_add_u32 s66, s66, s65")
    def h_tile(t, u):
        d = 64 + (t * 2 + u) * 16
        for j in range(8):
            a(f"v_mul_f32 v{d+j}, v{d+j}, v{d+8+j}")
        for j in range(4):
            a(f"v_cvt_pk_bf16_f32 v{d+j}, v{d+2*j}, v{d+2*j+1}")
        a(f"buffer_store_dwordx4 v[{d}:{d+3}], v2, s[{SRD_WS}:{SRD_WS+3}], s{67+t} offen offset:{1024*u} sc1")
    a("s_mul_i32 s67, s66, 144")
    a(f"s_mul_i32 s65, s{S_FS}, 7")
    a("s_add_u32 s67, s67, s65")
    a("s_lshl_b32 s65, s61, 1")
    a("s_add_u32 s67, s67, s65")
    a("s_lshl_b32 s67, s67, 10")
    a(f"s_add_u32 s67, s67, {WS_AF}")
    a(f"s_add_u32 s68, s67, {144*1024}")
    h_tile(0, 0)
    h_tile(1, 0)
    a("s_cmp_eq_u32 s61, 3")
    a("s_cbranch_scc1 L_c_qep")
    h_tile(0, 1)
    h_tile(1, 1)
    a("s_branch L_c_epdone")
    a.label("L_c_qep")
    a(f"s_lshl_b32 s65, s60, 12")
    a(f"s_add_u32 s65, s65, {QX}")
    a("v_add_u32 v6, s65, v2")
    for t in range(2):
        d = 64 + (t * 2 + 1) * 16
        for j in range(16):
            a(f"v_mul_f32 v{d+j}, {f32hex(QSCALE)}, v{d+j}")
        for j in range(8):
            a(f"v_cvt_pk_bf16_f32 v{d+j}, v{d+2*j}, v{d+2*j+1}")
        a(f"ds_write_b128 v6, v[{d}:{d+3}] offset:{t*2048}")
        a(f"ds_write_b128 v6, v[{d+4}:{d+7}] offset:{t*2048+1024}")
    a.label("L_c_epdone")
    SA = (32, 48); SB = (64, 80); OA = 96; OB = 112
    QA = 4; QB = 8; KF = (12, 16); VF = (20, 128)
    IDX = 28; AK = 29; AV = 30; VG = 31
    AKN = 136; AVN = 137; VB = 138; MA = 139; ONE = 140; NX = 141
    a("s_lshl_b32 s65, s72, 7")
    a(f"s_add_u32 s65, s65, {WS_G}")
    a("v_and_b32 v3, 31, v1")
    a("v_lshlrev_b32 v3, 2, v3")
    a(f"buffer_load_dword v{VG}, v3, s[{SRD_WS}:{SRD_WS+3}], s65 offen sc1")
    a(f"s_add_u32 s65, s71, {CROT}")
    a("s_lshl_b32 s65, s65, 12")
    a(f"v_add_u32 v{AK}, s65, v2")
    a("v_lshrrev_b32 v3, 5, v1")
    a("v_and_b32 v32, 15, v1")
    a("v_lshl_add_u32 v3, v3, 4, v32")
    a("v_lshlrev_b32 v3, 4, v3")
    a(f"v_add_u32 v{VB}, {L_V}, v3")
    a(f"v_add_u32 v{AV}, s65, v{VB}")
    a(f"v_mov_b32 v{IDX}, 0xdddddddd")
    a("v_and_b32 v3, 27, v1")
    a("v_cmp_eq_u32 vcc, 16, v3")
    a("v_mov_b32 v3, 0x3f803f80")
    a("s_lshl_b32 s65, s70, 2")
    a("v_cndmask_b32 v3, 0, v3, vcc")
    for b in VF:
        for i in range(8):
            a(f"v_mov_b32 v{b+i}, v3")
    a("s_mov_b32 s74, 0x0000ffff")
    a("s_mov_b32 s75, 0x0000ffff")
    a(f"s_add_u32 s65, s65, {MISC}")
    a(f"v_mov_b32 v{MA}, s65")
    a(f"v_mov_b32 v{ONE}, 1")
    a("s_lshl_b32 s65, s70, 11")
    a(f"s_add_u32 s65, s65, {QX}")
    a("v_add_u32 v3, s65, v2")
    a(f"v_mov_b32 v33, {M_CD}")
    a("s_waitcnt lgkmcnt(0)")
    for i in range(16):
        a(f"v_mov_b32 v{OA+i}, 0")
        a(f"v_mov_b32 v{OB+i}, 0")
    for i in range(8, 16):
        a(f"v_mov_b32 v{SB[1]+i}, 0")
    a("s_barrier")
    stamp(a, 4)
    a(f"ds_read_b128 v[{QA}:{QA+3}], v3")
    a(f"ds_read_b128 v[{KF[0]}:{KF[0]+3}], v{AK}")
    a(f"ds_read_b128 v[{QB}:{QB+3}], v3 offset:1024")
    a(f"ds_read_b128 v[{KF[1]}:{KF[1]+3}], v{AK} offset:1024")
    a("s_mov_b64 exec, s[74:75]")
    a(f"ds_read_b128 v[{VF[0]}:{VF[0]+3}], v{AV}")
    a(f"ds_read_b128 v[{VF[0]+4}:{VF[0]+7}], v{AV} offset:512")
    a("s_mov_b64 exec, 1")
    a(f"ds_add_u32 v33, v{ONE}")
    a("s_mov_b64 exec, -1")
    a("s_waitcnt lgkmcnt(0)")
    if "dumpq" in FLAGS:
        a("s_lshl_b32 s65, s72, 5")
        a(f"s_lshl_b32 s73, s{S_FS}, 1")
        a("s_add_u32 s65, s65, s73")
        a("s_lshl_b32 s65, s65, 10")
        a(f"s_add_u32 s65, s65, {WS_QF}")
        a(f"buffer_store_dwordx4 v[{QA}:{QA+3}], v2, s[{SRD_WS}:{SRD_WS+3}], s65 offen")
        a(f"buffer_store_dwordx4 v[{QB}:{QB+3}], v2, s[{SRD_WS}:{SRD_WS+3}], s65 offen offset:1024")
    a(f"v_mfma_f32_32x32x16_bf16 v[{SA[0]}:{SA[0]+15}], v[{KF[0]}:{KF[0]+3}], v[{QA}:{QA+3}], 0")
    a(f"v_mfma_f32_32x32x16_bf16 v[{SB[0]}:{SB[0]+15}], v[{KF[0]}:{KF[0]+3}], v[{QB}:{QB+3}], 0")
    a("s_nop 15")
    def smf(O, V, P):
        a(f"v_smfmac_f32_32x32x32_bf16 v[{O}:{O+15}], v[{V}:{V+3}], v[{P}:{P+7}], v{IDX}")
    UN = 4
    def tile(t):
        c = t & 1; n = c ^ 1
        sa, sb = SA[c], SB[c]
        def E(S, i): a(f"v_exp_f32 v{S+i}, v{S+i}")
        a("s_waitcnt lgkmcnt(0)")
        if t == 1:
            a(f"v_readfirstlane_b32 s73, v{NX}")
        if t + 2 < UN: a(f"ds_read_b128 v[{KF[c]}:{KF[c]+3}], v{AK} offset:{(t+2)*1024}")
        else:          a(f"ds_read_b128 v[{KF[c]}:{KF[c]+3}], v{AKN} offset:{(t+2-UN)*1024}")
        E(sa, 0); E(sa, 1)
        smf(OB, VF[n] + 4, SB[n] + 8)
        a("s_mov_b64 exec, s[74:75]")
        av, vo = (AV, (t + 1) * 1024) if t + 1 < UN else (AVN, 0)
        a(f"ds_read_b128 v[{VF[n]}:{VF[n]+3}], v{av} offset:{vo}")
        a(f"ds_read_b128 v[{VF[n]+4}:{VF[n]+7}], v{av} offset:{vo+512}")
        if t == 0:
            a("s_mov_b64 exec, 1")
            a(f"ds_add_rtn_u32 v{NX}, v{MA}, v{ONE}")
        a("s_mov_b64 exec, -1")
        if t == 1:
            a(f"s_add_u32 s65, s73, {CROT}")
            a("s_and_b32 s65, s65, 15")
            a("s_lshl_b32 s65, s65, 12")
        for i in range(2, 6): E(sa, i)
        a(f"v_mfma_f32_32x32x16_bf16 v[{SA[n]}:{SA[n]+15}], v[{KF[n]}:{KF[n]+3}], v[{QA}:{QA+3}], 0")
        if t == 1:
            a(f"v_add_u32 v{AKN}, s65, v2")
            a(f"v_add_u32 v{AVN}, s65, v{VB}")
        for i in range(6, 11): E(sa, i)
        smf(OA, VF[c], sa)
        for i in range(11, 16): E(sa, i)
        E(sb, 0); E(sb, 1)
        smf(OA, VF[c] + 4, sa + 8)
        for i in range(2, 6): E(sb, i)
        a(f"v_mfma_f32_32x32x16_bf16 v[{SB[n]}:{SB[n]+15}], v[{KF[n]}:{KF[n]+3}], v[{QB}:{QB+3}], 0")
        for i in range(6, 11): E(sb, i)
        smf(OB, VF[c], sb)
        if t == UN - 1:
            a(f"v_mov_b32 v{AK}, v{AKN}")
            a(f"v_mov_b32 v{AV}, v{AVN}")
        for i in range(11, 16): E(sb, i)
    a("s_mov_b32 s79, 0")
    a("s_mov_b32 s73, 0")
    a("s_cmp_lg_u32 s71, 0")
    a("s_cbranch_scc1 L_a_job")
    stamp(a, 6)
    a.label("L_a_loop")
    for t in range(UN):
        tile(t)
    a("s_cmp_eq_u32 s79, 0")
    a("s_cbranch_scc1 L_a_job")
    a.label("L_a_next")
    a(f"s_cmp_lt_u32 s73, {64//UN}")
    a("s_cbranch_scc1 L_a_loop")
    a("s_mov_b64 exec, 1")
    a(f"ds_add_rtn_u32 v{NX}, v{MA}, v{ONE} offset:16")
    a(f"v_mov_b32 v3, {M_GD}")
    a("s_mov_b64 exec, -1")
    smf(OB, VF[1] + 4, SB[1] + 8)
    a(f"s_mul_i32 s65, s70, {OXS}")
    a(f"s_add_u32 s65, s65, {OX}")
    a("v_add_u32 v32, s65, v2")
    a("v_lshrrev_b32 v33, 1, v2")
    a("v_add_u32 v33, s65, v33")
    a("s_waitcnt lgkmcnt(0)")
    a(f"v_readfirstlane_b32 s73, v{NX}")
    stamp(a, 5)
    a("s_nop 3")
    a("s_cmp_lg_u32 s73, 0")
    a("s_cbranch_scc1 L_a_second")
    a("s_mov_b64 exec, 1")
    a("s_mov_b32 s65, 0")
    a.label("L_a_gd")
    a("ds_read_b32 v34, v3")
    a("s_add_u32 s65, s65, 1")
    a("s_waitcnt lgkmcnt(0)")
    a("v_cmp_gt_u32 vcc, 4, v34")
    a(f"s_cmp_ge_u32 s65, {SPIN*4}")
    a("s_cbranch_scc1 L_a_gd2")
    a("s_nop 1")
    a("s_cbranch_vccnz L_a_gd")
    a.label("L_a_gd2")
    a("s_mov_b64 exec, -1")
    a(f"v_mov_b32 v{OA+9}, v{OB+8}")
    a(f"ds_write_b128 v32, v[{OA}:{OA+3}]")
    a(f"ds_write_b128 v32, v[{OA+4}:{OA+7}] offset:1024")
    a(f"ds_write_b128 v32, v[{OB}:{OB+3}] offset:2048")
    a(f"ds_write_b128 v32, v[{OB+4}:{OB+7}] offset:3072")
    a(f"ds_write_b64 v33, v[{OA+8}:{OA+9}] offset:4096")
    a("s_waitcnt lgkmcnt(0)")
    a("s_mov_b64 exec, 1")
    a(f"ds_write_b32 v{MA}, v{ONE} offset:32")
    a("s_endpgm")
    a.label("L_a_second")
    a("s_mov_b64 exec, 1")
    a("s_mov_b32 s65, 0")
    a.label("L_a_rdy")
    a(f"ds_read_b32 v34, v{MA} offset:32")
    a("s_add_u32 s65, s65, 1")
    a("s_waitcnt lgkmcnt(0)")
    a("v_cmp_eq_u32 vcc, 0, v34")
    a(f"s_cmp_ge_u32 s65, {SPIN*4}")
    a("s_cbranch_scc1 L_a_rdy2")
    a("s_nop 1")
    a("s_cbranch_vccnz L_a_rdy")
    a.label("L_a_rdy2")
    a("s_mov_b64 exec, -1")
    a("ds_read_b128 v[64:67], v32")
    a("ds_read_b128 v[68:71], v32 offset:1024")
    a("ds_read_b128 v[72:75], v32 offset:2048")
    a("ds_read_b128 v[76:79], v32 offset:3072")
    a("ds_read_b64 v[80:81], v33 offset:4096")
    a("s_mov_b32 s79, 0")
    a("s_waitcnt lgkmcnt(0)")
    for i in range(0, 8, 2):
        a(f"v_pk_add_f32 v[{OA+i}:{OA+i+1}], v[{OA+i}:{OA+i+1}], v[{64+i}:{65+i}]")
        a(f"v_pk_add_f32 v[{OB+i}:{OB+i+1}], v[{OB+i}:{OB+i+1}], v[{72+i}:{73+i}]")
    a(f"v_add_f32 v{OA+8}, v{OA+8}, v80")
    a(f"v_add_f32 v{OB+8}, v{OB+8}, v81")
    a.label("L_a_finloop")
    a(f"v_add_f32 v35, v{OA}, v{OA+1}")
    a(f"v_add_f32 v36, v{OA+2}, v{OA+3}")
    a(f"v_add_f32 v37, v{OA+4}, v{OA+5}")
    a(f"v_add_f32 v34, v{OA+6}, v{OA+7}")
    a("v_add_f32 v35, v35, v36")
    a("v_add_f32 v34, v34, v37")
    a("v_add_f32 v35, v35, v34")
    a(f"v_fma_f32 v35, v35, 0, v{OA+8}")
    a(f"v_cmp_nle_f32 vcc, {f32hex(2.0**-30)}, v35")
    a("s_mov_b64 s[76:77], vcc")
    a(f"v_cmp_nge_f32 vcc, {f32hex(2.0**30)}, v35")
    a("s_or_b64 s[76:77], s[76:77], vcc")
    a("s_cmp_lg_u64 s[76:77], 0")
    a("s_cbranch_scc1 L_a_fallback")
    a.label("L_a_fin")
    a(f"v_rcp_f32 v32, v{OA+8}")
    a("s_nop 0")
    a(f"v_mul_f32 v32, v32, v{VG}")
    for i in range(8):
        a(f"v_mul_f32 v{OA+i}, v{OA+i}, v32")
    for j in range(4):
        a(f"v_cvt_pk_bf16_f32 v{36+j}, v{OA+2*j}, v{OA+2*j+1}")
    for j in range(4):
        a(f"v_min_u32 v{36+j}, -2, v{36+j}")
    a(f"buffer_store_dwordx4 v[36:39], v2, s[{SRD_WS}:{SRD_WS+3}], s78 offen sc1")
    a("s_cmp_lg_u32 s79, 0")
    a("s_cbranch_scc1 L_a_done")
    a("s_mov_b32 s79, 1")
    a("s_add_u32 s78, s78, 1024")
    for i in range(9):
        a(f"v_mov_b32 v{OA+i}, v{OB+i}")
    for i in range(4):
        a(f"v_mov_b32 v{QA+i}, v{QB+i}")
    a("s_branch L_a_finloop")
    a.label("L_a_done")
    stamp(a, 7)
    a("s_endpgm")
    a.label("L_a_job")
    a("s_mov_b32 s79, 1")
    a("s_waitcnt vmcnt(0)")
    a("s_mov_b64 exec, 1")
    a(f"v_mov_b32 v3, {M_HD}")
    a(f"ds_add_u32 v3, v{ONE}")
    a("s_mov_b32 s65, 0")
    a.label("L_a_kvw")
    a(f"ds_read_b32 v142, v3 offset:4")
    a("s_add_u32 s65, s65, 1")
    a("s_waitcnt lgkmcnt(0)")
    a("v_cmp_gt_u32 vcc, 4, v142")
    a(f"s_cmp_ge_u32 s65, {SPIN*4}")
    a("s_cbranch_scc1 L_a_kvw2")
    a("s_nop 1")
    a("s_cbranch_vccnz L_a_kvw")
    a.label("L_a_kvw2")
    a("s_mov_b64 exec, -1")
    a("s_branch L_a_next")
    a.label("L_a_fallback")
    S = SA[1]; M = 3
    a(f"v_mov_b32 v{M}, 0xff800000")
    a(f"v_mov_b32 v{AK}, v2")
    a("s_mov_b32 s73, 0")
    a.label("L_fb1")
    a(f"ds_read_b128 v[{KF[0]}:{KF[0]+3}], v{AK}")
    a("s_waitcnt lgkmcnt(0)")
    a(f"v_mfma_f32_32x32x16_bf16 v[{S}:{S+15}], v[{KF[0]}:{KF[0]+3}], v[{QA}:{QA+3}], 0")
    a(f"v_add_u32 v{AK}, 1024, v{AK}")
    a("s_nop 15")
    for i in range(0, 16, 2):
        a(f"v_max3_f32 v{M}, v{M}, v{S+i}, v{S+i+1}")
    a("s_add_u32 s73, s73, 1")
    a("s_cmp_lt_u32 s73, 64")
    a("s_cbranch_scc1 L_fb1")
    a(f"v_mov_b32 v32, v{M}")
    a("s_nop 1")
    a(f"v_permlane32_swap_b32 v{M}, v32")
    a("s_nop 1")
    a(f"v_max_f32 v{M}, v{M}, v32")
    for i in range(16):
        a(f"v_mov_b32 v{OA+i}, 0")
    a(f"v_mov_b32 v{AK}, v2")
    a(f"v_mov_b32 v{AV}, v{VB}")
    a("s_mov_b32 s73, 0")
    a.label("L_fb2")
    a(f"ds_read_b128 v[{KF[0]}:{KF[0]+3}], v{AK}")
    a("s_mov_b64 exec, s[74:75]")
    a(f"ds_read_b128 v[{VF[0]}:{VF[0]+3}], v{AV}")
    a(f"ds_read_b128 v[{VF[0]+4}:{VF[0]+7}], v{AV} offset:512")
    a("s_mov_b64 exec, -1")
    a("s_waitcnt lgkmcnt(0)")
    a(f"v_mfma_f32_32x32x16_bf16 v[{S}:{S+15}], v[{KF[0]}:{KF[0]+3}], v[{QA}:{QA+3}], 0")
    a(f"v_add_u32 v{AK}, 1024, v{AK}")
    a(f"v_add_u32 v{AV}, 1024, v{AV}")
    a("s_nop 15")
    for i in range(16):
        a(f"v_sub_f32 v{S+i}, v{S+i}, v{M}")
    for i in range(16):
        a(f"v_exp_f32 v{S+i}, v{S+i}")
    a("s_nop 1")
    smf(OA, VF[0], S)
    smf(OA, VF[0] + 4, S + 8)
    a("s_nop 7")
    a("s_add_u32 s73, s73, 1")
    a("s_cmp_lt_u32 s73, 64")
    a("s_cbranch_scc1 L_fb2")
    a("s_nop 15")
    a("s_branch L_a_fin")

def gen_g1(a):
    ROLE[0] = "g"
    a("s_setprio %d" % (1 if "prio1" in FLAGS else 3))
    GUB = 512 * 1792 * 2
    a(f"s_sub_u32 s44, s{S_W}, 8")
    a("s_lshl_b32 s45, s44, 10")
    a(f"s_mul_i32 s76, s44, {PA_W}")
    a(f"s_add_u32 s76, s76, {PA}")
    a(f"s_lshl_b32 s77, s{S_MT}, 3")
    a(f"s_lshr_b32 s{T0}, s{S_FS}, 2")
    a(f"s_lshl_b32 s{T0}, s{T0}, 1")
    a(f"s_add_u32 s77, s77, s{T0}")
    a(f"s_and_b32 s{T0}, s{S_FS}, 1")
    a(f"s_add_u32 s77, s77, s{T0}")
    a("s_mov_b32 s78, 0xffff")
    a("s_mov_b32 s79, 0xffff")
    a("s_cmp_ge_u32 s2, 128")
    a("s_cbranch_scc1 L_g_noA1")
    make_srd(a, 48, S_WK, 16384)
    make_srd(a, 52, S_WV, 16384)
    make_srd(a, 56, S_GW, 1024)
    a(f"s_lshl_b32 s{T0}, s44, 12")
    a("s_mov_b32 m0, s76")
    a("v_and_b32 v7, 31, v1")
    for i in range(4):
        a(f"buffer_load_dwordx4 v2, s[48:51], s{T0} offen offset:{1024*i} lds")
    a("s_add_u32 m0, s76, 4224")
    a("v_lshlrev_b32 v7, 10, v7")
    for i in range(4):
        a(f"buffer_load_dwordx4 v2, s[52:55], s{T0} offen offset:{1024*i} lds")
    a("s_add_u32 m0, s76, 8448")
    a(f"s_lshl_b32 s{T0}, s77, 14")
    a("buffer_load_dwordx4 v2, s[56:59], 0 offen lds")
    a(f"s_lshl_b32 s{T1}, s44, 8")
    a(f"s_add_u32 s{T0}, s{T0}, s{T1}")
    a("v_lshrrev_b32 v6, 5, v1")
    a("v_lshl_add_u32 v7, v6, 4, v7")
    a("s_mov_b64 exec, s[78:79]")
    for s_ in range(8):
        a(f"buffer_load_dwordx4 v[{96+4*s_}:{99+4*s_}], v7, s[{SRD_X}:{SRD_X+3}], s{T0} offen offset:{32*s_}")
    a("s_mov_b64 exec, -1")
    a.label("L_g_noA1")
    make_srd(a, 48, S_WG, GUB)
    make_srd(a, 52, S_WU, GUB)
    def gu_voff(vd, s_idx):
        a(f"s_lshl_b32 s{T0}, s{s_idx}, 6")
        a(f"v_add_u32 v{vd}, s{T0}, v1")
        a(f"v_mul_u32_u24 v4, 4682, v{vd}")
        a("v_lshrrev_b32 v4, 16, v4")
        a(f"v_lshlrev_b32 v{vd}, 4, v{vd}")
        a(f"v_mul_u32_u24 v4, {3584-224}, v4")
        a(f"s_mul_i32 s{T0}, s{S_FS}, 224")
        a(f"v_add3_u32 v{vd}, v{vd}, v4, s{T0}")
    gu_voff(8, 44)
    a("v_lshrrev_b32 v4, 2, v1")
    a("v_lshrrev_b32 v5, 4, v1")
    a("v_and_b32 v10, 3, v1")
    a("v_xor_b32 v10, v10, v5")
    a("v_lshlrev_b32 v10, 4, v10")
    a("v_lshl_add_u32 v10, v4, 10, v10")
    a(f"s_lshl_b32 s{T0}, s{S_MT}, 7")
    a(f"s_lshl_b32 s{T1}, s44, 4")
    a(f"s_add_u32 s{T0}, s{T0}, s{T1}")
    a(f"s_lshl_b32 s{T0}, s{T0}, 10")
    a(f"v_add_u32 v10, s{T0}, v10")
    a("v_add_u32 v11, 0x10000, v10")
    a("s_cmp_eq_u32 s44, 3")
    a("s_cbranch_scc1 L_g_q")
    make_srd(a, 56, S_WG, GUB)
    make_srd(a, 60, S_WU, GUB)
    a("s_add_u32 s46, s44, 4")
    gu_voff(9, 46)
    a("v_mov_b32 v12, v9")
    a("s_add_u32 s64, s45, 4096")
    a(f"s_add_u32 s65, s45, {O_UP+4096}")
    a(f"s_mov_b32 s66, {32*3584}")
    a("s_branch L_g_qdone")
    a.label("L_g_q")
    make_srd(a, 56, S_WQ, 512 * 512 * 2)
    make_srd(a, 60, S_WQ, 512 * 512 * 2)
    a("v_lshlrev_b32 v4, 10, v4")
    a("v_and_b32 v9, 3, v1")
    a("v_lshl_add_u32 v9, v9, 4, v4")
    a(f"s_lshl_b32 s{T0}, s{S_FS}, 6")
    a(f"v_add_u32 v9, s{T0}, v9")
    a("v_add_u32 v12, 0x4000, v9")
    a(f"s_mov_b32 s64, {O_Q}")
    a(f"s_mov_b32 s65, {O_Q+1024}")
    a(f"s_mov_b32 s66, {32*1024}")
    a.label("L_g_qdone")
    a("s_mov_b32 s67, 0")
    a("s_mov_b32 s68, 0")
    a("s_mov_b32 s69, 0")
    def issue_stage(slot):
        a(f"s_add_u32 s{T0}, s45, s{slot}")
        a(f"s_add_u32 m0, s{T0}, {O_X}")
        a("s_nop 0")
        a(f"buffer_load_dwordx4 v10, s[{SRD_X}:{SRD_X+3}], s69 offen lds")
        a(f"s_add_u32 m0, s{T0}, {O_X+4096}")
        a("s_nop 0")
        a(f"buffer_load_dwordx4 v11, s[{SRD_X}:{SRD_X+3}], s69 offen lds")
        a(f"s_mov_b32 m0, s{T0}")
        a("s_add_u32 s69, s69, 64")
        a("buffer_load_dwordx4 v8, s[48:51], s67 offen lds")
        a(f"s_add_u32 m0, s{T0}, {O_UP}")
        a("s_nop 0")
        a("buffer_load_dwordx4 v8, s[52:55], s67 offen lds")
        a(f"s_add_u32 m0, s64, s{slot}")
        a(f"s_add_u32 s67, s67, {32*3584}")
        a("buffer_load_dwordx4 v9, s[56:59], s68 offen lds")
        a(f"s_add_u32 m0, s65, s{slot}")
        a("s_nop 0")
        a("buffer_load_dwordx4 v12, s[60:63], s68 offen lds")
        a("s_add_u32 s68, s68, s66")
        a(f"s_add_u32 s{slot}, s{slot}, {SLOT}")
        a(f"s_cmp_eq_u32 s{slot}, {NS*SLOT}")
        a(f"s_cselect_b32 s{slot}, 0, s{slot}")
    a("s_mov_b32 s70, 0")
    a("s_mov_b32 s71, 0")
    a.label("L_g_loop")
    issue_stage(70)
    a("s_add_u32 s71, s71, 1")
    a("s_cmp_gt_u32 s71, 7")
    a("s_cbranch_scc1 L_g_plain")
    a("s_cmp_eq_u32 s71, 2")
    a("s_cbranch_scc1 L_g_ev_pa")
    a(f"s_cmp_eq_u32 s71, {NPRE}")
    a("s_cbranch_scc1 L_g_ev_start")
    a("s_cmp_lt_u32 s71, 5")
    a("s_cbranch_scc1 L_g_loop")
    a("s_cmp_ge_u32 s2, 128")
    a("s_cbranch_scc1 L_g_plain")
    a("s_cmp_eq_u32 s71, 6")
    a("s_cbranch_scc1 L_g_ev_drain")
    a("s_cmp_eq_u32 s71, 7")
    a("s_cbranch_scc1 L_g_ev_sig")
    a.label("L_g_plain")
    a("s_cmp_eq_u32 s71, 16")
    a("s_cbranch_scc1 L_g_tail")
    a(f"s_waitcnt vmcnt({6*(NS-2)})")
    a("s_barrier")
    a("s_branch L_g_loop")
    a.label("L_g_ev_start")
    a(f"s_waitcnt vmcnt({6*(NPRE-1)}) lgkmcnt(0)")
    a("s_barrier")
    a("s_cmp_lt_u32 s2, 128")
    a("s_cbranch_scc1 L_g_ev_red")
    a("s_branch L_g_loop")
    a.label("L_g_ev_pa")
    a("s_cmp_ge_u32 s2, 128")
    a("s_cbranch_scc1 L_g_loop")
    tr_lane(a, 3, 4, 5, 6)
    a("v_mul_u32_u24 v6, 4224, v3")
    a("v_lshl_add_u32 v6, v4, 5, v6")
    a("v_add3_u32 v6, v6, v5, s76")
    a("v_lshrrev_b32 v7, 5, v1")
    a("v_lshlrev_b32 v7, 4, v7")
    a(f"s_lshl_b32 s{T0}, s44, 8")
    a(f"s_add_u32 s{T0}, s{T0}, s76")
    a(f"v_add_u32 v7, s{T0}, v7")
    a("s_waitcnt vmcnt(12)")
    stamp(a, 1)
    for s_ in range(8):
        for j in range(2):
            a(f"ds_read_b64_tr_b16 v[{128+4*s_+2*j}:{129+4*s_+2*j}], v6 offset:{(16*s_+4*j)*32}")
        if s_ == 3: a("s_waitcnt lgkmcnt(0)")
    a("s_waitcnt lgkmcnt(0)")
    for s_ in range(8):
        a(f"ds_read_b128 v[{16+4*s_}:{19+4*s_}], v7 offset:{8448+32*s_}")
    for s_ in range(8):
        c = "0" if s_ == 0 else "v[64:79]"
        a(f"v_mfma_f32_32x32x16_bf16 v[64:79], v[{128+4*s_}:{131+4*s_}], v[{96+4*s_}:{99+4*s_}], {c}")
    a("s_waitcnt lgkmcnt(0)")
    for s_ in range(8):
        c = "0" if s_ == 0 else "v[80:95]"
        a(f"v_mfma_f32_32x32x16_bf16 v[80:95], v[{16+4*s_}:{19+4*s_}], v[{96+4*s_}:{99+4*s_}], {c}")
    a("v_and_b32 v6, 31, v1")
    a("v_lshrrev_b32 v60, 5, v1")
    a("v_lshl_add_u32 v61, v6, 1, v60")
    a("v_lshlrev_b32 v61, 5, v61")
    a("v_add_u32 v7, s76, v61")
    a("v_lshlrev_b32 v60, 10, v60")
    a("v_lshl_add_u32 v60, v6, 2, v60")
    a("v_add_u32 v60, s76, v60")
    a("v_lshlrev_b32 v6, 2, v6")
    a("v_add_u32 v5, s76, v6")
    a("ds_write_b128 v7, v[64:67]")
    a("ds_write_b128 v7, v[68:71] offset:16")
    for j in range(8):
        a(f"ds_write_b32 v60, v{72+j} offset:{2048+128*j}")
    a("s_nop 3")
    a("ds_write_b32 v5, v80 offset:4096")
    a("s_branch L_g_loop")
    a.label("L_g_ev_red")
    a("s_cmp_eq_u32 s44, 3")
    a("s_cbranch_scc1 L_g_loop")
    a("s_cmp_eq_u32 s44, 2")
    a("s_cbranch_scc1 L_g_pa_z")
    a(f"s_lshr_b32 s{T0}, s77, 1")
    a(f"s_lshl_b32 s{T0}, s{T0}, 10")
    a(f"s_and_b32 s{T1}, s77, 1")
    a(f"s_lshl_b32 s{T1}, s{T1}, 8")
    a(f"s_add_u32 s{T0}, s{T0}, s{T1}")
    a("v_and_b32 v6, 31, v1")
    a("v_lshrrev_b32 v60, 5, v1")
    a("v_lshl_add_u32 v61, v6, 1, v60")
    a("v_lshlrev_b32 v61, 5, v61")
    a("s_cmp_eq_u32 s44, 0")
    a("s_cbranch_scc1 L_g_pa_red")
    a(f"s_add_u32 s{T0}, s{T0}, s{T1}")
    a("s_mov_b32 s78, -1")
    a("s_mov_b32 s79, 0")
    a("v_bfe_u32 v60, v1, 2, 1")
    a("v_lshlrev_b32 v60, 3, v60")
    a("v_bfe_u32 v61, v1, 3, 1")
    a("v_lshl_add_u32 v60, v61, 2, v60")
    a("v_and_b32 v61, 3, v1")
    a("v_add_u32 v60, v60, v61")
    a("v_lshlrev_b32 v60, 7, v60")
    a("v_lshrrev_b32 v61, 4, v1")
    a("v_lshl_add_u32 v61, v61, 5, v60")
    a("v_add_u32 v61, 2048, v61")
    a(f"s_add_u32 s{T0}, s{T0}, {WS_VF}")
    a.label("L_g_pa_red")
    a(f"v_add_u32 v61, {PA}, v61")
    for w in range(4):
        a(f"ds_read_b128 v[{64+8*w}:{67+8*w}], v61 offset:{w*PA_W}")
        a(f"ds_read_b128 v[{68+8*w}:{71+8*w}], v61 offset:{w*PA_W+16}")
    a("s_waitcnt lgkmcnt(0)")
    for w in (2, 1):
        for q in range(w):
            for j in range(0, 8, 2):
                d = 64 + 8 * q + j; e = d + 8 * w
                a(f"v_pk_add_f32 v[{d}:{d+1}], v[{d}:{d+1}], v[{e}:{e+1}]")
    for j in range(4):
        a(f"v_cvt_pk_bf16_f32 v{140+j}, v{64+2*j}, v{65+2*j}")
    a("s_mov_b64 exec, s[78:79]")
    a(f"buffer_store_dwordx4 v[140:143], v2, s[{SRD_WS}:{SRD_WS+3}], s{T0} offen sc1")
    a("s_mov_b64 exec, -1")
    a("s_branch L_g_loop")
    a.label("L_g_pa_z")
    a("v_and_b32 v6, 15, v1")
    a("v_lshlrev_b32 v6, 2, v6")
    a(f"v_add_u32 v60, {PA}, v6")
    for w in range(4):
        a(f"ds_read_b32 v{64+w}, v60 offset:{w*PA_W+4096}")
    a(f"s_cmp_lg_u32 s{S_FS}, 0")
    a("s_cbranch_scc1 L_g_nofl")
    a("v_mov_b32 v7, 0")
    a(f"s_lshl_b32 s{T0}, s{S_MT}, 7")
    a(f"s_add_u32 s{T0}, s{T0}, {WS_FL}")
    a(f"buffer_store_dword v7, v7, s[{SRD_WS}:{SRD_WS+3}], s{T0} offen sc1")
    a.label("L_g_nofl")
    a("s_waitcnt lgkmcnt(0)")
    for w in range(1, 4):
        a(f"v_add_f32 v64, v64, v{64+w}")
    a(f"v_mul_f32 v64, {f32hex(-LOG2E)}, v64")
    a("v_exp_f32 v64, v64")
    a(f"s_lshl_b32 s{T0}, s77, 6")
    a("v_add_f32 v64, 1.0, v64")
    a("v_rcp_f32 v140, v64")
    a(f"s_add_u32 s{T0}, s{T0}, {WS_G}")
    a(f"buffer_store_dword v140, v6, s[{SRD_WS}:{SRD_WS+3}], s{T0} offen sc1")
    a("s_branch L_g_loop")
    a.label("L_g_ev_drain")
    a(f"s_waitcnt vmcnt({6*(6-NPRE)})")
    a("s_branch L_g_plain")
    a.label("L_g_ev_sig")
    a("s_cmp_lg_u32 s44, 0")
    a("s_cbranch_scc1 L_g_plain")
    a("s_and_b32 s72, s2, 1")
    a("s_lshl_b32 s72, s72, 7")
    a("v_mov_b32 v6, s72")
    a("v_mov_b32 v7, 1")
    a("s_mov_b64 exec, 1")
    a(f"global_atomic_add v6, v7, s[{S_DBG}:{S_DBG+1}] sc1")
    a("s_mov_b64 exec, -1")
    stamp(a, 2)
    a("s_branch L_g_plain")
    a.label("L_g_tail")
    groups = kv_pieces()
    def issue_kv(pieces):
        n = (len(pieces) + 3) // 4
        for q in range(n):
            idx = [pieces[min(4 * q + j, len(pieces) - 1)] for j in range(4)]
            if idx == [idx[0] + k for k in range(4)]:
                a(f"s_add_u32 s{T0}, s45, {idx[0]*1024}")
            else:
                a(f"s_mov_b32 s{T0}, {idx[0]*1024}")
                for j in range(1, 4):
                    a(f"s_cmp_eq_u32 s44, {j}")
                    a(f"s_cselect_b32 s{T0}, {idx[j]*1024}, s{T0}")
            a(f"s_mov_b32 m0, s{T0}")
            a("s_nop 0")
            a(f"buffer_load_dwordx4 v2, s[{SRD_WS}:{SRD_WS+3}], s{T0} offen sc1 lds")
        return n
    kv_out = 0
    for s in range(11, 16):
        ring_after = max(0, 15 - (s + 1)) * 6
        if s < 15:
            a(f"s_waitcnt vmcnt({min(63, ring_after + kv_out)})")
        a("s_barrier")
        last_n = issue_kv(groups[s])
        kv_out += last_n
    a("v_cmp_gt_u32 vcc, 4, v1")
    a("v_lshlrev_b32 v3, 2, v1")
    a(f"v_add_u32 v3, {MISC}, v3")
    a("v_cndmask_b32 v4, 0, 2, vcc".replace("v_cndmask_b32 ", "v_cndmask_b32_e64 "))
    a("s_mov_b64 exec, 0xffff")
    a("ds_write_b32 v3, v4")
    a("s_mov_b64 exec, -1")
    a(f"s_waitcnt vmcnt({last_n}) lgkmcnt(0)")
    a("s_barrier")
    a(f"v_mov_b32 v3, {M_KV}")
    a("v_mov_b32 v4, 1")
    a("s_waitcnt vmcnt(0)")
    a("s_mov_b64 exec, 1")
    a("ds_add_u32 v3, v4")
    a("s_mov_b64 exec, -1")
    a("s_branch L_g2")

def gen_g2(a):
    ROLE[0] = "g"
    a.label("L_g2")
    stamp(a, 4)
    ACC = 64; AFR = 16; WF = 40
    WO = 128
    make_srd(a, 48, S_WD, 1792 * 512 * 2)
    make_srd(a, 52, S_WO, 512 * 512 * 2)
    make_srd(a, 56, S_OUT, 2048 * 512 * 2)
    a("v_lshlrev_b32 v3, 7, v1")
    a("s_lshr_b32 s64, s2, 3")
    a(f"s_mul_i32 s65, s64, 57344")
    a(f"s_lshl_b32 s{T0}, s44, 14")
    a(f"s_add_u32 s65, s65, s{T0}")
    a("buffer_load_dword v14, v3, s[48:51], s65 offen")
    a("s_add_u32 s65, s65, 8192")
    a("s_cmp_eq_u32 s44, 3")
    a("s_cbranch_scc1 L_g_pfo")
    a("buffer_load_dword v15, v3, s[48:51], s65 offen")
    a("s_branch L_g_pfd")
    a.label("L_g_pfo")
    a("s_lshl_b32 s65, s64, 14")
    a("buffer_load_dword v15, v3, s[52:55], s65 offen")
    a("s_add_u32 s65, s65, 8192")
    a("buffer_load_dword v14, v3, s[52:55], s65 offen")
    a.label("L_g_pfd")
    a("v_lshrrev_b32 v3, 3, v1")
    a("v_bfe_u32 v4, v1, 4, 1")
    a("v_lshlrev_b32 v4, 2, v4")
    a("v_and_b32 v5, 7, v1")
    a("v_xor_b32 v5, v5, v4")
    a("v_lshlrev_b32 v5, 4, v5")
    a("v_lshl_add_u32 v5, v3, 10, v5")
    a(f"s_lshl_b32 s{T0}, s{S_CT}, 7")
    a(f"v_add_u32 v5, s{T0}, v5")
    a("v_add_u32 v8, 0x2000, v5")
    a("v_lshrrev_b32 v3, 4, v1")
    a("v_bfe_u32 v4, v1, 2, 2")
    a("v_lshrrev_b32 v6, 1, v3")
    a("v_lshl_add_u32 v6, v6, 3, v4")
    a("v_lshlrev_b32 v6, 7, v6")
    a("v_lshrrev_b32 v4, 1, v4")
    a("v_lshl_add_u32 v6, v4, 6, v6")
    a("v_and_b32 v3, 1, v3")
    a("v_lshl_add_u32 v6, v3, 5, v6")
    a("v_and_b32 v3, 1, v1")
    a("v_lshl_add_u32 v6, v3, 4, v6")
    a("v_bfe_u32 v3, v1, 1, 1")
    a("v_lshl_add_u32 v6, v3, 3, v6")
    a(f"s_mul_i32 s46, s44, {GS_W}")
    a(f"s_add_u32 s46, s46, {GS}")
    a("v_add_u32 v6, s46, v6")
    a("v_xor_b32 v7, 64, v6")
    a(f"v_add_u32 v9, {144*1024}, v2")
    for i in range(64):
        a(f"v_mov_b32 v{ACC+i}, 0")
    a(f"s_lshl_b32 s{T0}, s{S_TP}, 8")
    a(f"s_add_u32 s{T0}, s{T0}, {WS_G}")
    a("v_and_b32 v3, 31, v1")
    a("v_lshlrev_b32 v3, 2, v3")
    a(f"buffer_load_dword v12, v3, s[{SRD_WS}:{SRD_WS+3}], s{T0} offen sc1")
    a(f"buffer_load_dword v13, v3, s[{SRD_WS}:{SRD_WS+3}], s{T0} offen offset:128 sc1")
    a(f"s_mul_i32 s64, s44, {28*16384}")
    a(f"s_lshl_b32 s{T0}, s{S_TP}, 1")
    a(f"s_mul_i32 s65, s{T0}, 144")
    a("s_mov_b32 s72, s65")
    a(f"s_mul_i32 s{T1}, s44, 28")
    a(f"s_add_u32 s65, s65, s{T1}")
    a("s_lshl_b32 s65, s65, 10")
    a(f"s_add_u32 s65, s65, {WS_AF}")
    a("s_cmp_lg_u32 s44, 0")
    a("s_cbranch_scc1 L_g_nosig")
    a(f"v_mov_b32 v3, {M_HD}")
    a("s_mov_b64 exec, 1")
    a("s_mov_b32 s71, 0")
    a.label("L_g_hd")
    a("ds_read_b32 v4, v3")
    a("s_add_u32 s71, s71, 1")
    a("s_waitcnt lgkmcnt(0)")
    a("v_cmp_gt_u32 vcc, 8, v4")
    a(f"s_cmp_ge_u32 s71, {SPIN*4}")
    a("s_cbranch_scc1 L_g_hd2")
    a("s_sleep 2")
    a("s_cbranch_vccnz L_g_hd")
    a.label("L_g_hd2")
    a(f"s_lshl_b32 s{T0}, s{S_MT}, 7")
    a(f"s_add_u32 s{T0}, s{T0}, {WS_FL}")
    a(f"v_mov_b32 v3, s{T0}")
    a("v_mov_b32 v4, 1")
    a(f"global_atomic_add v3, v4, s[{S_WS}:{S_WS+1}] sc1")
    a("s_mov_b64 exec, -1")
    a.label("L_g_nosig")
    a(f"s_lshr_b32 s{T0}, s{S_TP}, 1")
    a(f"s_lshl_b32 s{T0}, s{T0}, 7")
    a(f"s_add_u32 s73, s{T0}, {WS_FL}")
    a("v_mov_b32 v3, s73")
    poll(a, "L_h", S_WS, 3, 4, 16, sleep=16)
    a(f"v_mov_b32 v3, {M_CD}")
    a("s_mov_b32 s71, 0")
    a.label("L_g_qr")
    a("ds_read_b32 v4, v3")
    a("s_add_u32 s71, s71, 1")
    a("s_waitcnt lgkmcnt(0)")
    a("v_cmp_gt_u32 vcc, 8, v4")
    a(f"s_cmp_ge_u32 s71, {SPIN*4}")
    a("s_cbranch_scc1 L_g_qr2")
    a("s_nop 1")
    a("s_cbranch_vccnz L_g_qr")
    a.label("L_g_qr2")
    stamp(a, 5)
    def issue(sl, srd):
        a(f"s_add_u32 m0, s46, {sl*2048}")
        a("s_nop 0")
        a(f"buffer_load_dwordx4 v5, s[{srd}:{srd+3}], s64 offen lds")
        a(f"s_add_u32 m0, s46, {sl*2048+1024}")
        a("s_nop 0")
        a(f"buffer_load_dwordx4 v8, s[{srd}:{srd+3}], s64 offen lds")
        a("s_add_u32 s64, s64, 16384")
    def issue_act(sl):
        r = AFR + sl * 8
        a(f"buffer_load_dwordx4 v[{r}:{r+3}], v2, s[{SRD_WS}:{SRD_WS+3}], s65 offen sc1")
        a(f"buffer_load_dwordx4 v[{r+4}:{r+7}], v9, s[{SRD_WS}:{SRD_WS+3}], s65 offen sc1")
        a("s_add_u32 s65, s65, 1024")
    def trreads(sl, dst):
        a(f"ds_read_b64_tr_b16 v[{dst}:{dst+1}], v6 offset:{sl*2048}")
        a(f"ds_read_b64_tr_b16 v[{dst+2}:{dst+3}], v6 offset:{sl*2048+512}")
        a(f"ds_read_b64_tr_b16 v[{dst+4}:{dst+5}], v7 offset:{sl*2048}")
        a(f"ds_read_b64_tr_b16 v[{dst+6}:{dst+7}], v7 offset:{sl*2048+512}")
    def mf4(w, r):
        for t in range(2):
            for c in range(2):
                d = ACC + (t * 2 + c) * 16
                a(f"v_mfma_f32_32x32x16_bf16 v[{d}:{d+15}], v[{w+4*c}:{w+4*c+3}], v[{r+4*t}:{r+4*t+3}], v[{d}:{d+15}]")
    for sl in range(3):
        issue(sl, 48); issue_act(sl)
    WF2 = (WF, 48)
    def dstep(sl, wcur, wnext, issue_next, rd_next, vm):
        r = AFR + sl * 8
        def mf(t, c):
            if "nog" in FLAGS: return
            d = ACC + (t * 2 + c) * 16
            a(f"v_mfma_f32_32x32x16_bf16 v[{d}:{d+15}], v[{wcur+4*c}:{wcur+4*c+3}], v[{r+4*t}:{r+4*t+3}], v[{d}:{d+15}]")
        a("s_waitcnt lgkmcnt(0)")
        mf(0, 0)
        if issue_next:
            a(f"s_add_u32 m0, s46, {sl*2048}")
            a("s_nop 0")
            a(f"buffer_load_dwordx4 v5, s[48:51], s64 offen lds")
            a(f"s_add_u32 m0, s46, {sl*2048+1024}")
            a("s_nop 0")
            a(f"buffer_load_dwordx4 v8, s[48:51], s64 offen lds")
            a("s_add_u32 s64, s64, 16384")
        mf(0, 1)
        if issue_next:
            a(f"buffer_load_dwordx4 v[{r}:{r+3}], v2, s[{SRD_WS}:{SRD_WS+3}], s65 offen sc1")
        if rd_next:
            a(f"s_waitcnt vmcnt({vm})")
        mf(1, 0)
        if rd_next:
            trreads((sl + 1) % 3, wnext)
        mf(1, 1)
        if issue_next:
            a(f"buffer_load_dwordx4 v[{r+4}:{r+7}], v9, s[{SRD_WS}:{SRD_WS+3}], s65 offen sc1")
            a("s_add_u32 s65, s65, 1024")
    a("s_waitcnt vmcnt(8)")
    trreads(0, WF2[0])
    a("s_mov_b32 s71, 0")
    a.label("L_d_loop")
    for st in range(6):
        dstep(st % 3, WF2[st % 2], WF2[(st + 1) % 2], True, True, 7)
    a("s_add_u32 s71, s71, 1")
    a("s_cmp_lt_u32 s71, %d" % (1 if "nog2" in FLAGS else 4))
    a("s_cbranch_scc1 L_d_loop")
    dstep(0, WF2[0], WF2[1], True, True, 7)
    dstep(1, WF2[1], WF2[0], False, True, 4)
    dstep(2, WF2[0], WF2[1], False, True, 0)
    dstep(0, WF2[1], WF2[0], False, False, 0)
    stamp(a, 6)
    a(f"s_mul_i32 s64, s44, {8*16384}")
    WOR = [128, 136, 144, 152, 16, 24, 32, 40]
    for sl in range(3):
        issue(sl, 52)
    a("v_sub_f32 v12, 1.0, v12")
    a("v_sub_f32 v13, 1.0, v13")
    a("s_nop 7")
    for t in range(2):
        for i in range(32):
            a(f"v_mul_f32 v{ACC+t*32+i}, v{ACC+t*32+i}, v{12+t}")
    for k in range(8):
        sl = k % 3
        left = min(8, k + 3) - k - 1
        a(f"s_waitcnt vmcnt({2*left})")
        trreads(sl, WOR[k])
        a("s_waitcnt lgkmcnt(0)")
        if k + 3 < 8:
            issue(sl, 52)
    a(f"v_mov_b32 v3, {M_GD}")
    a("v_mov_b32 v4, 1")
    a("s_mov_b64 exec, 1")
    a("ds_add_u32 v3, v4")
    a(f"s_lshl_b32 s{T1}, s44, 3")
    a(f"s_add_u32 s65, s72, s{T1}")
    a("s_add_u32 s65, s65, 112")
    a("s_lshl_b32 s65, s65, 10")
    a(f"s_add_u32 s65, s65, {WS_AF}")
    a("s_add_u32 s66, s65, 4096")
    a(f"s_lshl_b32 s{T0}, s44, 2")
    a(f"s_add_u32 s{T0}, s{T0}, {M_CNT}")
    a(f"v_mov_b32 v3, s{T0}")
    a("s_mov_b32 s71, 0")
    a.label("L_g_cd")
    a("ds_read_b32 v4, v3")
    a("s_add_u32 s71, s71, 1")
    a("s_waitcnt lgkmcnt(0)")
    a(f"v_cmp_gt_u32 vcc, {GATE}, v4")
    a(f"s_cmp_ge_u32 s71, {SPIN}")
    a("s_cbranch_scc1 L_g_cd2")
    a("s_sleep 4")
    a("s_cbranch_vccnz L_g_cd")
    a.label("L_g_cd2")
    a("s_mov_b64 exec, -1")
    stamp(a, 7)
    AR = [48, 56, 8, 48, WOR[0], 56, WOR[1], 8]
    a("v_mov_b32 v160, v9")
    a("s_mov_b32 s71, 0")
    def issue_o(k):
        r = AR[k]
        so = 65 if k < 4 else 66
        a(f"buffer_load_dwordx4 v[{r}:{r+3}], v2, s[{SRD_WS}:{SRD_WS+3}], s{so} offen offset:{(k%4)*1024} sc1")
        a(f"buffer_load_dwordx4 v[{r+4}:{r+7}], v160, s[{SRD_WS}:{SRD_WS+3}], s{so} offen offset:{(k%4)*1024} sc1")
    after = {0: [3, 4], 1: [5, 6], 2: [7]}
    issued = 3
    for k in range(3): issue_o(k)
    for k in range(8):
        r = AR[k]
        a.label(f"L_o_chk{k}")
        a(f"s_waitcnt vmcnt({2*(issued-k-1)})")
        a(f"v_max3_u32 v3, v{r}, v{r+1}, v{r+2}")
        a(f"v_max3_u32 v4, v{r+3}, v{r+4}, v{r+5}")
        a(f"v_max3_u32 v3, v3, v{r+6}, v{r+7}")
        a("v_max_u32 v3, v3, v4")
        a("v_cmp_eq_u32 vcc, -1, v3")
        a(f"s_cmp_ge_u32 s71, {SPIN}")
        a(f"s_cbranch_scc1 L_o_ok{k}")
        a("s_add_u32 s71, s71, 1")
        a(f"s_cbranch_vccz L_o_ok{k}")
        a("s_waitcnt vmcnt(0)")
        for kk in range(k, issued): issue_o(kk)
        a(f"s_branch L_o_chk{k}")
        a.label(f"L_o_ok{k}")
        mf4(WOR[k], r)
        for kk in after.get(k, []):
            issue_o(kk); issued += 1
    a("s_barrier")
    stamp(a, 8)
    a("s_lshl_b32 s65, s44, 14")
    a("v_add_u32 v3, s65, v2")
    a("s_nop 15")
    for i in range(16):
        a(f"ds_write_b128 v3, v[{ACC+4*i}:{ACC+4*i+3}] offset:{i*1024}")
    a("s_lshl_b32 s65, s44, 12")
    a("v_add_u32 v3, s65, v2")
    a("s_waitcnt lgkmcnt(0)")
    a("s_barrier")
    for w in range(4):
        for q in range(4):
            a(f"ds_read_b128 v[{ACC+16*w+4*q}:{ACC+16*w+4*q+3}], v3 offset:{w*16384+q*1024}")
    a("s_lshr_b32 s65, s44, 1")
    a("s_lshl_b32 s65, s65, 5")
    a(f"s_lshl_b32 s{T0}, s{S_TP}, 6")
    a(f"s_add_u32 s65, s65, s{T0}")
    a("s_lshl_b32 s65, s65, 10")
    a(f"s_lshl_b32 s{T0}, s{S_CT}, 7")
    a(f"s_add_u32 s65, s65, s{T0}")
    a(f"s_and_b32 s{T0}, s44, 1")
    a(f"s_lshl_b32 s{T0}, s{T0}, 6")
    a(f"s_add_u32 s65, s65, s{T0}")
    a("v_and_b32 v3, 31, v1")
    a("v_lshlrev_b32 v3, 10, v3")
    a("v_lshrrev_b32 v4, 5, v1")
    a("v_lshl_add_u32 v3, v4, 4, v3")
    a("s_waitcnt lgkmcnt(0)")
    for w in range(1, 4):
        for i in range(16):
            a(f"v_add_f32 v{ACC+i}, v{ACC+i}, v{ACC+16*w+i}")
    for j in range(8):
        a(f"v_cvt_pk_bf16_f32 v{ACC+j}, v{ACC+2*j}, v{ACC+2*j+1}")
    a(f"buffer_store_dwordx4 v[{ACC}:{ACC+3}], v3, s[56:59], s65 offen")
    a(f"buffer_store_dwordx4 v[{ACC+4}:{ACC+7}], v3, s[56:59], s65 offen offset:32")
    stamp(a, 9)

def main(out):
    a = Asm()
    gen(a)
    txt = HEADER
    txt += f"; @launch grid=(256,1,1) block=(768,1,1) lds={LDS}\n"
    txt += '.amdgcn_target "amdgcn-amd-amdhsa--gfx950"\n.text\n' + a.text()
    txt += '.section .rodata,"a"\n'
    txt += kernel_desc(KN, 168)
    open(out, "w").write(txt)

if __name__ == "__main__":
    if "stamps" in sys.argv: STAMPS = True
    FLAGS.update(sys.argv[2:])
    if "pre3" in FLAGS: NPRE = 3
    for f in list(FLAGS):
        if f.startswith("ninit="): NINIT = int(f[6:])
        if f.startswith("pstep="): PSTEP = int(f[6:])
    main(sys.argv[1] if len(sys.argv) > 1 else f"cdna_kernels/{NAME}.s")
```

```python
import sys, math
from common import *

WS_KF = 0
WS_VF = 65536
WS_G = 131072
WS_FL = 0x30000
WS_QF = 0x40000
WS_AF = 0x400000
WS_ST = 0x2000000
WS_BYTES = 0x10000000
LOG2E = 1.4426950408889634
QSCALE = 0.25 * LOG2E
STAMPS = False
FLAGS = set()
KN = NAME + "_kernel"

SLOT = 26624; NS = 5; NPRE = 4; ND = 7
O_X = 18432; O_Q = 16384
B_UP = 6176
WS_QH = 0x1000000
PA = 3 * SLOT; PA_W = 9472
L_K = 0; L_V = 65536
GS = 131072; GS_W = 6144
QX = 131072
MISC = 162304
OX = 131072; OXS = 4608
M_CNT, M_FIN, M_RDY, M_GD, M_CD, M_HD, M_KV = MISC, MISC + 16, MISC + 32, MISC + 48, MISC + 52, MISC + 56, MISC + 60
CROT = 7
LDS = 163840
SPIN = 200000
GATE = 18
NINIT = 4
PSTEP = 2

S_X, S_WQ, S_WK, S_WV, S_WO = 4, 6, 8, 10, 12
S_WG, S_WU, S_WD, S_GW = 16, 18, 20, 22
S_OUT, S_DBG, S_WS = 24, 26, 28
S_W, S_MT, S_FS, S_TP, S_CT = 30, 31, 32, 33, 34
T0, T1, T2 = 14, 15, 35
SRD_X, SRD_WS = 36, 40

DBGMAP_C = {2: 3, 3: 4, 6: 5, 5: 6}
DBGMAP_G = {1: 8, 2: 9, 5: 10, 6: 11, 7: 12, 8: 13}
ROLE = ["c"]
def dstamp(a, idx):
    u = a.new_label("ds")
    if idx == 0 or idx == 9:
        a("s_memrealtime s[92:93]")
        a("s_waitcnt lgkmcnt(0)")
        if idx == 0: a("s_not_b32 s92, s92")
        a(f"s_cmp_lg_u32 s{S_W}, 8")
        a(f"s_cbranch_scc1 {u}")
        a("v_mov_b32 v164, s92")
        a(f"v_mov_b32 v165, {4 if idx == 0 else 8}")
        a("s_mov_b64 exec, 1")
        a(f"global_atomic_umax v165, v164, s[{S_DBG}:{S_DBG+1}] sc1")
        a("s_mov_b64 exec, -1")
        a.label(u)
        return
    m = DBGMAP_C if ROLE[0] == "c" else DBGMAP_G
    if idx not in m: return
    a(f"s_lshl_b32 s94, s2, 4")
    a(f"s_add_u32 s94, s94, s{S_W}")
    a(f"s_cmp_lg_u32 s94, {0 if ROLE[0] == 'c' else 8}")
    a(f"s_cbranch_scc1 {u}")
    a("s_memrealtime s[92:93]")
    a("s_waitcnt lgkmcnt(0)")
    a("v_mov_b32 v164, s92")
    a(f"v_mov_b32 v165, {4*m[idx]}")
    a(f"global_store_dword v165, v164, s[{S_DBG}:{S_DBG+1}]")
    a.label(u)

def stamp(a, idx, sreg=None):
    if "dstamp" in FLAGS: return dstamp(a, idx)
    if not STAMPS: return
    a("s_memtime s[90:91]")
    a("s_memrealtime s[92:93]")
    a(f"s_lshl_b32 s94, s2, 4")
    a(f"s_add_u32 s94, s94, s{S_W}")
    a(f"s_lshl_b32 s94, s94, 8")
    a(f"s_add_u32 s94, s94, {WS_ST + idx*8}")
    if sreg is not None:
        a(f"s_lshl_b32 s95, s{sreg}, 3")
        a("s_add_u32 s94, s94, s95")
    a("s_waitcnt lgkmcnt(0)")
    a("v_mov_b32 v164, s90")
    a("v_mov_b32 v165, s92")
    a("v_mov_b32 v166, 0")
    a(f"buffer_store_dwordx2 v[164:165], v166, s[{SRD_WS}:{SRD_WS+3}], s94 offen")

def tr_lane(a, v_mat, v_row, v_colb, t):
    a(f"v_lshrrev_b32 v{v_mat}, 4, v1")
    a(f"v_bfe_u32 v{v_row}, v1, 2, 2")
    a(f"v_and_b32 v{t}, 1, v1")
    a(f"v_lshlrev_b32 v{v_colb}, 4, v{t}")
    a(f"v_bfe_u32 v{t}, v1, 1, 1")
    a(f"v_lshl_or_b32 v{v_colb}, v{t}, 3, v{v_colb}")
    a(f"v_lshrrev_b32 v{t}, 1, v{v_mat}")
    a(f"v_lshl_add_u32 v{v_row}, v{t}, 3, v{v_row}")
    a(f"v_and_b32 v{v_mat}, 1, v{v_mat}")

def poll(a, nm, base_pair, voff_reg, vtmp, target, nwords=1, sleep=4):
    a(f"s_mov_b64 exec, {(1 << nwords) - 1}")
    a(f"s_mov_b32 s{T2}, 0")
    a.label(f"{nm}_poll")
    a(f"global_load_dword v{vtmp}, v{voff_reg}, s[{base_pair}:{base_pair+1}] sc1")
    a(f"s_add_u32 s{T2}, s{T2}, 1")
    a("s_waitcnt vmcnt(0)")
    a(f"v_cmp_gt_u32 vcc, {target}, v{vtmp}")
    a(f"s_cmp_ge_u32 s{T2}, {SPIN}")
    a(f"s_cbranch_scc1 {nm}_pdone")
    a("s_nop 1")
    a(f"s_cbranch_vccz {nm}_pdone")
    a(f"s_sleep {sleep}")
    a(f"s_branch {nm}_poll")
    a.label(f"{nm}_pdone")
    a("s_mov_b64 exec, -1")

def kv_pieces():
    last = {s % NS: s for s in range(16)}
    groups = {}
    for i in range(128):
        lo, hi = i * 1024, i * 1024 + 1023
        need = 11
        for sl in range(NS):
            if lo < (sl + 1) * SLOT and hi >= sl * SLOT:
                need = max(need, last[sl])
        groups.setdefault(need, []).append(i)
    return groups

def gen(a):
    name = KN
    kernel_begin(a, name)
    a("s_cmp_ge_u32 s2, 256")
    a(f"s_cbranch_scc1 L_exit")
    a("s_load_dwordx8 s[4:11], s[0:1], 0")
    a("s_load_dwordx2 s[12:13], s[0:1], 32")
    a("s_load_dwordx8 s[16:23], s[0:1], 48")
    a("s_load_dwordx4 s[24:27], s[0:1], 80")
    a("s_load_dwordx2 s[28:29], s[0:1], 96")
    a("s_getpc_b64 s[80:81]")
    a.label("L_pc_ref")
    a("s_mov_b32 s82, L_code_end-L_pc_ref")
    a("s_mov_b32 s83, 0x00020000")
    a("v_lshlrev_b32 v3, 7, v0")
    if "nocpf" not in FLAGS:
        a("buffer_load_dword v163, v3, s[80:83], 0 offen")
    a("v_lshrrev_b32 v2, 6, v0")
    a("v_and_b32 v1, 63, v0")
    a(f"v_readfirstlane_b32 s{S_W}, v2")
    a(f"s_and_b32 s{T0}, s2, 7")
    a(f"s_lshr_b32 s{T1}, s2, 3")
    a(f"s_and_b32 s{S_MT}, s{T0}, 1")
    a(f"s_lshl_b32 s{S_MT}, s{S_MT}, 3")
    a(f"s_and_b32 s{S_FS}, s{T1}, 7")
    a(f"s_add_u32 s{S_MT}, s{S_MT}, s{S_FS}")
    a(f"s_lshr_b32 s{S_FS}, s{T0}, 1")
    a(f"s_lshl_b32 s{S_FS}, s{S_FS}, 2")
    a(f"s_lshr_b32 s{T2}, s{T1}, 3")
    a(f"s_add_u32 s{S_FS}, s{S_FS}, s{T2}")
    a(f"s_lshl_b32 s{S_TP}, s{T0}, 2")
    a(f"s_and_b32 s{T2}, s{T1}, 3")
    a(f"s_add_u32 s{S_TP}, s{S_TP}, s{T2}")
    a(f"s_lshr_b32 s{S_CT}, s{T1}, 2")
    a(f"s_andn2_b32 s3, 1, s{S_FS}")
    a(f"s_and_b32 s{T2}, s{S_FS}, 3")
    a(f"s_lshl_b32 s{T2}, s{T2}, 3")
    a(f"s_lshr_b32 s98, 0x16081000, s{T2}")
    a("s_and_b32 s98, s98, 0xff")
    a(f"s_lshr_b32 s{T2}, s{S_FS}, 2")
    a(f"s_mul_i32 s{T2}, s{T2}, 28")
    a(f"s_add_u32 s98, s98, s{T2}")
    a("v_lshlrev_b32 v2, 4, v1")
    a(f"v_mov_b32 v4, {MISC+64}")
    a("v_mov_b32 v6, 0")
    a("v_mov_b32 v7, 0")
    a("ds_write_b64 v4, v[5:6]".replace("v[5:6]", "v[6:7]"))
    a("s_waitcnt lgkmcnt(0)")
    make_srd(a, SRD_X, S_X, 2048 * 512 * 2)
    make_srd(a, SRD_WS, S_WS, WS_BYTES)
    a("s_barrier")
    stamp(a, 0)
    a(f"s_cmp_lt_u32 s{S_W}, 8")
    a("s_cbranch_scc1 L_role_c")
    gen_g1(a)
    gen_c(a)
    gen_g2(a)
    a.label("L_exit")
    a("s_endpgm")
    a.label("L_code_end")

def gen_c(a):
    ROLE[0] = "c"
    a.label("L_role_c")
    a("s_cmp_eq_u32 s3, 0")
    a("s_cbranch_scc1 L_c_latepf")
    a("s_lshr_b32 s44, s2, 3")
    a("s_lshr_b32 s45, s2, 7")
    a("s_and_b32 s44, s44, 7")
    a("s_lshl_b32 s45, s45, 3")
    a("s_add_u32 s44, s44, s45")
    a("s_and_b32 s45, s2, 7")
    a("s_lshr_b32 s46, s45, 1")
    a(f"s_lshl_b32 s47, s{S_W}, 6")
    a("s_add_u32 s47, s47, s44")
    a("v_lshrrev_b32 v3, 4, v1")
    a("v_lshl_add_u32 v3, v3, 4, s47")
    a("v_and_b32 v4, 15, v1")
    a("s_mul_i32 s48, s46, 896")
    a("v_mul_u32_u24 v5, 3584, v3")
    a("v_lshl_add_u32 v5, v4, 7, v5")
    a("v_add_u32 v5, s48, v5")
    a(f"v_mov_b32 v6, s{S_WG}")
    a(f"v_mov_b32 v7, s{S_WG+1}")
    a("v_cmp_lt_u32 vcc, 6, v4")
    a(f"v_mov_b32 v8, s{S_WU}")
    a(f"v_mov_b32 v9, s{S_WU+1}")
    a("v_subrev_u32 v10, 896, v5")
    a("v_cndmask_b32 v6, v6, v8, vcc")
    a("v_cndmask_b32 v7, v7, v9, vcc")
    a("v_cndmask_b32 v5, v5, v10, vcc")
    a("v_cmp_lt_u32 vcc, 13, v4")
    a(f"v_mov_b32 v8, s{S_WQ}")
    a(f"v_mov_b32 v9, s{S_WQ+1}")
    a("v_lshlrev_b32 v10, 10, v3")
    a("v_and_b32 v11, 1, v1")
    a("v_lshl_add_u32 v10, v11, 7, v10")
    a("s_lshl_b32 s48, s46, 8")
    a("v_add_u32 v10, s48, v10")
    a("v_cndmask_b32 v6, v6, v8, vcc")
    a("v_cndmask_b32 v7, v7, v9, vcc")
    a("v_cndmask_b32 v5, v5, v10, vcc")
    a("v_add_co_u32 v6, vcc, v6, v5")
    a("s_nop 1")
    a("v_addc_co_u32 v7, vcc, 0, v7, vcc")
    a("global_load_dword v160, v[6:7], off")
    if "pfx" in FLAGS:
        a("s_and_b32 s48, s45, 1")
        a("s_lshl_b32 s48, s48, 4")
        a("s_add_u32 s48, s48, s44")
        a("s_lshl_b32 s48, s48, 16")
        a(f"s_lshl_b32 s49, s{S_W}, 7")
        a("s_add_u32 s48, s48, s49")
        a("v_lshlrev_b32 v10, 10, v1")
        a(f"buffer_load_dword v162, v10, s[{SRD_X}:{SRD_X+3}], s48 offen")
    a.label("L_c_latepf")
    a(f"s_and_b32 s70, s{S_W}, 3")
    a(f"s_lshr_b32 s71, s{S_W}, 2")
    a(f"s_lshl_b32 s72, s{S_MT}, 2")
    a("s_add_u32 s72, s72, s70")
    a("s_mul_i32 s78, s72, 144")
    a(f"s_lshl_b32 s73, s{S_FS}, 1")
    a("s_add_u32 s78, s78, s73")
    a("s_add_u32 s78, s78, 112")
    a("s_lshl_b32 s78, s78, 10")
    a(f"s_add_u32 s78, s78, {WS_AF}")
    a("s_lshl_b32 s73, s71, 10")
    a("s_add_u32 s73, s73, s78")
    for i in range(4):
        a(f"v_mov_b32 v{8+i}, -1")
    a(f"buffer_store_dwordx4 v[8:11], v2, s[{SRD_WS}:{SRD_WS+3}], s73 offen sc1")
    tr_lane(a, 3, 4, 5, 6)
    a(f"s_and_b32 s60, s{S_W}, 1")
    a(f"s_lshr_b32 s61, s{S_W}, 1")
    a("v_and_b32 v6, 31, v1")
    a("v_bfe_u32 v60, v1, 2, 2")
    a("v_lshrrev_b32 v61, 5, v1")
    a("v_xor_b32 v61, v61, v60")
    a("v_xor_b32 v60, 2, v61")
    a("v_lshlrev_b32 v6, 6, v6")
    a(f"s_lshl_b32 s{T0}, s60, 12")
    a(f"s_add_u32 s{T0}, s{T0}, {O_X}")
    a(f"v_add_u32 v6, s{T0}, v6")
    a("v_lshl_add_u32 v53, v61, 4, v6")
    a("v_lshl_add_u32 v54, v60, 4, v6")
    a("s_lshl_b32 s62, s61, 1")
    a("v_lshlrev_b32 v48, 6, v4")
    a("v_lshl_add_u32 v48, v3, 5, v48")
    a("v_add_u32 v48, v48, v5")
    a(f"v_add_u32 v48, {O_Q}, v48")
    a("s_cmp_eq_u32 s3, 0")
    a("s_cbranch_scc1 L_c_tB")
    a("v_and_b32 v6, 3, v4")
    a("v_lshl_or_b32 v6, v6, 1, v3")
    a("v_xor_b32 v6, s62, v6")
    a("v_lshlrev_b32 v60, 13, v3")
    a("v_lshl_add_u32 v60, v4, 8, v60")
    a("v_add_u32 v60, v60, v5")
    a("v_lshl_add_u32 v55, v6, 5, v60")
    a("v_xor_b32 v59, 32, v55")
    a(f"s_mov_b32 s{T0}, 1024")
    a("s_branch L_c_u1done")
    a.label("L_c_tB")
    a(f"v_mul_u32_u24 v6, {B_UP}, v3")
    a("v_mul_u32_u24 v60, 192, v4")
    a("v_add3_u32 v6, v6, v60, v5")
    a(f"s_lshl_b32 s{T0}, s61, 6")
    a(f"v_add_u32 v55, s{T0}, v6")
    a("v_add_u32 v59, 32, v55")
    a(f"s_mov_b32 s{T0}, 768")
    a.label("L_c_u1done")
    a(f"s_lshl_b32 s{T1}, s{T0}, 2")
    for b in (55, 59):
        a(f"v_add_u32 v{b+1}, s{T0}, v{b}")
        a(f"v_add_u32 v{b+2}, s{T1}, v{b}")
        a(f"v_add_u32 v{b+3}, s{T0}, v{b+2}")
    a("s_mov_b32 s99, 0")
    a("s_cmp_eq_u32 s3, 0")
    a("s_cbranch_scc1 L_c_vB")
    a("s_add_u32 s65, s61, 1")
    a(f"s_cmp_lt_u32 s{S_W}, 4")
    a("s_cselect_b32 s99, s65, 0")
    a("s_branch L_c_vdone")
    a.label("L_c_vB")
    a("s_cmp_eq_u32 s61, 3")
    a("s_cselect_b32 s99, 3, 0")
    a.label("L_c_vdone")
    a(f"s_cmp_eq_u32 s{S_W}, 0")
    a("s_cselect_b32 s69, 8, 99")
    XA = (8, 12); WA = (16, 20)
    XB = (28, 32); WB = (36, 40)
    def rd_list(X, W, c_x, w0a, w0b, w1a, w1b):
        return [f"ds_read_b128 v[{X[0]}:{X[0]+3}], v{c_x}",
                f"ds_read_b64_tr_b16 v[{W[0]}:{W[0]+1}], v{w0a}",
                f"ds_read_b64_tr_b16 v[{W[0]+2}:{W[0]+3}], v{w0b}",
                f"ds_read_b64_tr_b16 v[{W[1]}:{W[1]+1}], v{w1a}",
                f"ds_read_b64_tr_b16 v[{W[1]+2}:{W[1]+3}], v{w1b}",
                f"ds_read_b128 v[{X[1]}:{X[1]+3}], v{c_x} offset:2048"]
    QA_, QB_ = 24, 44
    QACC = 138
    def qrd(dst, c_q, ks):
        return [f"ds_read_b64_tr_b16 v[{dst}:{dst+1}], v{c_q} offset:{16*ks*64}",
                f"ds_read_b64_tr_b16 v[{dst+2}:{dst+3}], v{c_q} offset:{(16*ks+4)*64}"]
    def reads(var, X, W, Q, regs, c_q, ks):
        r = rd_list(X, W, *regs)
        if var in (1, 2): r = r + qrd(Q, c_q, ks)
        if var == 3: r = [r[0]] + qrd(Q, c_q, ks) + [r[5]]
        return r
    def mf_rd(var, X, W, Q, rds, first=False, extra=()):
        rds = list(rds); extra = list(extra)
        ops = []
        if var == 3:
            ops = [(64 + t * 32, Q, X[t]) for t in range(2)]
        else:
            ops = [(64 + (t * 2 + u) * 16, W[u], X[t]) for t in range(2) for u in range(2)]
            if var: ops.insert(2, (QACC, Q, X[var - 1]))
        for k, (d, w_, x_) in enumerate(ops):
            c = "0" if first else f"v[{d}:{d+15}]"
            a(f"v_mfma_f32_32x32x16_bf16 v[{d}:{d+15}], v[{w_}:{w_+3}], v[{x_}:{x_+3}], {c}")
            for _ in range(4 if var == 3 else 3):
                if rds: a(rds.pop(0))
            if k == len(ops) - 2:
                for e in extra: a(e)
    BK = [f"s_add_u32 s63, s63, {SLOT}", f"s_cmp_eq_u32 s63, {NS*SLOT}", "s_cselect_b32 s63, 0, s63", "s_add_u32 s64, s64, 1", "s_cmp_lt_u32 s64, 16"]
    a(f"s_mov_b32 s63, {SLOT}")
    a("s_mov_b32 s64, 0")
    for var in (1, 2, 3):
        a(f"s_cmp_eq_u32 s99, {var}")
        a(f"s_cbranch_scc1 L_c_var{var}")
    for var in (0, 1, 2, 3):
        CUR = [f"v_add_u32 v{128+i}, s63, v{53+i}" for i in (range(2) if var == 3 else range(10))]
        if var: CUR.append("v_add_u32 v154, s63, v48")
        RA = reads(var, XA, WA, QA_, (128, 130, 131, 134, 135), 154, 0)
        RB = reads(var, XB, WB, QB_, (129, 132, 133, 136, 137), 154, 1)
        a.label(f"L_c_var{var}")
        a("s_barrier")
        stamp(a, 2)
        for r in reads(var, XA, WA, QA_, (53, 55, 56, 59, 60), 48, 0): a(r)
        a("s_waitcnt lgkmcnt(0)")
        mf_rd(var, XA, WA, QA_, reads(var, XB, WB, QB_, (54, 57, 58, 61, 62), 48, 1), first=True, extra=CUR)
        a(f"s_branch L_c_noside{var}")
        a.label(f"L_c_loop{var}")
        a("s_waitcnt lgkmcnt(0)")
        if "stagest" in FLAGS: a("s_mov_b32 m0, s64\ns_nop 0\nv_writelane_b32 v167, s96, m0")
        if var < 2:
            mf_rd(var, XA, WA, QA_, RB, extra=CUR + ["s_cmp_eq_u32 s64, s69"])
            a("s_cbranch_scc1 L_c_side")
        else:
            mf_rd(var, XA, WA, QA_, RB, extra=CUR)
        a.label(f"L_c_noside{var}")
        a("s_waitcnt lgkmcnt(0)")
        a("s_barrier")
        if "stagest" in FLAGS: a("s_memtime s[96:97]")
        mf_rd(var, XB, WB, QB_, RA, extra=BK)
        a(f"s_cbranch_scc1 L_c_loop{var}")
        a("s_branch L_c_p1end")
    a.label("L_c_noside")
    a("s_cmp_eq_u32 s99, 0")
    a("s_cbranch_scc1 L_c_noside0")
    a("s_branch L_c_noside1")
    a.label("L_c_side")
    a.label("L_c_side10")
    a("v_lshlrev_b32 v6, 7, v1")
    a("s_cmp_eq_u32 s64, 11")
    a("s_cbranch_scc1 L_c_side11")
    a("s_mov_b32 s69, 11")
    a("s_mov_b64 exec, 3")
    a(f"global_load_dword v161, v6, s[{S_DBG}:{S_DBG+1}] sc1")
    a("s_mov_b64 exec, -1")
    a("s_branch L_c_noside")
    a.label("L_c_side11")
    a("s_mov_b32 s69, 99")
    a("s_mov_b64 exec, 3")
    a("s_waitcnt vmcnt(0)")
    a("v_cmp_gt_u32 vcc, 64, v161")
    a("s_mov_b64 exec, -1")
    a("s_nop 1")
    a("s_cbranch_vccz L_c_noside")
    poll(a, "L_kv", S_DBG, 6, 7, 64, nwords=2, sleep=32)
    a("s_branch L_c_noside")
    a.label("L_c_p1end")
    stamp(a, 3)
    if "stagest" in FLAGS:
        a("s_mov_b32 m0, s64\ns_nop 0\nv_writelane_b32 v167, s96, m0")
        a(f"s_lshl_b32 s94, s2, 4")
        a(f"s_add_u32 s94, s94, s{S_W}")
        a(f"s_lshl_b32 s94, s94, 8")
        a(f"s_add_u32 s94, s94, {WS_ST + 0x100000}")
        a("v_lshlrev_b32 v166, 2, v1")
        a(f"buffer_store_dword v167, v166, s[{SRD_WS}:{SRD_WS+3}], s94 offen")
    a("s_waitcnt lgkmcnt(0)")
    a("s_nop 7")
    a(f"s_lshl_b32 s66, s{S_MT}, 2")
    a("s_lshl_b32 s65, s60, 1")
    a("s_add_u32 s66, s66, s65")
    def h_tile(t, u):
        d = 64 + (t * 2 + u) * 16
        for j in range(0, 8, 2):
            a(f"v_pk_mul_f32 v[{d+j}:{d+j+1}], v[{d+j}:{d+j+1}], v[{d+8+j}:{d+9+j}]")
        for j in range(4):
            a(f"v_cvt_pk_bf16_f32 v{d+j}, v{d+2*j}, v{d+2*j+1}")
        a(f"buffer_store_dwordx4 v[{d}:{d+3}], v2, s[{SRD_WS}:{SRD_WS+3}], s{67+t} offen offset:{1024*u} sc1")
    a(f"v_mov_b32 v8, {f32hex(QSCALE)}")
    a(f"v_mov_b32 v9, {f32hex(QSCALE)}")
    def q_tile(d, off):
        for j in range(0, 16, 2):
            a(f"v_pk_mul_f32 v[{d+j}:{d+j+1}], v[{d+j}:{d+j+1}], v[8:9]")
        for j in range(8):
            a(f"v_cvt_pk_bf16_f32 v{d+j}, v{d+2*j}, v{d+2*j+1}")
    a(f"s_lshl_b32 s65, s60, 12")
    a(f"s_add_u32 s65, s65, {QX}")
    a("s_cmp_eq_u32 s99, 3")
    a("s_cbranch_scc1 L_c_qep")
    a("s_cmp_eq_u32 s99, 0")
    a("s_cbranch_scc1 L_c_hep")
    a("s_lshl_b32 s67, s61, 11")
    a("s_add_u32 s65, s65, s67")
    a("v_add_u32 v6, s65, v2")
    for j in range(0, 16, 2):
        a(f"v_pk_mul_f32 v[{QACC+j}:{QACC+j+1}], v[{QACC+j}:{QACC+j+1}], v[8:9]")
    for j in range(8):
        a(f"v_cvt_pk_bf16_f32 v{16+j}, v{QACC+2*j}, v{QACC+2*j+1}")
    a("ds_write_b128 v6, v[16:19]")
    a("ds_write_b128 v6, v[20:23] offset:1024")
    a.label("L_c_hep")
    a("s_mul_i32 s67, s66, 144")
    a("s_add_u32 s67, s67, s98")
    a("s_add_u32 s67, s67, s62")
    a("s_lshl_b32 s67, s67, 10")
    a(f"s_add_u32 s67, s67, {WS_AF}")
    a(f"s_add_u32 s68, s67, {144*1024}")
    h_tile(0, 0)
    h_tile(1, 0)
    h_tile(0, 1)
    h_tile(1, 1)
    a("s_waitcnt lgkmcnt(0)")
    a("s_branch L_c_epdone")
    a.label("L_c_qep")
    a("v_add_u32 v6, s65, v2")
    for t in range(2):
        d = 64 + t * 32
        q_tile(d, 0)
        a(f"ds_write_b128 v6, v[{d}:{d+3}] offset:{t*2048}")
        a(f"ds_write_b128 v6, v[{d+4}:{d+7}] offset:{t*2048+1024}")
    a.label("L_c_epdone")
    SA = (32, 48); SB = (64, 80); OA = 96; OB = 112
    QA = 4; QB = 8; KF = (12, 16); VF = (20, 128)
    IDX = 28; AK = 29; AV = 30; VG = 31
    AKN = 136; AVN = 137; VB = 138; MA = 139; ONE = 140; NX = 141
    a("s_lshl_b32 s65, s72, 7")
    a(f"s_add_u32 s65, s65, {WS_G}")
    a("v_and_b32 v3, 31, v1")
    a("v_lshlrev_b32 v3, 2, v3")
    a(f"buffer_load_dword v{VG}, v3, s[{SRD_WS}:{SRD_WS+3}], s65 offen sc1")
    a(f"s_add_u32 s65, s71, {CROT}")
    a("s_lshl_b32 s65, s65, 12")
    a(f"v_add_u32 v{AK}, s65, v2")
    a("v_lshrrev_b32 v3, 5, v1")
    a("v_and_b32 v32, 15, v1")
    a("v_lshl_add_u32 v3, v3, 4, v32")
    a("v_lshlrev_b32 v3, 4, v3")
    a(f"v_add_u32 v{VB}, {L_V}, v3")
    a(f"v_add_u32 v{AV}, s65, v{VB}")
    a(f"v_mov_b32 v{IDX}, 0xdddddddd")
    a("v_and_b32 v3, 27, v1")
    a("v_cmp_eq_u32 vcc, 16, v3")
    a("v_mov_b32 v3, 0x3f803f80")
    a("s_lshl_b32 s65, s70, 2")
    a("v_cndmask_b32 v3, 0, v3, vcc")
    for b in VF:
        for i in range(8):
            a(f"v_mov_b32 v{b+i}, v3")
    a("s_mov_b32 s74, 0x0000ffff")
    a("s_mov_b32 s75, 0x0000ffff")
    a(f"s_add_u32 s65, s65, {MISC}")
    a(f"v_mov_b32 v{MA}, s65")
    a(f"v_mov_b32 v{ONE}, 1")
    a("s_lshl_b32 s65, s70, 11")
    a(f"s_add_u32 s65, s65, {QX}")
    a("v_add_u32 v3, s65, v2")
    a(f"v_mov_b32 v33, {M_CD}")
    a("s_waitcnt lgkmcnt(0)")
    for i in range(16):
        a(f"v_mov_b32 v{OA+i}, 0")
        a(f"v_mov_b32 v{OB+i}, 0")
    for i in range(8, 16):
        a(f"v_mov_b32 v{SB[1]+i}, 0")
    a("s_barrier")
    stamp(a, 4)
    a(f"ds_read_b128 v[{QA}:{QA+3}], v3")
    a(f"ds_read_b128 v[{KF[0]}:{KF[0]+3}], v{AK}")
    a(f"ds_read_b128 v[{QB}:{QB+3}], v3 offset:1024")
    a(f"ds_read_b128 v[{KF[1]}:{KF[1]+3}], v{AK} offset:1024")
    a("s_mov_b64 exec, s[74:75]")
    a(f"ds_read_b128 v[{VF[0]}:{VF[0]+3}], v{AV}")
    a(f"ds_read_b128 v[{VF[0]+4}:{VF[0]+7}], v{AV} offset:512")
    a("s_mov_b64 exec, 1")
    a(f"ds_add_u32 v33, v{ONE}")
    a("s_mov_b64 exec, -1")
    a("s_waitcnt lgkmcnt(0)")
    if "dumpq" in FLAGS:
        a("s_lshl_b32 s65, s72, 5")
        a(f"s_lshl_b32 s73, s{S_FS}, 1")
        a("s_add_u32 s65, s65, s73")
        a("s_lshl_b32 s65, s65, 10")
        a(f"s_add_u32 s65, s65, {WS_QF}")
        a(f"buffer_store_dwordx4 v[{QA}:{QA+3}], v2, s[{SRD_WS}:{SRD_WS+3}], s65 offen")
        a(f"buffer_store_dwordx4 v[{QB}:{QB+3}], v2, s[{SRD_WS}:{SRD_WS+3}], s65 offen offset:1024")
    a(f"v_mfma_f32_32x32x16_bf16 v[{SA[0]}:{SA[0]+15}], v[{KF[0]}:{KF[0]+3}], v[{QA}:{QA+3}], 0")
    a(f"v_mfma_f32_32x32x16_bf16 v[{SB[0]}:{SB[0]+15}], v[{KF[0]}:{KF[0]+3}], v[{QB}:{QB+3}], 0")
    a("s_nop 15")
    def smf(O, V, P):
        a(f"v_smfmac_f32_32x32x32_bf16 v[{O}:{O+15}], v[{V}:{V+3}], v[{P}:{P+7}], v{IDX}")
    UN = 4
    def tile(t):
        c = t & 1; n = c ^ 1
        sa, sb = SA[c], SB[c]
        def E(S, i): a(f"v_exp_f32 v{S+i}, v{S+i}")
        a("s_waitcnt lgkmcnt(0)")
        if t == 1:
            a(f"v_readfirstlane_b32 s73, v{NX}")
        if t + 2 < UN: a(f"ds_read_b128 v[{KF[c]}:{KF[c]+3}], v{AK} offset:{(t+2)*1024}")
        else:          a(f"ds_read_b128 v[{KF[c]}:{KF[c]+3}], v{AKN} offset:{(t+2-UN)*1024}")
        E(sa, 0); E(sa, 1)
        smf(OB, VF[n] + 4, SB[n] + 8)
        a("s_mov_b64 exec, s[74:75]")
        av, vo = (AV, (t + 1) * 1024) if t + 1 < UN else (AVN, 0)
        a(f"ds_read_b128 v[{VF[n]}:{VF[n]+3}], v{av} offset:{vo}")
        a(f"ds_read_b128 v[{VF[n]+4}:{VF[n]+7}], v{av} offset:{vo+512}")
        if t == 0:
            a("s_mov_b64 exec, 1")
            a(f"ds_add_rtn_u32 v{NX}, v{MA}, v{ONE}")
        a("s_mov_b64 exec, -1")
        if t == 1:
            a(f"s_add_u32 s65, s73, {CROT}")
            a("s_and_b32 s65, s65, 15")
            a("s_lshl_b32 s65, s65, 12")
        for i in range(2, 6): E(sa, i)
        a(f"v_mfma_f32_32x32x16_bf16 v[{SA[n]}:{SA[n]+15}], v[{KF[n]}:{KF[n]+3}], v[{QA}:{QA+3}], 0")
        if t == 1:
            a(f"v_add_u32 v{AKN}, s65, v2")
            a(f"v_add_u32 v{AVN}, s65, v{VB}")
        for i in range(6, 11): E(sa, i)
        smf(OA, VF[c], sa)
        for i in range(11, 16): E(sa, i)
        E(sb, 0); E(sb, 1)
        smf(OA, VF[c] + 4, sa + 8)
        for i in range(2, 6): E(sb, i)
        a(f"v_mfma_f32_32x32x16_bf16 v[{SB[n]}:{SB[n]+15}], v[{KF[n]}:{KF[n]+3}], v[{QB}:{QB+3}], 0")
        for i in range(6, 11): E(sb, i)
        smf(OB, VF[c], sb)
        if t == UN - 1:
            a(f"v_mov_b32 v{AK}, v{AKN}")
            a(f"v_mov_b32 v{AV}, v{AVN}")
        for i in range(11, 16): E(sb, i)
    a("s_mov_b32 s79, 0")
    a("s_mov_b32 s73, 0")
    a("s_cmp_lg_u32 s71, 0")
    a("s_cbranch_scc1 L_a_job")
    stamp(a, 6)
    a.label("L_a_loop")
    for t in range(UN):
        tile(t)
    a("s_cmp_eq_u32 s79, 0")
    a("s_cbranch_scc1 L_a_job")
    a.label("L_a_next")
    a(f"s_cmp_lt_u32 s73, {64//UN}")
    a("s_cbranch_scc1 L_a_loop")
    a("s_mov_b64 exec, 1")
    a(f"ds_add_rtn_u32 v{NX}, v{MA}, v{ONE} offset:16")
    a(f"v_mov_b32 v3, {M_GD}")
    a("s_mov_b64 exec, -1")
    smf(OB, VF[1] + 4, SB[1] + 8)
    a(f"s_mul_i32 s65, s70, {OXS}")
    a(f"s_add_u32 s65, s65, {OX}")
    a("v_add_u32 v32, s65, v2")
    a("v_lshrrev_b32 v33, 1, v2")
    a("v_add_u32 v33, s65, v33")
    a("s_waitcnt lgkmcnt(0)")
    a(f"v_readfirstlane_b32 s73, v{NX}")
    stamp(a, 5)
    a("s_nop 3")
    a("s_cmp_lg_u32 s73, 0")
    a("s_cbranch_scc1 L_a_second")
    a("s_mov_b64 exec, 1")
    a("s_mov_b32 s65, 0")
    a.label("L_a_gd")
    a("ds_read_b32 v34, v3")
    a("s_add_u32 s65, s65, 1")
    a("s_waitcnt lgkmcnt(0)")
    a("v_cmp_gt_u32 vcc, 4, v34")
    a(f"s_cmp_ge_u32 s65, {SPIN*4}")
    a("s_cbranch_scc1 L_a_gd2")
    a("s_nop 1")
    a("s_cbranch_vccnz L_a_gd")
    a.label("L_a_gd2")
    a("s_mov_b64 exec, -1")
    a(f"v_mov_b32 v{OA+9}, v{OB+8}")
    a(f"ds_write_b128 v32, v[{OA}:{OA+3}]")
    a(f"ds_write_b128 v32, v[{OA+4}:{OA+7}] offset:1024")
    a(f"ds_write_b128 v32, v[{OB}:{OB+3}] offset:2048")
    a(f"ds_write_b128 v32, v[{OB+4}:{OB+7}] offset:3072")
    a(f"ds_write_b64 v33, v[{OA+8}:{OA+9}] offset:4096")
    a("s_waitcnt lgkmcnt(0)")
    a("s_mov_b64 exec, 1")
    a(f"ds_write_b32 v{MA}, v{ONE} offset:32")
    a("s_endpgm")
    a.label("L_a_second")
    a("s_mov_b64 exec, 1")
    a("s_mov_b32 s65, 0")
    a.label("L_a_rdy")
    a(f"ds_read_b32 v34, v{MA} offset:32")
    a("s_add_u32 s65, s65, 1")
    a("s_waitcnt lgkmcnt(0)")
    a("v_cmp_eq_u32 vcc, 0, v34")
    a(f"s_cmp_ge_u32 s65, {SPIN*4}")
    a("s_cbranch_scc1 L_a_rdy2")
    a("s_nop 1")
    a("s_cbranch_vccnz L_a_rdy")
    a.label("L_a_rdy2")
    a("s_mov_b64 exec, -1")
    a("ds_read_b128 v[64:67], v32")
    a("ds_read_b128 v[68:71], v32 offset:1024")
    a("ds_read_b128 v[72:75], v32 offset:2048")
    a("ds_read_b128 v[76:79], v32 offset:3072")
    a("ds_read_b64 v[80:81], v33 offset:4096")
    a("s_mov_b32 s79, 0")
    a("s_waitcnt lgkmcnt(0)")
    for i in range(0, 8, 2):
        a(f"v_pk_add_f32 v[{OA+i}:{OA+i+1}], v[{OA+i}:{OA+i+1}], v[{64+i}:{65+i}]")
        a(f"v_pk_add_f32 v[{OB+i}:{OB+i+1}], v[{OB+i}:{OB+i+1}], v[{72+i}:{73+i}]")
    a(f"v_add_f32 v{OA+8}, v{OA+8}, v80")
    a(f"v_add_f32 v{OB+8}, v{OB+8}, v81")
    a.label("L_a_finloop")
    a(f"v_add_f32 v35, v{OA}, v{OA+1}")
    a(f"v_add_f32 v36, v{OA+2}, v{OA+3}")
    a(f"v_add_f32 v37, v{OA+4}, v{OA+5}")
    a(f"v_add_f32 v34, v{OA+6}, v{OA+7}")
    a("v_add_f32 v35, v35, v36")
    a("v_add_f32 v34, v34, v37")
    a("v_add_f32 v35, v35, v34")
    a(f"v_fma_f32 v35, v35, 0, v{OA+8}")
    a(f"v_cmp_nle_f32 vcc, {f32hex(2.0**-30)}, v35")
    a("s_mov_b64 s[76:77], vcc")
    a(f"v_cmp_nge_f32 vcc, {f32hex(2.0**30)}, v35")
    a("s_or_b64 s[76:77], s[76:77], vcc")
    a("s_cmp_lg_u64 s[76:77], 0")
    a("s_cbranch_scc1 L_a_fallback")
    a.label("L_a_fin")
    a(f"v_rcp_f32 v32, v{OA+8}")
    a("s_nop 0")
    a(f"v_mul_f32 v32, v32, v{VG}")
    for i in range(8):
        a(f"v_mul_f32 v{OA+i}, v{OA+i}, v32")
    for j in range(4):
        a(f"v_cvt_pk_bf16_f32 v{36+j}, v{OA+2*j}, v{OA+2*j+1}")
    for j in range(4):
        a(f"v_min_u32 v{36+j}, -2, v{36+j}")
    a(f"buffer_store_dwordx4 v[36:39], v2, s[{SRD_WS}:{SRD_WS+3}], s78 offen sc1")
    a("s_cmp_lg_u32 s79, 0")
    a("s_cbranch_scc1 L_a_done")
    a("s_mov_b32 s79, 1")
    a("s_add_u32 s78, s78, 1024")
    for i in range(9):
        a(f"v_mov_b32 v{OA+i}, v{OB+i}")
    for i in range(4):
        a(f"v_mov_b32 v{QA+i}, v{QB+i}")
    a("s_branch L_a_finloop")
    a.label("L_a_done")
    stamp(a, 7)
    a("s_endpgm")
    a.label("L_a_job")
    a("s_mov_b32 s79, 1")
    a("s_waitcnt vmcnt(0)")
    a("s_mov_b64 exec, 1")
    a(f"v_mov_b32 v3, {M_HD}")
    a(f"ds_add_u32 v3, v{ONE}")
    a("s_mov_b32 s65, 0")
    a.label("L_a_kvw")
    a(f"ds_read_b32 v142, v3 offset:4")
    a("s_add_u32 s65, s65, 1")
    a("s_waitcnt lgkmcnt(0)")
    a("v_cmp_gt_u32 vcc, 4, v142")
    a(f"s_cmp_ge_u32 s65, {SPIN*4}")
    a("s_cbranch_scc1 L_a_kvw2")
    a("s_nop 1")
    a("s_cbranch_vccnz L_a_kvw")
    a.label("L_a_kvw2")
    a("s_mov_b64 exec, -1")
    a("s_branch L_a_next")
    a.label("L_a_fallback")
    S = SA[1]; M = 3
    a(f"v_mov_b32 v{M}, 0xff800000")
    a(f"v_mov_b32 v{AK}, v2")
    a("s_mov_b32 s73, 0")
    a.label("L_fb1")
    a(f"ds_read_b128 v[{KF[0]}:{KF[0]+3}], v{AK}")
    a("s_waitcnt lgkmcnt(0)")
    a(f"v_mfma_f32_32x32x16_bf16 v[{S}:{S+15}], v[{KF[0]}:{KF[0]+3}], v[{QA}:{QA+3}], 0")
    a(f"v_add_u32 v{AK}, 1024, v{AK}")
    a("s_nop 15")
    for i in range(0, 16, 2):
        a(f"v_max3_f32 v{M}, v{M}, v{S+i}, v{S+i+1}")
    a("s_add_u32 s73, s73, 1")
    a("s_cmp_lt_u32 s73, 64")
    a("s_cbranch_scc1 L_fb1")
    a(f"v_mov_b32 v32, v{M}")
    a("s_nop 1")
    a(f"v_permlane32_swap_b32 v{M}, v32")
    a("s_nop 1")
    a(f"v_max_f32 v{M}, v{M}, v32")
    for i in range(16):
        a(f"v_mov_b32 v{OA+i}, 0")
    a(f"v_mov_b32 v{AK}, v2")
    a(f"v_mov_b32 v{AV}, v{VB}")
    a("s_mov_b32 s73, 0")
    a.label("L_fb2")
    a(f"ds_read_b128 v[{KF[0]}:{KF[0]+3}], v{AK}")
    a("s_mov_b64 exec, s[74:75]")
    a(f"ds_read_b128 v[{VF[0]}:{VF[0]+3}], v{AV}")
    a(f"ds_read_b128 v[{VF[0]+4}:{VF[0]+7}], v{AV} offset:512")
    a("s_mov_b64 exec, -1")
    a("s_waitcnt lgkmcnt(0)")
    a(f"v_mfma_f32_32x32x16_bf16 v[{S}:{S+15}], v[{KF[0]}:{KF[0]+3}], v[{QA}:{QA+3}], 0")
    a(f"v_add_u32 v{AK}, 1024, v{AK}")
    a(f"v_add_u32 v{AV}, 1024, v{AV}")
    a("s_nop 15")
    for i in range(16):
        a(f"v_sub_f32 v{S+i}, v{S+i}, v{M}")
    for i in range(16):
        a(f"v_exp_f32 v{S+i}, v{S+i}")
    a("s_nop 1")
    smf(OA, VF[0], S)
    smf(OA, VF[0] + 4, S + 8)
    a("s_nop 7")
    a("s_add_u32 s73, s73, 1")
    a("s_cmp_lt_u32 s73, 64")
    a("s_cbranch_scc1 L_fb2")
    a("s_nop 15")
    a("s_branch L_a_fin")

def gen_g1(a):
    ROLE[0] = "g"
    a("s_setprio %d" % (1 if "prio1" in FLAGS else 3))
    GUB = 512 * 1792 * 2
    a(f"s_sub_u32 s44, s{S_W}, 8")
    a("s_lshl_b32 s45, s44, 10")
    a(f"s_mul_i32 s76, s44, {PA_W}")
    a(f"s_add_u32 s76, s76, {PA}")
    a(f"s_lshl_b32 s77, s{S_MT}, 3")
    a(f"s_lshr_b32 s{T0}, s{S_FS}, 1")
    a(f"s_add_u32 s77, s77, s{T0}")
    a("s_mov_b32 s78, 0xffff")
    a("s_mov_b32 s79, 0xffff")
    a("s_cmp_lg_u32 s3, 0")
    a("s_cbranch_scc1 L_g_noA1")
    make_srd(a, 48, S_WK, 16384)
    make_srd(a, 52, S_WV, 16384)
    make_srd(a, 56, S_GW, 1024)
    a(f"s_lshl_b32 s{T0}, s44, 12")
    a("s_mov_b32 m0, s76")
    a("v_and_b32 v7, 31, v1")
    for i in range(4):
        a(f"buffer_load_dwordx4 v2, s[48:51], s{T0} offen offset:{1024*i} lds")
    a("s_add_u32 m0, s76, 4224")
    a("v_lshlrev_b32 v7, 10, v7")
    for i in range(4):
        a(f"buffer_load_dwordx4 v2, s[52:55], s{T0} offen offset:{1024*i} lds")
    a("s_add_u32 m0, s76, 8448")
    a(f"s_lshl_b32 s{T0}, s77, 14")
    a("buffer_load_dwordx4 v2, s[56:59], 0 offen lds")
    a(f"s_lshl_b32 s{T1}, s44, 8")
    a(f"s_add_u32 s{T0}, s{T0}, s{T1}")
    a("v_lshrrev_b32 v6, 5, v1")
    a("v_lshl_add_u32 v7, v6, 4, v7")
    a("s_mov_b64 exec, s[78:79]")
    for s_ in range(8):
        a(f"buffer_load_dwordx4 v[{96+4*s_}:{99+4*s_}], v7, s[{SRD_X}:{SRD_X+3}], s{T0} offen offset:{32*s_}")
    a("s_mov_b64 exec, -1")
    a.label("L_g_noA1")
    make_srd(a, 48, S_WG, GUB)
    make_srd(a, 52, S_WU, GUB)
    a("v_lshrrev_b32 v4, 2, v1")
    a("v_lshrrev_b32 v5, 4, v1")
    a("v_and_b32 v10, 3, v1")
    a("v_xor_b32 v10, v10, v5")
    a("v_lshlrev_b32 v10, 4, v10")
    a("v_lshl_add_u32 v10, v4, 10, v10")
    a(f"s_lshl_b32 s{T0}, s{S_MT}, 7")
    a(f"s_lshl_b32 s{T1}, s44, 4")
    a(f"s_add_u32 s{T0}, s{T0}, s{T1}")
    a(f"s_lshl_b32 s{T0}, s{T0}, 10")
    a(f"v_add_u32 v10, s{T0}, v10")
    a("v_add_u32 v11, 0x10000, v10")
    a("s_lshl_b32 s46, s98, 5")
    make_srd(a, 84, S_WQ, 512 * 512 * 2)
    a("v_lshlrev_b32 v14, 10, v4")
    a("v_and_b32 v15, 3, v1")
    a("v_lshl_add_u32 v14, v15, 4, v14")
    a(f"s_lshl_b32 s{T0}, s{S_FS}, 6")
    a(f"s_lshl_b32 s{T1}, s44, 13")
    a(f"s_add_u32 s{T0}, s{T0}, s{T1}")
    a(f"v_add_u32 v14, s{T0}, v14")
    a("s_lshl_b32 s66, s44, 9")
    a(f"s_add_u32 s66, s66, {O_Q}")
    a("s_mov_b32 s88, -1")
    a("s_mov_b32 s89, 0")
    a("s_cmp_eq_u32 s3, 0")
    a("s_cbranch_scc1 L_g_tB")
    make_srd(a, 56, S_WG, GUB)
    make_srd(a, 60, S_WU, GUB)
    a("v_and_b32 v8, 15, v1")
    a("v_lshlrev_b32 v4, 2, v5")
    a("v_xor_b32 v8, v8, v4")
    a("v_lshlrev_b32 v8, 4, v8")
    a(f"s_lshl_b32 s{T0}, s44, 2")
    a(f"v_add_u32 v4, s{T0}, v5")
    a("v_mul_u32_u24 v4, 3584, v4")
    a("v_add3_u32 v8, v8, v4, s46")
    a("v_xor_b32 v9, 32, v8")
    a(f"v_add_u32 v12, {16*3584}, v8")
    a(f"v_add_u32 v13, {16*3584}, v9")
    a("s_add_u32 s47, s45, 8192")
    a("s_add_u32 s64, s45, 4096")
    a("s_add_u32 s65, s45, 12288")
    a("s_mov_b64 s[74:75], -1")
    a("s_branch L_g_qdone")
    a.label("L_g_tB")
    def b_voff(vd, s_idx):
        a(f"s_lshl_b32 s{T0}, s{s_idx}, 6")
        a(f"v_add_u32 v{vd}, s{T0}, v1")
        a(f"v_mul_u32_u24 v4, 5462, v{vd}")
        a("v_lshrrev_b32 v4, 16, v4")
        a(f"v_lshlrev_b32 v{vd}, 4, v{vd}")
        a(f"v_mul_u32_u24 v4, {3584-192}, v4")
        a(f"v_add3_u32 v{vd}, v{vd}, v4, s46")
    b_voff(8, 44)
    a("v_mov_b32 v9, v8")
    a("s_and_b32 s47, s44, 1")
    a("s_add_u32 s47, s47, 4")
    b_voff(12, 47)
    a("v_mov_b32 v13, v8")
    a("s_lshl_b32 s64, s47, 10")
    a("s_cmp_lt_u32 s44, 2")
    a(f"s_cselect_b32 s56, s{S_WG}, s{S_WU}")
    a(f"s_cselect_b32 s57, s{S_WG+1}, s{S_WU+1}")
    a(f"s_cselect_b32 s{T0}, 0, {B_UP}")
    a(f"s_mov_b32 s58, {GUB}")
    a("s_mov_b32 s59, 0x00020000")
    a(f"s_add_u32 s64, s64, s{T0}")
    make_srd(a, 60, S_WG, GUB)
    a(f"s_add_u32 s47, s45, {B_UP}")
    a("s_mov_b32 s65, s45")
    a("s_mov_b64 s[74:75], 1")
    a.label("L_g_qdone")
    a("s_mov_b32 s67, 0")
    a("s_mov_b32 s68, 0")
    a("s_mov_b32 s69, 0")
    def issue_stage(slot):
        a(f"s_add_u32 s{T0}, s45, s{slot}")
        a(f"s_add_u32 m0, s{T0}, {O_X}")
        a("s_nop 0")
        a(f"buffer_load_dwordx4 v10, s[{SRD_X}:{SRD_X+3}], s69 offen lds")
        a(f"s_add_u32 m0, s{T0}, {O_X+4096}")
        a("s_nop 0")
        a(f"buffer_load_dwordx4 v11, s[{SRD_X}:{SRD_X+3}], s69 offen lds")
        a(f"s_mov_b32 m0, s{T0}")
        a("s_add_u32 s69, s69, 64")
        a("buffer_load_dwordx4 v8, s[48:51], s67 offen lds")
        a(f"s_add_u32 m0, s47, s{slot}")
        a("s_nop 0")
        a("buffer_load_dwordx4 v9, s[52:55], s67 offen lds")
        a(f"s_add_u32 m0, s64, s{slot}")
        a("s_nop 0")
        a("buffer_load_dwordx4 v12, s[56:59], s67 offen lds")
        a(f"s_add_u32 m0, s65, s{slot}")
        a("s_mov_b64 exec, s[74:75]")
        a("buffer_load_dwordx4 v13, s[60:63], s67 offen lds")
        a(f"s_add_u32 m0, s66, s{slot}")
        a("s_mov_b64 exec, s[88:89]")
        a("buffer_load_dwordx4 v14, s[84:87], s68 offen lds")
        a("s_mov_b64 exec, -1")
        a(f"s_add_u32 s67, s67, {32*3584}")
        a(f"s_add_u32 s68, s68, {32*1024}")
        a(f"s_add_u32 s{slot}, s{slot}, {SLOT}")
        a(f"s_cmp_eq_u32 s{slot}, {NS*SLOT}")
        a(f"s_cselect_b32 s{slot}, 0, s{slot}")
    a("s_mov_b32 s70, 0")
    a("s_mov_b32 s71, 0")
    a.label("L_g_loop")
    if "x_nodma" in FLAGS:
        a("s_cmp_ge_u32 s71, 6")
        a("s_cselect_b64 exec, 1, -1")
    issue_stage(70)
    if "x_nodma" in FLAGS: a("s_mov_b64 exec, -1")
    a("s_add_u32 s71, s71, 1")
    a("s_cmp_gt_u32 s71, 4")
    a("s_cbranch_scc1 L_g_plain")
    a("s_cmp_eq_u32 s71, 3")
    a("s_cbranch_scc1 L_g_ev_pa")
    a("s_cmp_eq_u32 s71, 4")
    a("s_cbranch_scc1 L_g_ev_drain")
    a("s_branch L_g_loop")
    a.label("L_g_plain")
    a("s_cmp_eq_u32 s71, 16")
    a("s_cbranch_scc1 L_g_tail")
    a(f"s_waitcnt vmcnt({ND*(NS-2)})")
    a("s_barrier")
    a("s_branch L_g_loop")
    a.label("L_g_ev_start")
    a(f"s_waitcnt vmcnt({2*ND}) lgkmcnt(0)")
    a("s_barrier")
    a("s_branch L_g_loop")
    a.label("L_g_ev_pa")
    a("s_cmp_lg_u32 s3, 0")
    a("s_cbranch_scc1 L_g_ev_start")
    tr_lane(a, 3, 4, 5, 6)
    a("v_mul_u32_u24 v6, 4224, v3")
    a("v_lshl_add_u32 v6, v4, 5, v6")
    a("v_add3_u32 v6, v6, v5, s76")
    a("v_lshrrev_b32 v7, 5, v1")
    a("v_lshlrev_b32 v7, 4, v7")
    a(f"s_lshl_b32 s{T0}, s44, 8")
    a(f"s_add_u32 s{T0}, s{T0}, s76")
    a(f"v_add_u32 v7, s{T0}, v7")
    a(f"s_waitcnt vmcnt({3*ND})")
    stamp(a, 1)
    for s_ in range(8):
        for j in range(2):
            a(f"ds_read_b64_tr_b16 v[{128+4*s_+2*j}:{129+4*s_+2*j}], v6 offset:{(16*s_+4*j)*32}")
        if s_ == 3: a("s_waitcnt lgkmcnt(0)")
    a("s_waitcnt lgkmcnt(0)")
    for s_ in range(8):
        a(f"ds_read_b128 v[{16+4*s_}:{19+4*s_}], v7 offset:{8448+32*s_}")
    for s_ in range(8):
        c = "0" if s_ == 0 else "v[64:79]"
        a(f"v_mfma_f32_32x32x16_bf16 v[64:79], v[{128+4*s_}:{131+4*s_}], v[{96+4*s_}:{99+4*s_}], {c}")
    a("s_waitcnt lgkmcnt(0)")
    for s_ in range(8):
        c = "0" if s_ == 0 else "v[80:95]"
        a(f"v_mfma_f32_32x32x16_bf16 v[80:95], v[{16+4*s_}:{19+4*s_}], v[{96+4*s_}:{99+4*s_}], {c}")
    a("v_and_b32 v6, 31, v1")
    a("v_lshrrev_b32 v60, 5, v1")
    a("v_lshl_add_u32 v61, v6, 1, v60")
    a("v_lshlrev_b32 v61, 5, v61")
    a("v_add_u32 v7, s76, v61")
    a("v_lshlrev_b32 v60, 10, v60")
    a("v_lshl_add_u32 v60, v6, 2, v60")
    a("v_add_u32 v60, s76, v60")
    a("v_lshlrev_b32 v6, 2, v6")
    a("v_add_u32 v5, s76, v6")
    a("ds_write_b128 v7, v[64:67]")
    a("ds_write_b128 v7, v[68:71] offset:16")
    for j in range(8):
        a(f"ds_write_b32 v60, v{72+j} offset:{2048+128*j}")
    a("s_nop 3")
    a("ds_write_b32 v5, v80 offset:4096")
    a(f"v_mov_b32 v3, {MISC+64}")
    a("v_mov_b32 v4, 1")
    a("s_mov_b64 exec, 1")
    a("ds_add_u32 v3, v4")
    a("s_mov_b64 exec, -1")
    a("s_cmp_eq_u32 s44, 3")
    a("s_cbranch_scc1 L_g_ev_start")
    a("s_mov_b32 s72, 0")
    a.label("L_g_paw")
    a("ds_read_b32 v4, v3")
    a("s_add_u32 s72, s72, 1")
    a("s_waitcnt lgkmcnt(0)")
    a("v_cmp_gt_u32 vcc, 4, v4")
    a(f"s_cmp_ge_u32 s72, {SPIN*4}")
    a("s_cbranch_scc1 L_g_paw2")
    a("s_nop 1")
    a("s_cbranch_vccnz L_g_paw")
    a.label("L_g_paw2")
    a("s_cmp_eq_u32 s44, 2")
    a("s_cbranch_scc1 L_g_pa_z")
    a(f"s_lshr_b32 s{T0}, s77, 1")
    a(f"s_lshl_b32 s{T0}, s{T0}, 10")
    a(f"s_and_b32 s{T1}, s77, 1")
    a(f"s_lshl_b32 s{T1}, s{T1}, 8")
    a(f"s_add_u32 s{T0}, s{T0}, s{T1}")
    a("v_and_b32 v6, 31, v1")
    a("v_lshrrev_b32 v60, 5, v1")
    a("v_lshl_add_u32 v61, v6, 1, v60")
    a("v_lshlrev_b32 v61, 5, v61")
    a("s_cmp_eq_u32 s44, 0")
    a("s_cbranch_scc1 L_g_pa_red")
    a(f"s_add_u32 s{T0}, s{T0}, s{T1}")
    a("s_mov_b32 s78, -1")
    a("s_mov_b32 s79, 0")
    a("v_bfe_u32 v60, v1, 2, 1")
    a("v_lshlrev_b32 v60, 3, v60")
    a("v_bfe_u32 v61, v1, 3, 1")
    a("v_lshl_add_u32 v60, v61, 2, v60")
    a("v_and_b32 v61, 3, v1")
    a("v_add_u32 v60, v60, v61")
    a("v_lshlrev_b32 v60, 7, v60")
    a("v_lshrrev_b32 v61, 4, v1")
    a("v_lshl_add_u32 v61, v61, 5, v60")
    a("v_add_u32 v61, 2048, v61")
    a(f"s_add_u32 s{T0}, s{T0}, {WS_VF}")
    a.label("L_g_pa_red")
    a(f"v_add_u32 v61, {PA}, v61")
    for w in range(4):
        a(f"ds_read_b128 v[{64+8*w}:{67+8*w}], v61 offset:{w*PA_W}")
        a(f"ds_read_b128 v[{68+8*w}:{71+8*w}], v61 offset:{w*PA_W+16}")
    a("s_waitcnt lgkmcnt(0)")
    for w in (2, 1):
        for q in range(w):
            for j in range(0, 8, 2):
                d = 64 + 8 * q + j; e = d + 8 * w
                a(f"v_pk_add_f32 v[{d}:{d+1}], v[{d}:{d+1}], v[{e}:{e+1}]")
    for j in range(4):
        a(f"v_cvt_pk_bf16_f32 v{140+j}, v{64+2*j}, v{65+2*j}")
    a("s_mov_b64 exec, s[78:79]")
    a(f"buffer_store_dwordx4 v[140:143], v2, s[{SRD_WS}:{SRD_WS+3}], s{T0} offen sc1")
    a("s_mov_b64 exec, -1")
    a("s_branch L_g_ev_start")
    a.label("L_g_pa_z")
    a("v_and_b32 v6, 15, v1")
    a("v_lshlrev_b32 v6, 2, v6")
    a(f"v_add_u32 v60, {PA}, v6")
    for w in range(4):
        a(f"ds_read_b32 v{64+w}, v60 offset:{w*PA_W+4096}")
    a(f"s_cmp_lg_u32 s{S_FS}, 1")
    a("s_cbranch_scc1 L_g_nofl")
    a("v_mov_b32 v7, 0")
    a(f"s_lshl_b32 s{T0}, s{S_MT}, 7")
    a(f"s_add_u32 s{T0}, s{T0}, {WS_FL}")
    a(f"buffer_store_dword v7, v7, s[{SRD_WS}:{SRD_WS+3}], s{T0} offen sc1")
    a.label("L_g_nofl")
    a("s_waitcnt lgkmcnt(0)")
    for w in range(1, 4):
        a(f"v_add_f32 v64, v64, v{64+w}")
    a(f"v_mul_f32 v64, {f32hex(-LOG2E)}, v64")
    a("v_exp_f32 v64, v64")
    a(f"s_lshl_b32 s{T0}, s77, 6")
    a("v_add_f32 v64, 1.0, v64")
    a("v_rcp_f32 v140, v64")
    a(f"s_add_u32 s{T0}, s{T0}, {WS_G}")
    a(f"buffer_store_dword v140, v6, s[{SRD_WS}:{SRD_WS+3}], s{T0} offen sc1")
    a("s_branch L_g_ev_start")
    a.label("L_g_ev_drain")
    a("s_cmp_lg_u32 s3, 0")
    a("s_cbranch_scc1 L_g_loop")
    a(f"v_mov_b32 v3, {MISC+68}")
    a("v_mov_b32 v7, 1")
    a("s_and_b32 s72, s2, 1")
    a("s_lshl_b32 s72, s72, 7")
    a("v_mov_b32 v6, s72")
    a(f"s_waitcnt vmcnt({ND})")
    a("s_mov_b64 exec, 1")
    a("ds_add_rtn_u32 v4, v3, v7")
    a("s_waitcnt lgkmcnt(0)")
    a("v_cmp_eq_u32 vcc, 3, v4")
    a("s_nop 1")
    a("s_and_b64 exec, exec, vcc")
    a("s_cbranch_execz L_g_nsig")
    a(f"global_atomic_add v6, v7, s[{S_DBG}:{S_DBG+1}] sc1")
    a.label("L_g_nsig")
    a("s_mov_b64 exec, -1")
    stamp(a, 2)
    a("s_branch L_g_loop")
    a.label("L_g_tail")
    groups = kv_pieces()
    def issue_kv(pieces):
        n = (len(pieces) + 3) // 4
        for q in range(n):
            idx = [pieces[min(4 * q + j, len(pieces) - 1)] for j in range(4)]
            if idx == [idx[0] + k for k in range(4)]:
                a(f"s_add_u32 s{T0}, s45, {idx[0]*1024}")
            else:
                a(f"s_mov_b32 s{T0}, {idx[0]*1024}")
                for j in range(1, 4):
                    a(f"s_cmp_eq_u32 s44, {j}")
                    a(f"s_cselect_b32 s{T0}, {idx[j]*1024}, s{T0}")
            a(f"s_mov_b32 m0, s{T0}")
            a("s_nop 0")
            a(f"buffer_load_dwordx4 v2, s[{SRD_WS}:{SRD_WS+3}], s{T0} offen sc1 lds")
        return n
    kv_out = 0
    for s in range(11, 16):
        ring_after = max(0, 15 - (s + 1)) * ND
        if s < 15:
            a(f"s_waitcnt vmcnt({min(63, ring_after + kv_out)})")
        a("s_barrier")
        last_n = issue_kv(groups[s])
        kv_out += last_n
    a("v_cmp_gt_u32 vcc, 4, v1")
    a("v_lshlrev_b32 v3, 2, v1")
    a(f"v_add_u32 v3, {MISC}, v3")
    a("v_cndmask_b32 v4, 0, 2, vcc".replace("v_cndmask_b32 ", "v_cndmask_b32_e64 "))
    a("s_mov_b64 exec, 0xffff")
    a("ds_write_b32 v3, v4")
    a("s_mov_b64 exec, -1")
    a(f"s_waitcnt vmcnt({last_n}) lgkmcnt(0)")
    a("s_barrier")
    a(f"v_mov_b32 v3, {M_KV}")
    a("v_mov_b32 v4, 1")
    a("s_waitcnt vmcnt(0)")
    a("s_mov_b64 exec, 1")
    a("ds_add_u32 v3, v4")
    a("s_mov_b64 exec, -1")
    a("s_branch L_g2")

def gen_g2(a):
    ROLE[0] = "g"
    a.label("L_g2")
    stamp(a, 4)
    ACC = 64; AFR = 16; WF = 40
    WO = 128
    make_srd(a, 48, S_WD, 1792 * 512 * 2)
    make_srd(a, 52, S_WO, 512 * 512 * 2)
    make_srd(a, 56, S_OUT, 2048 * 512 * 2)
    a("v_lshlrev_b32 v3, 7, v1")
    a("s_lshr_b32 s64, s2, 3")
    a(f"s_mul_i32 s65, s64, 57344")
    a(f"s_lshl_b32 s{T0}, s44, 14")
    a(f"s_add_u32 s65, s65, s{T0}")
    a("buffer_load_dword v14, v3, s[48:51], s65 offen")
    a("s_add_u32 s65, s65, 8192")
    a("s_cmp_eq_u32 s44, 3")
    a("s_cbranch_scc1 L_g_pfo")
    a("buffer_load_dword v15, v3, s[48:51], s65 offen")
    a("s_branch L_g_pfd")
    a.label("L_g_pfo")
    a("s_lshl_b32 s65, s64, 14")
    a("buffer_load_dword v15, v3, s[52:55], s65 offen")
    a("s_add_u32 s65, s65, 8192")
    a("buffer_load_dword v14, v3, s[52:55], s65 offen")
    a.label("L_g_pfd")
    a("v_lshrrev_b32 v3, 3, v1")
    a("v_bfe_u32 v4, v1, 4, 1")
    a("v_lshlrev_b32 v4, 2, v4")
    a("v_and_b32 v5, 7, v1")
    a("v_xor_b32 v5, v5, v4")
    a("v_lshlrev_b32 v5, 4, v5")
    a("v_lshl_add_u32 v5, v3, 10, v5")
    a(f"s_lshl_b32 s{T0}, s{S_CT}, 7")
    a(f"v_add_u32 v5, s{T0}, v5")
    a("v_add_u32 v8, 0x2000, v5")
    a("v_lshrrev_b32 v3, 4, v1")
    a("v_bfe_u32 v4, v1, 2, 2")
    a("v_lshrrev_b32 v6, 1, v3")
    a("v_lshl_add_u32 v6, v6, 3, v4")
    a("v_lshlrev_b32 v6, 7, v6")
    a("v_lshrrev_b32 v4, 1, v4")
    a("v_lshl_add_u32 v6, v4, 6, v6")
    a("v_and_b32 v3, 1, v3")
    a("v_lshl_add_u32 v6, v3, 5, v6")
    a("v_and_b32 v3, 1, v1")
    a("v_lshl_add_u32 v6, v3, 4, v6")
    a("v_bfe_u32 v3, v1, 1, 1")
    a("v_lshl_add_u32 v6, v3, 3, v6")
    a(f"s_mul_i32 s46, s44, {GS_W}")
    a(f"s_add_u32 s46, s46, {GS}")
    a("v_add_u32 v6, s46, v6")
    a("v_xor_b32 v7, 64, v6")
    a(f"v_add_u32 v9, {144*1024}, v2")
    for i in range(64):
        a(f"v_mov_b32 v{ACC+i}, 0")
    a(f"s_lshl_b32 s{T0}, s{S_TP}, 8")
    a(f"s_add_u32 s{T0}, s{T0}, {WS_G}")
    a("v_and_b32 v3, 31, v1")
    a("v_lshlrev_b32 v3, 2, v3")
    a(f"buffer_load_dword v12, v3, s[{SRD_WS}:{SRD_WS+3}], s{T0} offen sc1")
    a(f"buffer_load_dword v13, v3, s[{SRD_WS}:{SRD_WS+3}], s{T0} offen offset:128 sc1")
    a(f"s_mul_i32 s64, s44, {28*16384}")
    a(f"s_lshl_b32 s{T0}, s{S_TP}, 1")
    a(f"s_mul_i32 s65, s{T0}, 144")
    a("s_mov_b32 s72, s65")
    a(f"s_mul_i32 s{T1}, s44, 28")
    a(f"s_add_u32 s65, s65, s{T1}")
    a("s_lshl_b32 s65, s65, 10")
    a(f"s_add_u32 s65, s65, {WS_AF}")
    a("s_cmp_lg_u32 s44, 0")
    a("s_cbranch_scc1 L_g_nosig")
    a(f"v_mov_b32 v3, {M_HD}")
    a("s_mov_b64 exec, 1")
    a("s_mov_b32 s71, 0")
    a.label("L_g_hd")
    a("ds_read_b32 v4, v3")
    a("s_add_u32 s71, s71, 1")
    a("s_waitcnt lgkmcnt(0)")
    a("v_cmp_gt_u32 vcc, 8, v4")
    a(f"s_cmp_ge_u32 s71, {SPIN*4}")
    a("s_cbranch_scc1 L_g_hd2")
    a("s_sleep 2")
    a("s_cbranch_vccnz L_g_hd")
    a.label("L_g_hd2")
    a(f"s_lshl_b32 s{T0}, s{S_MT}, 7")
    a(f"s_add_u32 s{T0}, s{T0}, {WS_FL}")
    a(f"v_mov_b32 v3, s{T0}")
    a("v_mov_b32 v4, 1")
    a(f"global_atomic_add v3, v4, s[{S_WS}:{S_WS+1}] sc1")
    a("s_mov_b64 exec, -1")
    a.label("L_g_nosig")
    a(f"s_lshr_b32 s{T0}, s{S_TP}, 1")
    a(f"s_lshl_b32 s{T0}, s{T0}, 7")
    a(f"s_add_u32 s73, s{T0}, {WS_FL}")
    a("v_mov_b32 v3, s73")
    poll(a, "L_h", S_WS, 3, 4, 16, sleep=16)
    a(f"v_mov_b32 v3, {M_CD}")
    a("s_mov_b32 s71, 0")
    a.label("L_g_qr")
    a("ds_read_b32 v4, v3")
    a("s_add_u32 s71, s71, 1")
    a("s_waitcnt lgkmcnt(0)")
    a("v_cmp_gt_u32 vcc, 8, v4")
    a(f"s_cmp_ge_u32 s71, {SPIN*4}")
    a("s_cbranch_scc1 L_g_qr2")
    a("s_nop 1")
    a("s_cbranch_vccnz L_g_qr")
    a.label("L_g_qr2")
    stamp(a, 5)
    def issue(sl, srd):
        a(f"s_add_u32 m0, s46, {sl*2048}")
        a("s_nop 0")
        a(f"buffer_load_dwordx4 v5, s[{srd}:{srd+3}], s64 offen lds")
        a(f"s_add_u32 m0, s46, {sl*2048+1024}")
        a("s_nop 0")
        a(f"buffer_load_dwordx4 v8, s[{srd}:{srd+3}], s64 offen lds")
        a("s_add_u32 s64, s64, 16384")
    def issue_act(sl):
        r = AFR + sl * 8
        a(f"buffer_load_dwordx4 v[{r}:{r+3}], v2, s[{SRD_WS}:{SRD_WS+3}], s65 offen sc1")
        a(f"buffer_load_dwordx4 v[{r+4}:{r+7}], v9, s[{SRD_WS}:{SRD_WS+3}], s65 offen sc1")
        a("s_add_u32 s65, s65, 1024")
    def trreads(sl, dst):
        a(f"ds_read_b64_tr_b16 v[{dst}:{dst+1}], v6 offset:{sl*2048}")
        a(f"ds_read_b64_tr_b16 v[{dst+2}:{dst+3}], v6 offset:{sl*2048+512}")
        a(f"ds_read_b64_tr_b16 v[{dst+4}:{dst+5}], v7 offset:{sl*2048}")
        a(f"ds_read_b64_tr_b16 v[{dst+6}:{dst+7}], v7 offset:{sl*2048+512}")
    def mf4(w, r):
        for t in range(2):
            for c in range(2):
                d = ACC + (t * 2 + c) * 16
                a(f"v_mfma_f32_32x32x16_bf16 v[{d}:{d+15}], v[{w+4*c}:{w+4*c+3}], v[{r+4*t}:{r+4*t+3}], v[{d}:{d+15}]")
    for sl in range(3):
        issue(sl, 48); issue_act(sl)
    WF2 = (WF, 48)
    def dstep(sl, wcur, wnext, issue_next, rd_next, vm):
        r = AFR + sl * 8
        def mf(t, c):
            if "nog" in FLAGS: return
            d = ACC + (t * 2 + c) * 16
            a(f"v_mfma_f32_32x32x16_bf16 v[{d}:{d+15}], v[{wcur+4*c}:{wcur+4*c+3}], v[{r+4*t}:{r+4*t+3}], v[{d}:{d+15}]")
        a("s_waitcnt lgkmcnt(0)")
        mf(0, 0)
        if issue_next:
            a(f"s_add_u32 m0, s46, {sl*2048}")
            a("s_nop 0")
            a(f"buffer_load_dwordx4 v5, s[48:51], s64 offen lds")
            a(f"s_add_u32 m0, s46, {sl*2048+1024}")
            a("s_nop 0")
            a(f"buffer_load_dwordx4 v8, s[48:51], s64 offen lds")
            a("s_add_u32 s64, s64, 16384")
        mf(0, 1)
        if issue_next:
            a(f"buffer_load_dwordx4 v[{r}:{r+3}], v2, s[{SRD_WS}:{SRD_WS+3}], s65 offen sc1")
        if rd_next:
            a(f"s_waitcnt vmcnt({vm})")
        mf(1, 0)
        if rd_next:
            trreads((sl + 1) % 3, wnext)
        mf(1, 1)
        if issue_next:
            a(f"buffer_load_dwordx4 v[{r+4}:{r+7}], v9, s[{SRD_WS}:{SRD_WS+3}], s65 offen sc1")
            a("s_add_u32 s65, s65, 1024")
    a("s_waitcnt vmcnt(8)")
    trreads(0, WF2[0])
    a("s_mov_b32 s71, 0")
    a.label("L_d_loop")
    for st in range(6):
        dstep(st % 3, WF2[st % 2], WF2[(st + 1) % 2], True, True, 7)
    a("s_add_u32 s71, s71, 1")
    a("s_cmp_lt_u32 s71, %d" % (1 if "nog2" in FLAGS else 4))
    a("s_cbranch_scc1 L_d_loop")
    dstep(0, WF2[0], WF2[1], True, True, 7)
    dstep(1, WF2[1], WF2[0], False, True, 4)
    dstep(2, WF2[0], WF2[1], False, True, 0)
    dstep(0, WF2[1], WF2[0], False, False, 0)
    stamp(a, 6)
    a(f"s_mul_i32 s64, s44, {8*16384}")
    WOR = [128, 136, 144, 152, 16, 24, 32, 40]
    for sl in range(3):
        issue(sl, 52)
    a("v_sub_f32 v12, 1.0, v12")
    a("v_sub_f32 v13, 1.0, v13")
    a("s_nop 7")
    for t in range(2):
        for i in range(32):
            a(f"v_mul_f32 v{ACC+t*32+i}, v{ACC+t*32+i}, v{12+t}")
    for k in range(8):
        sl = k % 3
        left = min(8, k + 3) - k - 1
        a(f"s_waitcnt vmcnt({2*left})")
        trreads(sl, WOR[k])
        a("s_waitcnt lgkmcnt(0)")
        if k + 3 < 8:
            issue(sl, 52)
    a(f"v_mov_b32 v3, {M_GD}")
    a("v_mov_b32 v4, 1")
    a("s_mov_b64 exec, 1")
    a("ds_add_u32 v3, v4")
    a(f"s_lshl_b32 s{T1}, s44, 3")
    a(f"s_add_u32 s65, s72, s{T1}")
    a("s_add_u32 s65, s65, 112")
    a("s_lshl_b32 s65, s65, 10")
    a(f"s_add_u32 s65, s65, {WS_AF}")
    a("s_add_u32 s66, s65, 4096")
    a(f"s_lshl_b32 s{T0}, s44, 2")
    a(f"s_add_u32 s{T0}, s{T0}, {M_FIN if 'gatefin' in FLAGS else M_CNT}")
    a(f"v_mov_b32 v3, s{T0}")
    a("s_mov_b32 s71, 0")
    a.label("L_g_cd")
    a("ds_read_b32 v4, v3")
    a("s_add_u32 s71, s71, 1")
    a("s_waitcnt lgkmcnt(0)")
    a(f"v_cmp_gt_u32 vcc, {(2 if 'fin2' in FLAGS else 1) if 'gatefin' in FLAGS else GATE}, v4")
    a(f"s_cmp_ge_u32 s71, {SPIN}")
    a("s_cbranch_scc1 L_g_cd2")
    a("s_sleep 4")
    a("s_cbranch_vccnz L_g_cd")
    a.label("L_g_cd2")
    a("s_mov_b64 exec, -1")
    if "tailprio0" in FLAGS: a("s_setprio 0")
    stamp(a, 7)
    AR = [48, 56, 8, 48, WOR[0], 56, WOR[1], 8]
    a("v_mov_b32 v160, v9")
    a("s_mov_b32 s71, 0")
    def issue_o(k):
        r = AR[k]
        so = 65 if k < 4 else 66
        a(f"buffer_load_dwordx4 v[{r}:{r+3}], v2, s[{SRD_WS}:{SRD_WS+3}], s{so} offen offset:{(k%4)*1024} sc1")
        a(f"buffer_load_dwordx4 v[{r+4}:{r+7}], v160, s[{SRD_WS}:{SRD_WS+3}], s{so} offen offset:{(k%4)*1024} sc1")
    after = {0: [3, 4], 1: [5, 6], 2: [7]}
    issued = 3
    for k in range(3): issue_o(k)
    for k in range(8):
        r = AR[k]
        a.label(f"L_o_chk{k}")
        a(f"s_waitcnt vmcnt({2*(issued-k-1)})")
        a(f"v_max3_u32 v3, v{r}, v{r+1}, v{r+2}")
        a(f"v_max3_u32 v4, v{r+3}, v{r+4}, v{r+5}")
        a(f"v_max3_u32 v3, v3, v{r+6}, v{r+7}")
        a("v_max_u32 v3, v3, v4")
        a("v_cmp_eq_u32 vcc, -1, v3")
        a(f"s_cmp_ge_u32 s71, {SPIN}")
        a(f"s_cbranch_scc1 L_o_ok{k}")
        a("s_add_u32 s71, s71, 1")
        a(f"s_cbranch_vccz L_o_ok{k}")
        a("s_waitcnt vmcnt(0)")
        for kk in range(k, issued): issue_o(kk)
        a(f"s_branch L_o_chk{k}")
        a.label(f"L_o_ok{k}")
        mf4(WOR[k], r)
        for kk in after.get(k, []):
            issue_o(kk); issued += 1
    a("s_barrier")
    stamp(a, 8)
    a("s_lshl_b32 s65, s44, 14")
    a("v_add_u32 v3, s65, v2")
    a("s_nop 15")
    for i in range(16):
        a(f"ds_write_b128 v3, v[{ACC+4*i}:{ACC+4*i+3}] offset:{i*1024}")
    a("s_lshl_b32 s65, s44, 12")
    a("v_add_u32 v3, s65, v2")
    a("s_waitcnt lgkmcnt(0)")
    a("s_barrier")
    for w in range(4):
        for q in range(4):
            a(f"ds_read_b128 v[{ACC+16*w+4*q}:{ACC+16*w+4*q+3}], v3 offset:{w*16384+q*1024}")
    a("s_lshr_b32 s65, s44, 1")
    a("s_lshl_b32 s65, s65, 5")
    a(f"s_lshl_b32 s{T0}, s{S_TP}, 6")
    a(f"s_add_u32 s65, s65, s{T0}")
    a("s_lshl_b32 s65, s65, 10")
    a(f"s_lshl_b32 s{T0}, s{S_CT}, 7")
    a(f"s_add_u32 s65, s65, s{T0}")
    a(f"s_and_b32 s{T0}, s44, 1")
    a(f"s_lshl_b32 s{T0}, s{T0}, 6")
    a(f"s_add_u32 s65, s65, s{T0}")
    a("v_and_b32 v3, 31, v1")
    a("v_lshlrev_b32 v3, 10, v3")
    a("v_lshrrev_b32 v4, 5, v1")
    a("v_lshl_add_u32 v3, v4, 4, v3")
    a("s_waitcnt lgkmcnt(0)")
    for w in range(1, 4):
        for i in range(16):
            a(f"v_add_f32 v{ACC+i}, v{ACC+i}, v{ACC+16*w+i}")
    for j in range(8):
        a(f"v_cvt_pk_bf16_f32 v{ACC+j}, v{ACC+2*j}, v{ACC+2*j+1}")
    a(f"buffer_store_dwordx4 v[{ACC}:{ACC+3}], v3, s[56:59], s65 offen")
    a(f"buffer_store_dwordx4 v[{ACC+4}:{ACC+7}], v3, s[56:59], s65 offen offset:32")
    stamp(a, 9)

def main(out):
    a = Asm()
    gen(a)
    txt = HEADER
    txt += f"; @launch grid=(256,1,1) block=(768,1,1) lds={LDS}\n"
    txt += '.amdgcn_target "amdgcn-amd-amdhsa--gfx950"\n.text\n' + a.text()
    txt += '.section .rodata,"a"\n'
    txt += kernel_desc(KN, 168)
    open(out, "w").write(txt)

if __name__ == "__main__":
    if "stamps" in sys.argv: STAMPS = True
    FLAGS.update(sys.argv[2:])
    if "pre3" in FLAGS: NPRE = 3
    for f in list(FLAGS):
        if f.startswith("ninit="): NINIT = int(f[6:])
        if f.startswith("pstep="): PSTEP = int(f[6:])
    main(sys.argv[1] if len(sys.argv) > 1 else f"cdna_kernels/{NAME}.s")
```

```python
import sys, math
from common import *

WS_KF = 0
WS_VF = 65536
WS_G = 131072
WS_FL = 0x30000
WS_QF = 0x40000
WS_AF = 0x400000
WS_ST = 0x2000000
WS_BYTES = 0x10000000
LOG2E = 1.4426950408889634
QSCALE = 0.25 * LOG2E
STAMPS = False
FLAGS = set()
KN = NAME + "_kernel"

SLOT = 26624; NS = 5; NPRE = 4; ND = 7
O_X = 18432; O_Q = 16384
B_UP = 6176
WS_QH = 0x1000000
PA = 3 * SLOT; PA_W = 9472
L_K = 0; L_V = 65536
GS = 131072; GS_W = 6144
QX = 131072
MISC = 162304
OX = 131072; OXS = 4608
M_CNT, M_FIN, M_RDY, M_GD, M_CD, M_HD, M_KV = MISC, MISC + 16, MISC + 32, MISC + 48, MISC + 52, MISC + 56, MISC + 60
CROT = 7
LDS = 163840
SPIN = 200000
GATE = 18
NINIT = 4
PSTEP = 2
NA = 8
PST0 = 1

S_X, S_WQ, S_WK, S_WV, S_WO = 4, 6, 8, 10, 12
S_WG, S_WU, S_WD, S_GW = 16, 18, 20, 22
S_OUT, S_DBG, S_WS = 24, 26, 28
S_W, S_MT, S_FS, S_TP, S_CT = 30, 31, 32, 33, 34
T0, T1, T2 = 14, 15, 35
SRD_X, SRD_WS = 36, 40

DBGMAP_C = {2: 3, 3: 4, 6: 5, 5: 6}
DBGMAP_G = {1: 8, 2: 9, 5: 10, 6: 11, 7: 12, 8: 13}
ROLE = ["c"]
def dstamp(a, idx):
    u = a.new_label("ds")
    if idx == 0 or idx == 9:
        a("s_memrealtime s[92:93]")
        a("s_waitcnt lgkmcnt(0)")
        if idx == 0: a("s_not_b32 s92, s92")
        a(f"s_cmp_lg_u32 s{S_W}, 8")
        a(f"s_cbranch_scc1 {u}")
        a("v_mov_b32 v164, s92")
        a(f"v_mov_b32 v165, {4 if idx == 0 else 8}")
        a("s_mov_b64 exec, 1")
        a(f"global_atomic_umax v165, v164, s[{S_DBG}:{S_DBG+1}] sc1")
        a("s_mov_b64 exec, -1")
        a.label(u)
        return
    m = DBGMAP_C if ROLE[0] == "c" else DBGMAP_G
    if idx not in m: return
    a(f"s_lshl_b32 s94, s2, 4")
    a(f"s_add_u32 s94, s94, s{S_W}")
    a(f"s_cmp_lg_u32 s94, {0 if ROLE[0] == 'c' else 8}")
    a(f"s_cbranch_scc1 {u}")
    a("s_memrealtime s[92:93]")
    a("s_waitcnt lgkmcnt(0)")
    a("v_mov_b32 v164, s92")
    a(f"v_mov_b32 v165, {4*m[idx]}")
    a(f"global_store_dword v165, v164, s[{S_DBG}:{S_DBG+1}]")
    a.label(u)

def stamp(a, idx, sreg=None):
    if "dstamp" in FLAGS: return dstamp(a, idx)
    if not STAMPS: return
    a("s_memtime s[90:91]")
    a("s_memrealtime s[92:93]")
    a(f"s_lshl_b32 s94, s2, 4")
    a(f"s_add_u32 s94, s94, s{S_W}")
    a(f"s_lshl_b32 s94, s94, 8")
    a(f"s_add_u32 s94, s94, {WS_ST + idx*8}")
    if sreg is not None:
        a(f"s_lshl_b32 s95, s{sreg}, 3")
        a("s_add_u32 s94, s94, s95")
    a("s_waitcnt lgkmcnt(0)")
    a("v_mov_b32 v164, s90")
    a("v_mov_b32 v165, s92")
    a("v_mov_b32 v166, 0")
    a(f"buffer_store_dwordx2 v[164:165], v166, s[{SRD_WS}:{SRD_WS+3}], s94 offen")

def tr_lane(a, v_mat, v_row, v_colb, t):
    a(f"v_lshrrev_b32 v{v_mat}, 4, v1")
    a(f"v_bfe_u32 v{v_row}, v1, 2, 2")
    a(f"v_and_b32 v{t}, 1, v1")
    a(f"v_lshlrev_b32 v{v_colb}, 4, v{t}")
    a(f"v_bfe_u32 v{t}, v1, 1, 1")
    a(f"v_lshl_or_b32 v{v_colb}, v{t}, 3, v{v_colb}")
    a(f"v_lshrrev_b32 v{t}, 1, v{v_mat}")
    a(f"v_lshl_add_u32 v{v_row}, v{t}, 3, v{v_row}")
    a(f"v_and_b32 v{v_mat}, 1, v{v_mat}")

def poll(a, nm, base_pair, voff_reg, vtmp, target, nwords=1, sleep=4):
    a(f"s_mov_b64 exec, {(1 << nwords) - 1}")
    a(f"s_mov_b32 s{T2}, 0")
    a.label(f"{nm}_poll")
    a(f"global_load_dword v{vtmp}, v{voff_reg}, s[{base_pair}:{base_pair+1}] sc1")
    a(f"s_add_u32 s{T2}, s{T2}, 1")
    a("s_waitcnt vmcnt(0)")
    a(f"v_cmp_gt_u32 vcc, {target}, v{vtmp}")
    a(f"s_cmp_ge_u32 s{T2}, {SPIN}")
    a(f"s_cbranch_scc1 {nm}_pdone")
    a("s_nop 1")
    a(f"s_cbranch_vccz {nm}_pdone")
    a(f"s_sleep {sleep}")
    a(f"s_branch {nm}_poll")
    a.label(f"{nm}_pdone")
    a("s_mov_b64 exec, -1")

def kv_pieces():
    last = {s % NS: s for s in range(16)}
    groups = {}
    for i in range(128):
        lo, hi = i * 1024, i * 1024 + 1023
        need = 11
        for sl in range(NS):
            if lo < (sl + 1) * SLOT and hi >= sl * SLOT:
                need = max(need, last[sl])
        groups.setdefault(need, []).append(i)
    return groups

def gen(a):
    name = KN
    kernel_begin(a, name)
    a("s_cmp_ge_u32 s2, 256")
    a(f"s_cbranch_scc1 L_exit")
    a("s_load_dwordx8 s[4:11], s[0:1], 0")
    a("s_load_dwordx2 s[12:13], s[0:1], 32")
    a("s_load_dwordx8 s[16:23], s[0:1], 48")
    a("s_load_dwordx4 s[24:27], s[0:1], 80")
    a("s_load_dwordx2 s[28:29], s[0:1], 96")
    a("s_getpc_b64 s[80:81]")
    a.label("L_pc_ref")
    a("s_mov_b32 s82, L_code_end-L_pc_ref")
    a("s_mov_b32 s83, 0x00020000")
    a("v_lshlrev_b32 v3, 7, v0")
    if "nocpf" not in FLAGS:
        a("buffer_load_dword v163, v3, s[80:83], 0 offen")
    a("v_lshrrev_b32 v2, 6, v0")
    a("v_and_b32 v1, 63, v0")
    a(f"v_readfirstlane_b32 s{S_W}, v2")
    a(f"s_and_b32 s{T0}, s2, 7")
    a(f"s_lshr_b32 s{T1}, s2, 3")
    a(f"s_and_b32 s{S_MT}, s{T0}, 1")
    a(f"s_lshl_b32 s{S_MT}, s{S_MT}, 3")
    a(f"s_and_b32 s{S_FS}, s{T1}, 7")
    a(f"s_add_u32 s{S_MT}, s{S_MT}, s{S_FS}")
    a(f"s_lshr_b32 s{S_FS}, s{T0}, 1")
    a(f"s_lshl_b32 s{S_FS}, s{S_FS}, 2")
    a(f"s_lshr_b32 s{T2}, s{T1}, 3")
    a(f"s_add_u32 s{S_FS}, s{S_FS}, s{T2}")
    a(f"s_lshl_b32 s{S_TP}, s{T0}, 2")
    a(f"s_and_b32 s{T2}, s{T1}, 3")
    a(f"s_add_u32 s{S_TP}, s{S_TP}, s{T2}")
    a(f"s_lshr_b32 s{S_CT}, s{T1}, 2")
    a(f"s_andn2_b32 s3, 1, s{S_FS}")
    a(f"s_and_b32 s{T2}, s{S_FS}, 3")
    a(f"s_lshl_b32 s{T2}, s{T2}, 3")
    a(f"s_lshr_b32 s98, 0x16081000, s{T2}")
    a("s_and_b32 s98, s98, 0xff")
    a(f"s_lshr_b32 s{T2}, s{S_FS}, 2")
    a(f"s_mul_i32 s{T2}, s{T2}, 28")
    a(f"s_add_u32 s98, s98, s{T2}")
    a("v_lshlrev_b32 v2, 4, v1")
    a(f"v_mov_b32 v4, {MISC+64}")
    a("v_mov_b32 v6, 0")
    a("v_mov_b32 v7, 0")
    a("ds_write_b64 v4, v[5:6]".replace("v[5:6]", "v[6:7]"))
    a("s_waitcnt lgkmcnt(0)")
    make_srd(a, SRD_X, S_X, 2048 * 512 * 2)
    make_srd(a, SRD_WS, S_WS, WS_BYTES)
    a("s_barrier")
    stamp(a, 0)
    a(f"s_cmp_lt_u32 s{S_W}, 8")
    a("s_cbranch_scc1 L_role_c")
    gen_g1(a)
    gen_c(a)
    gen_g2(a)
    a.label("L_exit")
    a("s_endpgm")
    a.label("L_code_end")

def gen_c(a):
    ROLE[0] = "c"
    a.label("L_role_c")
    a(f"v_mov_b32 v158, s{S_X}")
    a(f"v_mov_b32 v159, s{S_X+1}")
    a("v_mov_b32 v157, 0")
    a(f"s_mov_b32 s47, s{S_W}")
    a("s_cmp_eq_u32 s3, 0")
    a("s_cbranch_scc1 L_c_pfB")
    a(f"s_cmp_ge_u32 s{S_W}, {NA}")
    a("s_cbranch_scc1 L_c_latepf")
    a("s_branch L_c_pfgo")
    a.label("L_c_pfB")
    a(f"s_mov_b32 s47, {NA}")
    a(f"s_cmp_lg_u32 s{S_W}, 7")
    a("s_cbranch_scc1 L_c_latepf")
    a.label("L_c_pfgo")
    a("s_lshr_b32 s44, s2, 3")
    a("s_lshr_b32 s45, s2, 7")
    a("s_and_b32 s44, s44, 7")
    a("s_lshl_b32 s45, s45, 3")
    a("s_add_u32 s44, s44, s45")
    a("s_and_b32 s45, s2, 7")
    a("s_lshr_b32 s46, s45, 1")
    a("s_lshl_b32 s47, s47, 6")
    a("s_add_u32 s47, s47, s44")
    a("v_lshrrev_b32 v3, 4, v1")
    a("v_lshl_add_u32 v3, v3, 4, s47")
    a("v_and_b32 v4, 15, v1")
    a("s_mul_i32 s48, s46, 896")
    a("v_mul_u32_u24 v5, 3584, v3")
    a("v_lshl_add_u32 v5, v4, 7, v5")
    a("v_add_u32 v5, s48, v5")
    a(f"v_mov_b32 v6, s{S_WG}")
    a(f"v_mov_b32 v7, s{S_WG+1}")
    a("v_cmp_lt_u32 vcc, 6, v4")
    a(f"v_mov_b32 v8, s{S_WU}")
    a(f"v_mov_b32 v9, s{S_WU+1}")
    a("v_subrev_u32 v10, 896, v5")
    a("v_cndmask_b32 v6, v6, v8, vcc")
    a("v_cndmask_b32 v7, v7, v9, vcc")
    a("v_cndmask_b32 v5, v5, v10, vcc")
    a("v_cmp_lt_u32 vcc, 13, v4")
    a(f"v_mov_b32 v8, s{S_WQ}")
    a(f"v_mov_b32 v9, s{S_WQ+1}")
    a("v_lshlrev_b32 v10, 10, v3")
    a("v_and_b32 v11, 1, v1")
    a("v_lshl_add_u32 v10, v11, 7, v10")
    a("s_lshl_b32 s48, s46, 8")
    a("v_add_u32 v10, s48, v10")
    a("v_cndmask_b32 v6, v6, v8, vcc")
    a("v_cndmask_b32 v7, v7, v9, vcc")
    a("v_cndmask_b32 v5, v5, v10, vcc")
    a(f"v_mov_b32 v157, {64*3584}")
    a(f"v_mov_b32 v10, {64*1024}")
    a("v_cndmask_b32 v157, v157, v10, vcc")
    a("v_add_co_u32 v158, vcc, v6, v5")
    a("s_nop 1")
    a("v_addc_co_u32 v159, vcc, 0, v7, vcc")
    a("s_cmp_eq_u32 s3, 0")
    a("s_cbranch_scc1 L_c_latepf")
    a("global_load_dword v160, v[158:159], off")
    if "pfx" in FLAGS:
        a("s_and_b32 s48, s45, 1")
        a("s_lshl_b32 s48, s48, 4")
        a("s_add_u32 s48, s48, s44")
        a("s_lshl_b32 s48, s48, 16")
        a(f"s_lshl_b32 s49, s{S_W}, 7")
        a("s_add_u32 s48, s48, s49")
        a("v_lshlrev_b32 v10, 10, v1")
        a(f"buffer_load_dword v162, v10, s[{SRD_X}:{SRD_X+3}], s48 offen")
    a.label("L_c_latepf")
    a(f"s_and_b32 s70, s{S_W}, 3")
    a(f"s_lshr_b32 s71, s{S_W}, 2")
    a(f"s_lshl_b32 s72, s{S_MT}, 2")
    a("s_add_u32 s72, s72, s70")
    a("s_mul_i32 s78, s72, 144")
    a(f"s_lshl_b32 s73, s{S_FS}, 1")
    a("s_add_u32 s78, s78, s73")
    a("s_add_u32 s78, s78, 112")
    a("s_lshl_b32 s78, s78, 10")
    a(f"s_add_u32 s78, s78, {WS_AF}")
    a("s_lshl_b32 s73, s71, 10")
    a("s_add_u32 s73, s73, s78")
    for i in range(4):
        a(f"v_mov_b32 v{8+i}, -1")
    a(f"buffer_store_dwordx4 v[8:11], v2, s[{SRD_WS}:{SRD_WS+3}], s73 offen sc1")
    tr_lane(a, 3, 4, 5, 6)
    a(f"s_and_b32 s60, s{S_W}, 1")
    a(f"s_lshr_b32 s61, s{S_W}, 1")
    a("v_and_b32 v6, 31, v1")
    a("v_bfe_u32 v60, v1, 2, 2")
    a("v_lshrrev_b32 v61, 5, v1")
    a("v_xor_b32 v61, v61, v60")
    a("v_xor_b32 v60, 2, v61")
    a("v_lshlrev_b32 v6, 6, v6")
    a(f"s_lshl_b32 s{T0}, s60, 12")
    a(f"s_add_u32 s{T0}, s{T0}, {O_X}")
    a(f"v_add_u32 v6, s{T0}, v6")
    a("v_lshl_add_u32 v53, v61, 4, v6")
    a("v_lshl_add_u32 v54, v60, 4, v6")
    a("s_lshl_b32 s62, s61, 1")
    a("v_lshlrev_b32 v48, 6, v4")
    a("v_lshl_add_u32 v48, v3, 5, v48")
    a("v_add_u32 v48, v48, v5")
    a(f"v_add_u32 v48, {O_Q}, v48")
    a("s_cmp_eq_u32 s3, 0")
    a("s_cbranch_scc1 L_c_tB")
    a("v_and_b32 v6, 3, v4")
    a("v_lshl_or_b32 v6, v6, 1, v3")
    a("v_xor_b32 v6, s62, v6")
    a("v_lshlrev_b32 v60, 13, v3")
    a("v_lshl_add_u32 v60, v4, 8, v60")
    a("v_add_u32 v60, v60, v5")
    a("v_lshl_add_u32 v55, v6, 5, v60")
    a("v_xor_b32 v59, 32, v55")
    a(f"s_mov_b32 s{T0}, 1024")
    a("s_branch L_c_u1done")
    a.label("L_c_tB")
    a(f"v_mul_u32_u24 v6, {B_UP}, v3")
    a("v_mul_u32_u24 v60, 192, v4")
    a("v_add3_u32 v6, v6, v60, v5")
    a(f"s_lshl_b32 s{T0}, s61, 6")
    a(f"v_add_u32 v55, s{T0}, v6")
    a("v_add_u32 v59, 32, v55")
    a(f"s_mov_b32 s{T0}, 768")
    a.label("L_c_u1done")
    a(f"s_lshl_b32 s{T1}, s{T0}, 2")
    for b in (55, 59):
        a(f"v_add_u32 v{b+1}, s{T0}, v{b}")
        a(f"v_add_u32 v{b+2}, s{T1}, v{b}")
        a(f"v_add_u32 v{b+3}, s{T0}, v{b+2}")
    a("s_mov_b32 s99, 0")
    a("s_cmp_eq_u32 s3, 0")
    a("s_cbranch_scc1 L_c_vB")
    a("s_add_u32 s65, s61, 1")
    a(f"s_cmp_lt_u32 s{S_W}, 4")
    a("s_cselect_b32 s99, s65, 0")
    a("s_branch L_c_vdone")
    a.label("L_c_vB")
    a("s_cmp_eq_u32 s61, 3")
    a("s_cselect_b32 s99, 3, 0")
    a.label("L_c_vdone")
    a(f"s_cmp_eq_u32 s{S_W}, 0")
    a("s_cselect_b32 s69, 8, 99")
    a(f"s_cmp_eq_u32 s{S_W}, 7")
    a(f"s_cselect_b32 s69, {PST0 if NA < 8 else 99}, s69")
    a(f"s_mov_b32 s68, {8-NA}")
    XA = (8, 12); WA = (16, 20)
    XB = (28, 32); WB = (36, 40)
    def rd_list(X, W, c_x, w0a, w0b, w1a, w1b):
        return [f"ds_read_b128 v[{X[0]}:{X[0]+3}], v{c_x}",
                f"ds_read_b64_tr_b16 v[{W[0]}:{W[0]+1}], v{w0a}",
                f"ds_read_b64_tr_b16 v[{W[0]+2}:{W[0]+3}], v{w0b}",
                f"ds_read_b64_tr_b16 v[{W[1]}:{W[1]+1}], v{w1a}",
                f"ds_read_b64_tr_b16 v[{W[1]+2}:{W[1]+3}], v{w1b}",
                f"ds_read_b128 v[{X[1]}:{X[1]+3}], v{c_x} offset:2048"]
    QA_, QB_ = 24, 44
    QACC = 138
    def qrd(dst, c_q, ks):
        return [f"ds_read_b64_tr_b16 v[{dst}:{dst+1}], v{c_q} offset:{16*ks*64}",
                f"ds_read_b64_tr_b16 v[{dst+2}:{dst+3}], v{c_q} offset:{(16*ks+4)*64}"]
    def reads(var, X, W, Q, regs, c_q, ks):
        r = rd_list(X, W, *regs)
        if var in (1, 2): r = r + qrd(Q, c_q, ks)
        if var == 3: r = [r[0]] + qrd(Q, c_q, ks) + [r[5]]
        return r
    def mf_rd(var, X, W, Q, rds, first=False, extra=()):
        rds = list(rds); extra = list(extra)
        ops = []
        if var == 3:
            ops = [(64 + t * 32, Q, X[t]) for t in range(2)]
        else:
            ops = [(64 + (t * 2 + u) * 16, W[u], X[t]) for t in range(2) for u in range(2)]
            if var: ops.insert(2, (QACC, Q, X[var - 1]))
        for k, (d, w_, x_) in enumerate(ops):
            c = "0" if first else f"v[{d}:{d+15}]"
            a(f"v_mfma_f32_32x32x16_bf16 v[{d}:{d+15}], v[{w_}:{w_+3}], v[{x_}:{x_+3}], {c}")
            for _ in range(4 if var == 3 else 3):
                if rds: a(rds.pop(0))
            if k == len(ops) - 2:
                for e in extra: a(e)
    BK = [f"s_add_u32 s63, s63, {SLOT}", f"s_cmp_eq_u32 s63, {NS*SLOT}", "s_cselect_b32 s63, 0, s63", "s_add_u32 s64, s64, 1", "s_cmp_lt_u32 s64, 16"]
    a(f"s_mov_b32 s63, {SLOT}")
    a("s_mov_b32 s64, 0")
    for var in (1, 2, 3):
        a(f"s_cmp_eq_u32 s99, {var}")
        a(f"s_cbranch_scc1 L_c_var{var}")
    for var in (0, 1, 2, 3):
        CUR = [f"v_add_u32 v{128+i}, s63, v{53+i}" for i in (range(2) if var == 3 else range(10))]
        if var: CUR.append("v_add_u32 v154, s63, v48")
        RA = reads(var, XA, WA, QA_, (128, 130, 131, 134, 135), 154, 0)
        RB = reads(var, XB, WB, QB_, (129, 132, 133, 136, 137), 154, 1)
        a.label(f"L_c_var{var}")
        a("s_barrier")
        stamp(a, 2)
        for r in reads(var, XA, WA, QA_, (53, 55, 56, 59, 60), 48, 0): a(r)
        a("s_waitcnt lgkmcnt(0)")
        mf_rd(var, XA, WA, QA_, reads(var, XB, WB, QB_, (54, 57, 58, 61, 62), 48, 1), first=True, extra=CUR)
        a(f"s_branch L_c_noside{var}")
        a.label(f"L_c_loop{var}")
        a("s_waitcnt lgkmcnt(0)")
        if "stagest" in FLAGS: a("s_mov_b32 m0, s64\ns_nop 0\nv_writelane_b32 v167, s96, m0")
        if var == 3:
            mf_rd(var, XA, WA, QA_, RB, extra=CUR + ["s_cmp_eq_u32 s64, s69"])
            a("s_cbranch_scc1 L_c_side3")
        elif var < 2:
            mf_rd(var, XA, WA, QA_, RB, extra=CUR + ["s_cmp_eq_u32 s64, s69"])
            a("s_cbranch_scc1 L_c_side")
        else:
            mf_rd(var, XA, WA, QA_, RB, extra=CUR)
        a.label(f"L_c_noside{var}")
        a("s_waitcnt lgkmcnt(0)")
        a("s_barrier")
        if "stagest" in FLAGS: a("s_memtime s[96:97]")
        mf_rd(var, XB, WB, QB_, RA, extra=BK)
        a(f"s_cbranch_scc1 L_c_loop{var}")
        a("s_branch L_c_p1end")
    a.label("L_c_noside")
    a("s_cmp_eq_u32 s99, 0")
    a("s_cbranch_scc1 L_c_noside0")
    a("s_branch L_c_noside1")
    a.label("L_c_side3")
    a("global_load_dword v160, v[158:159], off")
    a("v_add_co_u32 v158, vcc, v158, v157")
    a(f"s_add_u32 s69, s69, {PSTEP}")
    a("s_sub_u32 s68, s68, 1")
    a("v_addc_co_u32 v159, vcc, 0, v159, vcc")
    a("s_cmp_eq_u32 s68, 0")
    a("s_cselect_b32 s69, 99, s69")
    a("s_branch L_c_noside3")
    a.label("L_c_side")
    a(f"s_cmp_lg_u32 s{S_W}, 0")
    a("s_cbranch_scc1 L_c_noside")
    a.label("L_c_side10")
    a("v_lshlrev_b32 v6, 7, v1")
    a("s_cmp_eq_u32 s64, 11")
    a("s_cbranch_scc1 L_c_side11")
    a("s_mov_b32 s69, 11")
    a("s_mov_b64 exec, 3")
    a(f"global_load_dword v161, v6, s[{S_DBG}:{S_DBG+1}] sc1")
    a("s_mov_b64 exec, -1")
    a("s_branch L_c_noside")
    a.label("L_c_side11")
    a("s_mov_b32 s69, 99")
    a("s_mov_b64 exec, 3")
    a("s_waitcnt vmcnt(0)")
    a("v_cmp_gt_u32 vcc, 64, v161")
    a("s_mov_b64 exec, -1")
    a("s_nop 1")
    a("s_cbranch_vccz L_c_noside")
    poll(a, "L_kv", S_DBG, 6, 7, 64, nwords=2, sleep=32)
    a("s_branch L_c_noside")
    a.label("L_c_p1end")
    stamp(a, 3)
    if "stagest" in FLAGS:
        a("s_mov_b32 m0, s64\ns_nop 0\nv_writelane_b32 v167, s96, m0")
        a(f"s_lshl_b32 s94, s2, 4")
        a(f"s_add_u32 s94, s94, s{S_W}")
        a(f"s_lshl_b32 s94, s94, 8")
        a(f"s_add_u32 s94, s94, {WS_ST + 0x100000}")
        a("v_lshlrev_b32 v166, 2, v1")
        a(f"buffer_store_dword v167, v166, s[{SRD_WS}:{SRD_WS+3}], s94 offen")
    a("s_waitcnt lgkmcnt(0)")
    a("s_nop 7")
    a(f"s_lshl_b32 s66, s{S_MT}, 2")
    a("s_lshl_b32 s65, s60, 1")
    a("s_add_u32 s66, s66, s65")
    def h_tile(t, u):
        d = 64 + (t * 2 + u) * 16
        for j in range(0, 8, 2):
            a(f"v_pk_mul_f32 v[{d+j}:{d+j+1}], v[{d+j}:{d+j+1}], v[{d+8+j}:{d+9+j}]")
        for j in range(4):
            a(f"v_cvt_pk_bf16_f32 v{d+j}, v{d+2*j}, v{d+2*j+1}")
        a(f"buffer_store_dwordx4 v[{d}:{d+3}], v2, s[{SRD_WS}:{SRD_WS+3}], s{67+t} offen offset:{1024*u} sc1")
    a(f"v_mov_b32 v8, {f32hex(QSCALE)}")
    a(f"v_mov_b32 v9, {f32hex(QSCALE)}")
    def q_tile(d, off):
        for j in range(0, 16, 2):
            a(f"v_pk_mul_f32 v[{d+j}:{d+j+1}], v[{d+j}:{d+j+1}], v[8:9]")
        for j in range(8):
            a(f"v_cvt_pk_bf16_f32 v{d+j}, v{d+2*j}, v{d+2*j+1}")
    a(f"s_lshl_b32 s65, s60, 12")
    a(f"s_add_u32 s65, s65, {QX}")
    a("s_cmp_eq_u32 s99, 3")
    a("s_cbranch_scc1 L_c_qep")
    a("s_cmp_eq_u32 s99, 0")
    a("s_cbranch_scc1 L_c_hep")
    a("s_lshl_b32 s67, s61, 11")
    a("s_add_u32 s65, s65, s67")
    a("v_add_u32 v6, s65, v2")
    for j in range(0, 16, 2):
        a(f"v_pk_mul_f32 v[{QACC+j}:{QACC+j+1}], v[{QACC+j}:{QACC+j+1}], v[8:9]")
    for j in range(8):
        a(f"v_cvt_pk_bf16_f32 v{16+j}, v{QACC+2*j}, v{QACC+2*j+1}")
    a("ds_write_b128 v6, v[16:19]")
    a("ds_write_b128 v6, v[20:23] offset:1024")
    a.label("L_c_hep")
    a("s_mul_i32 s67, s66, 144")
    a("s_add_u32 s67, s67, s98")
    a("s_add_u32 s67, s67, s62")
    a("s_lshl_b32 s67, s67, 10")
    a(f"s_add_u32 s67, s67, {WS_AF}")
    a(f"s_add_u32 s68, s67, {144*1024}")
    h_tile(0, 0)
    h_tile(1, 0)
    h_tile(0, 1)
    h_tile(1, 1)
    a("s_waitcnt lgkmcnt(0)")
    a("s_branch L_c_epdone")
    a.label("L_c_qep")
    a("v_add_u32 v6, s65, v2")
    for t in range(2):
        d = 64 + t * 32
        q_tile(d, 0)
        a(f"ds_write_b128 v6, v[{d}:{d+3}] offset:{t*2048}")
        a(f"ds_write_b128 v6, v[{d+4}:{d+7}] offset:{t*2048+1024}")
    a.label("L_c_epdone")
    SA = (32, 48); SB = (64, 80); OA = 96; OB = 112
    QA = 4; QB = 8; KF = (12, 16); VF = (20, 128)
    IDX = 28; AK = 29; AV = 30; VG = 31
    AKN = 136; AVN = 137; VB = 138; MA = 139; ONE = 140; NX = 141
    a("s_lshl_b32 s65, s72, 7")
    a(f"s_add_u32 s65, s65, {WS_G}")
    a("v_and_b32 v3, 31, v1")
    a("v_lshlrev_b32 v3, 2, v3")
    a(f"buffer_load_dword v{VG}, v3, s[{SRD_WS}:{SRD_WS+3}], s65 offen sc1")
    a(f"s_add_u32 s65, s71, {CROT}")
    a("s_lshl_b32 s65, s65, 12")
    a(f"v_add_u32 v{AK}, s65, v2")
    a("v_lshrrev_b32 v3, 5, v1")
    a("v_and_b32 v32, 15, v1")
    a("v_lshl_add_u32 v3, v3, 4, v32")
    a("v_lshlrev_b32 v3, 4, v3")
    a(f"v_add_u32 v{VB}, {L_V}, v3")
    a(f"v_add_u32 v{AV}, s65, v{VB}")
    a(f"v_mov_b32 v{IDX}, 0xdddddddd")
    a("v_and_b32 v3, 27, v1")
    a("v_cmp_eq_u32 vcc, 16, v3")
    a("v_mov_b32 v3, 0x3f803f80")
    a("s_lshl_b32 s65, s70, 2")
    a("v_cndmask_b32 v3, 0, v3, vcc")
    for b in VF:
        for i in range(8):
            a(f"v_mov_b32 v{b+i}, v3")
    a("s_mov_b32 s74, 0x0000ffff")
    a("s_mov_b32 s75, 0x0000ffff")
    a(f"s_add_u32 s65, s65, {MISC}")
    a(f"v_mov_b32 v{MA}, s65")
    a(f"v_mov_b32 v{ONE}, 1")
    a("s_lshl_b32 s65, s70, 11")
    a(f"s_add_u32 s65, s65, {QX}")
    a("v_add_u32 v3, s65, v2")
    a(f"v_mov_b32 v33, {M_CD}")
    a("s_waitcnt lgkmcnt(0)")
    for i in range(16):
        a(f"v_mov_b32 v{OA+i}, 0")
        a(f"v_mov_b32 v{OB+i}, 0")
    for i in range(8, 16):
        a(f"v_mov_b32 v{SB[1]+i}, 0")
    a("s_barrier")
    stamp(a, 4)
    a(f"ds_read_b128 v[{QA}:{QA+3}], v3")
    a(f"ds_read_b128 v[{KF[0]}:{KF[0]+3}], v{AK}")
    a(f"ds_read_b128 v[{QB}:{QB+3}], v3 offset:1024")
    a(f"ds_read_b128 v[{KF[1]}:{KF[1]+3}], v{AK} offset:1024")
    a("s_mov_b64 exec, s[74:75]")
    a(f"ds_read_b128 v[{VF[0]}:{VF[0]+3}], v{AV}")
    a(f"ds_read_b128 v[{VF[0]+4}:{VF[0]+7}], v{AV} offset:512")
    a("s_mov_b64 exec, 1")
    a(f"ds_add_u32 v33, v{ONE}")
    a("s_mov_b64 exec, -1")
    a("s_waitcnt lgkmcnt(0)")
    if "dumpq" in FLAGS:
        a("s_lshl_b32 s65, s72, 5")
        a(f"s_lshl_b32 s73, s{S_FS}, 1")
        a("s_add_u32 s65, s65, s73")
        a("s_lshl_b32 s65, s65, 10")
        a(f"s_add_u32 s65, s65, {WS_QF}")
        a(f"buffer_store_dwordx4 v[{QA}:{QA+3}], v2, s[{SRD_WS}:{SRD_WS+3}], s65 offen")
        a(f"buffer_store_dwordx4 v[{QB}:{QB+3}], v2, s[{SRD_WS}:{SRD_WS+3}], s65 offen offset:1024")
    a(f"v_mfma_f32_32x32x16_bf16 v[{SA[0]}:{SA[0]+15}], v[{KF[0]}:{KF[0]+3}], v[{QA}:{QA+3}], 0")
    a(f"v_mfma_f32_32x32x16_bf16 v[{SB[0]}:{SB[0]+15}], v[{KF[0]}:{KF[0]+3}], v[{QB}:{QB+3}], 0")
    a("s_nop 15")
    def smf(O, V, P):
        a(f"v_smfmac_f32_32x32x32_bf16 v[{O}:{O+15}], v[{V}:{V+3}], v[{P}:{P+7}], v{IDX}")
    UN = 4
    def tile(t):
        c = t & 1; n = c ^ 1
        sa, sb = SA[c], SB[c]
        def E(S, i): a(f"v_exp_f32 v{S+i}, v{S+i}")
        a("s_waitcnt lgkmcnt(0)")
        if t == 1:
            a(f"v_readfirstlane_b32 s73, v{NX}")
        if t + 2 < UN: a(f"ds_read_b128 v[{KF[c]}:{KF[c]+3}], v{AK} offset:{(t+2)*1024}")
        else:          a(f"ds_read_b128 v[{KF[c]}:{KF[c]+3}], v{AKN} offset:{(t+2-UN)*1024}")
        E(sa, 0); E(sa, 1)
        smf(OB, VF[n] + 4, SB[n] + 8)
        a("s_mov_b64 exec, s[74:75]")
        av, vo = (AV, (t + 1) * 1024) if t + 1 < UN else (AVN, 0)
        a(f"ds_read_b128 v[{VF[n]}:{VF[n]+3}], v{av} offset:{vo}")
        a(f"ds_read_b128 v[{VF[n]+4}:{VF[n]+7}], v{av} offset:{vo+512}")
        if t == 0:
            a("s_mov_b64 exec, 1")
            a(f"ds_add_rtn_u32 v{NX}, v{MA}, v{ONE}")
        a("s_mov_b64 exec, -1")
        if t == 1:
            a(f"s_add_u32 s65, s73, {CROT}")
            a("s_and_b32 s65, s65, 15")
            a("s_lshl_b32 s65, s65, 12")
        for i in range(2, 6): E(sa, i)
        a(f"v_mfma_f32_32x32x16_bf16 v[{SA[n]}:{SA[n]+15}], v[{KF[n]}:{KF[n]+3}], v[{QA}:{QA+3}], 0")
        if t == 1:
            a(f"v_add_u32 v{AKN}, s65, v2")
            a(f"v_add_u32 v{AVN}, s65, v{VB}")
        for i in range(6, 11): E(sa, i)
        smf(OA, VF[c], sa)
        for i in range(11, 16): E(sa, i)
        E(sb, 0); E(sb, 1)
        smf(OA, VF[c] + 4, sa + 8)
        for i in range(2, 6): E(sb, i)
        a(f"v_mfma_f32_32x32x16_bf16 v[{SB[n]}:{SB[n]+15}], v[{KF[n]}:{KF[n]+3}], v[{QB}:{QB+3}], 0")
        for i in range(6, 11): E(sb, i)
        smf(OB, VF[c], sb)
        if t == UN - 1:
            a(f"v_mov_b32 v{AK}, v{AKN}")
            a(f"v_mov_b32 v{AV}, v{AVN}")
        for i in range(11, 16): E(sb, i)
    a("s_mov_b32 s79, 0")
    a("s_mov_b32 s73, 0")
    a("s_cmp_lg_u32 s71, 0")
    a("s_cbranch_scc1 L_a_job")
    stamp(a, 6)
    a.label("L_a_loop")
    for t in range(UN):
        tile(t)
    a("s_cmp_eq_u32 s79, 0")
    a("s_cbranch_scc1 L_a_job")
    a.label("L_a_next")
    a(f"s_cmp_lt_u32 s73, {64//UN}")
    a("s_cbranch_scc1 L_a_loop")
    a("s_mov_b64 exec, 1")
    a(f"ds_add_rtn_u32 v{NX}, v{MA}, v{ONE} offset:16")
    a(f"v_mov_b32 v3, {M_GD}")
    a("s_mov_b64 exec, -1")
    smf(OB, VF[1] + 4, SB[1] + 8)
    a(f"s_mul_i32 s65, s70, {OXS}")
    a(f"s_add_u32 s65, s65, {OX}")
    a("v_add_u32 v32, s65, v2")
    a("v_lshrrev_b32 v33, 1, v2")
    a("v_add_u32 v33, s65, v33")
    a("s_waitcnt lgkmcnt(0)")
    a(f"v_readfirstlane_b32 s73, v{NX}")
    stamp(a, 5)
    a("s_nop 3")
    a("s_cmp_lg_u32 s73, 0")
    a("s_cbranch_scc1 L_a_second")
    a("s_mov_b64 exec, 1")
    a("s_mov_b32 s65, 0")
    a.label("L_a_gd")
    a("ds_read_b32 v34, v3")
    a("s_add_u32 s65, s65, 1")
    a("s_waitcnt lgkmcnt(0)")
    a("v_cmp_gt_u32 vcc, 4, v34")
    a(f"s_cmp_ge_u32 s65, {SPIN*4}")
    a("s_cbranch_scc1 L_a_gd2")
    a("s_nop 1")
    a("s_cbranch_vccnz L_a_gd")
    a.label("L_a_gd2")
    a("s_mov_b64 exec, -1")
    a(f"v_mov_b32 v{OA+9}, v{OB+8}")
    a(f"ds_write_b128 v32, v[{OA}:{OA+3}]")
    a(f"ds_write_b128 v32, v[{OA+4}:{OA+7}] offset:1024")
    a(f"ds_write_b128 v32, v[{OB}:{OB+3}] offset:2048")
    a(f"ds_write_b128 v32, v[{OB+4}:{OB+7}] offset:3072")
    a(f"ds_write_b64 v33, v[{OA+8}:{OA+9}] offset:4096")
    a("s_waitcnt lgkmcnt(0)")
    a("s_mov_b64 exec, 1")
    a(f"ds_write_b32 v{MA}, v{ONE} offset:32")
    a("s_endpgm")
    a.label("L_a_second")
    a("s_mov_b64 exec, 1")
    a("s_mov_b32 s65, 0")
    a.label("L_a_rdy")
    a(f"ds_read_b32 v34, v{MA} offset:32")
    a("s_add_u32 s65, s65, 1")
    a("s_waitcnt lgkmcnt(0)")
    a("v_cmp_eq_u32 vcc, 0, v34")
    a(f"s_cmp_ge_u32 s65, {SPIN*4}")
    a("s_cbranch_scc1 L_a_rdy2")
    a("s_nop 1")
    a("s_cbranch_vccnz L_a_rdy")
    a.label("L_a_rdy2")
    a("s_mov_b64 exec, -1")
    a("ds_read_b128 v[64:67], v32")
    a("ds_read_b128 v[68:71], v32 offset:1024")
    a("ds_read_b128 v[72:75], v32 offset:2048")
    a("ds_read_b128 v[76:79], v32 offset:3072")
    a("ds_read_b64 v[80:81], v33 offset:4096")
    a("s_mov_b32 s79, 0")
    a("s_waitcnt lgkmcnt(0)")
    for i in range(0, 8, 2):
        a(f"v_pk_add_f32 v[{OA+i}:{OA+i+1}], v[{OA+i}:{OA+i+1}], v[{64+i}:{65+i}]")
        a(f"v_pk_add_f32 v[{OB+i}:{OB+i+1}], v[{OB+i}:{OB+i+1}], v[{72+i}:{73+i}]")
    a(f"v_add_f32 v{OA+8}, v{OA+8}, v80")
    a(f"v_add_f32 v{OB+8}, v{OB+8}, v81")
    a.label("L_a_finloop")
    a(f"v_add_f32 v35, v{OA}, v{OA+1}")
    a(f"v_add_f32 v36, v{OA+2}, v{OA+3}")
    a(f"v_add_f32 v37, v{OA+4}, v{OA+5}")
    a(f"v_add_f32 v34, v{OA+6}, v{OA+7}")
    a("v_add_f32 v35, v35, v36")
    a("v_add_f32 v34, v34, v37")
    a("v_add_f32 v35, v35, v34")
    a(f"v_fma_f32 v35, v35, 0, v{OA+8}")
    a(f"v_cmp_nle_f32 vcc, {f32hex(2.0**-30)}, v35")
    a("s_mov_b64 s[76:77], vcc")
    a(f"v_cmp_nge_f32 vcc, {f32hex(2.0**30)}, v35")
    a("s_or_b64 s[76:77], s[76:77], vcc")
    a("s_cmp_lg_u64 s[76:77], 0")
    a("s_cbranch_scc1 L_a_fallback")
    a.label("L_a_fin")
    a(f"v_rcp_f32 v32, v{OA+8}")
    a("s_nop 0")
    a(f"v_mul_f32 v32, v32, v{VG}")
    for i in range(8):
        a(f"v_mul_f32 v{OA+i}, v{OA+i}, v32")
    for j in range(4):
        a(f"v_cvt_pk_bf16_f32 v{36+j}, v{OA+2*j}, v{OA+2*j+1}")
    for j in range(4):
        a(f"v_min_u32 v{36+j}, -2, v{36+j}")
    a(f"buffer_store_dwordx4 v[36:39], v2, s[{SRD_WS}:{SRD_WS+3}], s78 offen sc1")
    a("s_cmp_lg_u32 s79, 0")
    a("s_cbranch_scc1 L_a_done")
    a("s_mov_b32 s79, 1")
    a("s_add_u32 s78, s78, 1024")
    for i in range(9):
        a(f"v_mov_b32 v{OA+i}, v{OB+i}")
    for i in range(4):
        a(f"v_mov_b32 v{QA+i}, v{QB+i}")
    a("s_branch L_a_finloop")
    a.label("L_a_done")
    stamp(a, 7)
    a("s_endpgm")
    a.label("L_a_job")
    a("s_mov_b32 s79, 1")
    a("s_waitcnt vmcnt(0)")
    a("s_mov_b64 exec, 1")
    a(f"v_mov_b32 v3, {M_HD}")
    a(f"ds_add_u32 v3, v{ONE}")
    a("s_mov_b32 s65, 0")
    a.label("L_a_kvw")
    a(f"ds_read_b32 v142, v3 offset:4")
    a("s_add_u32 s65, s65, 1")
    a("s_waitcnt lgkmcnt(0)")
    a("v_cmp_gt_u32 vcc, 4, v142")
    a(f"s_cmp_ge_u32 s65, {SPIN*4}")
    a("s_cbranch_scc1 L_a_kvw2")
    a("s_nop 1")
    a("s_cbranch_vccnz L_a_kvw")
    a.label("L_a_kvw2")
    a("s_mov_b64 exec, -1")
    a("s_branch L_a_next")
    a.label("L_a_fallback")
    S = SA[1]; M = 3
    a(f"v_mov_b32 v{M}, 0xff800000")
    a(f"v_mov_b32 v{AK}, v2")
    a("s_mov_b32 s73, 0")
    a.label("L_fb1")
    a(f"ds_read_b128 v[{KF[0]}:{KF[0]+3}], v{AK}")
    a("s_waitcnt lgkmcnt(0)")
    a(f"v_mfma_f32_32x32x16_bf16 v[{S}:{S+15}], v[{KF[0]}:{KF[0]+3}], v[{QA}:{QA+3}], 0")
    a(f"v_add_u32 v{AK}, 1024, v{AK}")
    a("s_nop 15")
    for i in range(0, 16, 2):
        a(f"v_max3_f32 v{M}, v{M}, v{S+i}, v{S+i+1}")
    a("s_add_u32 s73, s73, 1")
    a("s_cmp_lt_u32 s73, 64")
    a("s_cbranch_scc1 L_fb1")
    a(f"v_mov_b32 v32, v{M}")
    a("s_nop 1")
    a(f"v_permlane32_swap_b32 v{M}, v32")
    a("s_nop 1")
    a(f"v_max_f32 v{M}, v{M}, v32")
    for i in range(16):
        a(f"v_mov_b32 v{OA+i}, 0")
    a(f"v_mov_b32 v{AK}, v2")
    a(f"v_mov_b32 v{AV}, v{VB}")
    a("s_mov_b32 s73, 0")
    a.label("L_fb2")
    a(f"ds_read_b128 v[{KF[0]}:{KF[0]+3}], v{AK}")
    a("s_mov_b64 exec, s[74:75]")
    a(f"ds_read_b128 v[{VF[0]}:{VF[0]+3}], v{AV}")
    a(f"ds_read_b128 v[{VF[0]+4}:{VF[0]+7}], v{AV} offset:512")
    a("s_mov_b64 exec, -1")
    a("s_waitcnt lgkmcnt(0)")
    a(f"v_mfma_f32_32x32x16_bf16 v[{S}:{S+15}], v[{KF[0]}:{KF[0]+3}], v[{QA}:{QA+3}], 0")
    a(f"v_add_u32 v{AK}, 1024, v{AK}")
    a(f"v_add_u32 v{AV}, 1024, v{AV}")
    a("s_nop 15")
    for i in range(16):
        a(f"v_sub_f32 v{S+i}, v{S+i}, v{M}")
    for i in range(16):
        a(f"v_exp_f32 v{S+i}, v{S+i}")
    a("s_nop 1")
    smf(OA, VF[0], S)
    smf(OA, VF[0] + 4, S + 8)
    a("s_nop 7")
    a("s_add_u32 s73, s73, 1")
    a("s_cmp_lt_u32 s73, 64")
    a("s_cbranch_scc1 L_fb2")
    a("s_nop 15")
    a("s_branch L_a_fin")

def gen_g1(a):
    ROLE[0] = "g"
    a("s_setprio %d" % (1 if "prio1" in FLAGS else 3))
    GUB = 512 * 1792 * 2
    a(f"s_sub_u32 s44, s{S_W}, 8")
    a("s_lshl_b32 s45, s44, 10")
    a(f"s_mul_i32 s76, s44, {PA_W}")
    a(f"s_add_u32 s76, s76, {PA}")
    a(f"s_lshl_b32 s77, s{S_MT}, 3")
    a(f"s_lshr_b32 s{T0}, s{S_FS}, 1")
    a(f"s_add_u32 s77, s77, s{T0}")
    a("s_mov_b32 s78, 0xffff")
    a("s_mov_b32 s79, 0xffff")
    a("s_cmp_lg_u32 s3, 0")
    a("s_cbranch_scc1 L_g_noA1")
    make_srd(a, 48, S_WK, 16384)
    make_srd(a, 52, S_WV, 16384)
    make_srd(a, 56, S_GW, 1024)
    a(f"s_lshl_b32 s{T0}, s44, 12")
    a("s_mov_b32 m0, s76")
    a("v_and_b32 v7, 31, v1")
    for i in range(4):
        a(f"buffer_load_dwordx4 v2, s[48:51], s{T0} offen offset:{1024*i} lds")
    a("s_add_u32 m0, s76, 4224")
    a("v_lshlrev_b32 v7, 10, v7")
    for i in range(4):
        a(f"buffer_load_dwordx4 v2, s[52:55], s{T0} offen offset:{1024*i} lds")
    a("s_add_u32 m0, s76, 8448")
    a(f"s_lshl_b32 s{T0}, s77, 14")
    a("buffer_load_dwordx4 v2, s[56:59], 0 offen lds")
    a(f"s_lshl_b32 s{T1}, s44, 8")
    a(f"s_add_u32 s{T0}, s{T0}, s{T1}")
    a("v_lshrrev_b32 v6, 5, v1")
    a("v_lshl_add_u32 v7, v6, 4, v7")
    a("s_mov_b64 exec, s[78:79]")
    for s_ in range(8):
        a(f"buffer_load_dwordx4 v[{96+4*s_}:{99+4*s_}], v7, s[{SRD_X}:{SRD_X+3}], s{T0} offen offset:{32*s_}")
    a("s_mov_b64 exec, -1")
    a.label("L_g_noA1")
    make_srd(a, 48, S_WG, GUB)
    make_srd(a, 52, S_WU, GUB)
    a("v_lshrrev_b32 v4, 2, v1")
    a("v_lshrrev_b32 v5, 4, v1")
    a("v_and_b32 v10, 3, v1")
    a("v_xor_b32 v10, v10, v5")
    a("v_lshlrev_b32 v10, 4, v10")
    a("v_lshl_add_u32 v10, v4, 10, v10")
    a(f"s_lshl_b32 s{T0}, s{S_MT}, 7")
    a(f"s_lshl_b32 s{T1}, s44, 4")
    a(f"s_add_u32 s{T0}, s{T0}, s{T1}")
    a(f"s_lshl_b32 s{T0}, s{T0}, 10")
    a(f"v_add_u32 v10, s{T0}, v10")
    a("v_add_u32 v11, 0x10000, v10")
    a("s_lshl_b32 s46, s98, 5")
    make_srd(a, 84, S_WQ, 512 * 512 * 2)
    a("v_lshlrev_b32 v14, 10, v4")
    a("v_and_b32 v15, 3, v1")
    a("v_lshl_add_u32 v14, v15, 4, v14")
    a(f"s_lshl_b32 s{T0}, s{S_FS}, 6")
    a(f"s_lshl_b32 s{T1}, s44, 13")
    a(f"s_add_u32 s{T0}, s{T0}, s{T1}")
    a(f"v_add_u32 v14, s{T0}, v14")
    a("s_lshl_b32 s66, s44, 9")
    a(f"s_add_u32 s66, s66, {O_Q}")
    a("s_mov_b32 s88, -1")
    a("s_mov_b32 s89, 0")
    a("s_cmp_eq_u32 s3, 0")
    a("s_cbranch_scc1 L_g_tB")
    make_srd(a, 56, S_WG, GUB)
    make_srd(a, 60, S_WU, GUB)
    a("v_and_b32 v8, 15, v1")
    a("v_lshlrev_b32 v4, 2, v5")
    a("v_xor_b32 v8, v8, v4")
    a("v_lshlrev_b32 v8, 4, v8")
    a(f"s_lshl_b32 s{T0}, s44, 2")
    a(f"v_add_u32 v4, s{T0}, v5")
    a("v_mul_u32_u24 v4, 3584, v4")
    a("v_add3_u32 v8, v8, v4, s46")
    a("v_xor_b32 v9, 32, v8")
    a(f"v_add_u32 v12, {16*3584}, v8")
    a(f"v_add_u32 v13, {16*3584}, v9")
    a("s_add_u32 s47, s45, 8192")
    a("s_add_u32 s64, s45, 4096")
    a("s_add_u32 s65, s45, 12288")
    a("s_mov_b64 s[74:75], -1")
    a("s_branch L_g_qdone")
    a.label("L_g_tB")
    def b_voff(vd, s_idx):
        a(f"s_lshl_b32 s{T0}, s{s_idx}, 6")
        a(f"v_add_u32 v{vd}, s{T0}, v1")
        a(f"v_mul_u32_u24 v4, 5462, v{vd}")
        a("v_lshrrev_b32 v4, 16, v4")
        a(f"v_lshlrev_b32 v{vd}, 4, v{vd}")
        a(f"v_mul_u32_u24 v4, {3584-192}, v4")
        a(f"v_add3_u32 v{vd}, v{vd}, v4, s46")
    b_voff(8, 44)
    a("v_mov_b32 v9, v8")
    a("s_and_b32 s47, s44, 1")
    a("s_add_u32 s47, s47, 4")
    b_voff(12, 47)
    a("v_mov_b32 v13, v8")
    a("s_lshl_b32 s64, s47, 10")
    a("s_cmp_lt_u32 s44, 2")
    a(f"s_cselect_b32 s56, s{S_WG}, s{S_WU}")
    a(f"s_cselect_b32 s57, s{S_WG+1}, s{S_WU+1}")
    a(f"s_cselect_b32 s{T0}, 0, {B_UP}")
    a(f"s_mov_b32 s58, {GUB}")
    a("s_mov_b32 s59, 0x00020000")
    a(f"s_add_u32 s64, s64, s{T0}")
    make_srd(a, 60, S_WG, GUB)
    a(f"s_add_u32 s47, s45, {B_UP}")
    a("s_mov_b32 s65, s45")
    a("s_mov_b64 s[74:75], 1")
    a.label("L_g_qdone")
    a("s_mov_b32 s67, 0")
    a("s_mov_b32 s68, 0")
    a("s_mov_b32 s69, 0")
    def issue_stage(slot):
        a(f"s_add_u32 s{T0}, s45, s{slot}")
        a(f"s_add_u32 m0, s{T0}, {O_X}")
        a("s_nop 0")
        a(f"buffer_load_dwordx4 v10, s[{SRD_X}:{SRD_X+3}], s69 offen lds")
        a(f"s_add_u32 m0, s{T0}, {O_X+4096}")
        a("s_nop 0")
        a(f"buffer_load_dwordx4 v11, s[{SRD_X}:{SRD_X+3}], s69 offen lds")
        a(f"s_mov_b32 m0, s{T0}")
        a("s_add_u32 s69, s69, 64")
        a("buffer_load_dwordx4 v8, s[48:51], s67 offen lds")
        a(f"s_add_u32 m0, s47, s{slot}")
        a("s_nop 0")
        a("buffer_load_dwordx4 v9, s[52:55], s67 offen lds")
        a(f"s_add_u32 m0, s64, s{slot}")
        a("s_nop 0")
        a("buffer_load_dwordx4 v12, s[56:59], s67 offen lds")
        a(f"s_add_u32 m0, s65, s{slot}")
        a("s_mov_b64 exec, s[74:75]")
        a("buffer_load_dwordx4 v13, s[60:63], s67 offen lds")
        a(f"s_add_u32 m0, s66, s{slot}")
        a("s_mov_b64 exec, s[88:89]")
        a("buffer_load_dwordx4 v14, s[84:87], s68 offen lds")
        a("s_mov_b64 exec, -1")
        a(f"s_add_u32 s67, s67, {32*3584}")
        a(f"s_add_u32 s68, s68, {32*1024}")
        a(f"s_add_u32 s{slot}, s{slot}, {SLOT}")
        a(f"s_cmp_eq_u32 s{slot}, {NS*SLOT}")
        a(f"s_cselect_b32 s{slot}, 0, s{slot}")
    a("s_mov_b32 s70, 0")
    a("s_mov_b32 s71, 0")
    a.label("L_g_loop")
    if "x_nodma" in FLAGS:
        a("s_cmp_ge_u32 s71, 6")
        a("s_cselect_b64 exec, 1, -1")
    issue_stage(70)
    if "x_nodma" in FLAGS: a("s_mov_b64 exec, -1")
    a("s_add_u32 s71, s71, 1")
    a("s_cmp_gt_u32 s71, 4")
    a("s_cbranch_scc1 L_g_plain")
    a("s_cmp_eq_u32 s71, 3")
    a("s_cbranch_scc1 L_g_ev_pa")
    a("s_cmp_eq_u32 s71, 4")
    a("s_cbranch_scc1 L_g_ev_drain")
    a("s_branch L_g_loop")
    a.label("L_g_plain")
    a("s_cmp_eq_u32 s71, 16")
    a("s_cbranch_scc1 L_g_tail")
    a(f"s_waitcnt vmcnt({ND*(NS-2)})")
    a("s_barrier")
    a("s_branch L_g_loop")
    a.label("L_g_ev_start")
    a(f"s_waitcnt vmcnt({2*ND}) lgkmcnt(0)")
    a("s_barrier")
    a("s_branch L_g_loop")
    a.label("L_g_ev_pa")
    a("s_cmp_lg_u32 s3, 0")
    a("s_cbranch_scc1 L_g_ev_start")
    tr_lane(a, 3, 4, 5, 6)
    a("v_mul_u32_u24 v6, 4224, v3")
    a("v_lshl_add_u32 v6, v4, 5, v6")
    a("v_add3_u32 v6, v6, v5, s76")
    a("v_lshrrev_b32 v7, 5, v1")
    a("v_lshlrev_b32 v7, 4, v7")
    a(f"s_lshl_b32 s{T0}, s44, 8")
    a(f"s_add_u32 s{T0}, s{T0}, s76")
    a(f"v_add_u32 v7, s{T0}, v7")
    a(f"s_waitcnt vmcnt({3*ND})")
    stamp(a, 1)
    for s_ in range(8):
        for j in range(2):
            a(f"ds_read_b64_tr_b16 v[{128+4*s_+2*j}:{129+4*s_+2*j}], v6 offset:{(16*s_+4*j)*32}")
        if s_ == 3: a("s_waitcnt lgkmcnt(0)")
    a("s_waitcnt lgkmcnt(0)")
    for s_ in range(8):
        a(f"ds_read_b128 v[{16+4*s_}:{19+4*s_}], v7 offset:{8448+32*s_}")
    for s_ in range(8):
        c = "0" if s_ == 0 else "v[64:79]"
        a(f"v_mfma_f32_32x32x16_bf16 v[64:79], v[{128+4*s_}:{131+4*s_}], v[{96+4*s_}:{99+4*s_}], {c}")
    a("s_waitcnt lgkmcnt(0)")
    for s_ in range(8):
        c = "0" if s_ == 0 else "v[80:95]"
        a(f"v_mfma_f32_32x32x16_bf16 v[80:95], v[{16+4*s_}:{19+4*s_}], v[{96+4*s_}:{99+4*s_}], {c}")
    a("v_and_b32 v6, 31, v1")
    a("v_lshrrev_b32 v60, 5, v1")
    a("v_lshl_add_u32 v61, v6, 1, v60")
    a("v_lshlrev_b32 v61, 5, v61")
    a("v_add_u32 v7, s76, v61")
    a("v_lshlrev_b32 v60, 10, v60")
    a("v_lshl_add_u32 v60, v6, 2, v60")
    a("v_add_u32 v60, s76, v60")
    a("v_lshlrev_b32 v6, 2, v6")
    a("v_add_u32 v5, s76, v6")
    a("ds_write_b128 v7, v[64:67]")
    a("ds_write_b128 v7, v[68:71] offset:16")
    for j in range(8):
        a(f"ds_write_b32 v60, v{72+j} offset:{2048+128*j}")
    a("s_nop 3")
    a("ds_write_b32 v5, v80 offset:4096")
    a(f"v_mov_b32 v3, {MISC+64}")
    a("v_mov_b32 v4, 1")
    a("s_mov_b64 exec, 1")
    a("ds_add_u32 v3, v4")
    a("s_mov_b64 exec, -1")
    a("s_cmp_eq_u32 s44, 3")
    a("s_cbranch_scc1 L_g_ev_start")
    a("s_mov_b32 s72, 0")
    a.label("L_g_paw")
    a("ds_read_b32 v4, v3")
    a("s_add_u32 s72, s72, 1")
    a("s_waitcnt lgkmcnt(0)")
    a("v_cmp_gt_u32 vcc, 4, v4")
    a(f"s_cmp_ge_u32 s72, {SPIN*4}")
    a("s_cbranch_scc1 L_g_paw2")
    a("s_nop 1")
    a("s_cbranch_vccnz L_g_paw")
    a.label("L_g_paw2")
    a("s_cmp_eq_u32 s44, 2")
    a("s_cbranch_scc1 L_g_pa_z")
    a(f"s_lshr_b32 s{T0}, s77, 1")
    a(f"s_lshl_b32 s{T0}, s{T0}, 10")
    a(f"s_and_b32 s{T1}, s77, 1")
    a(f"s_lshl_b32 s{T1}, s{T1}, 8")
    a(f"s_add_u32 s{T0}, s{T0}, s{T1}")
    a("v_and_b32 v6, 31, v1")
    a("v_lshrrev_b32 v60, 5, v1")
    a("v_lshl_add_u32 v61, v6, 1, v60")
    a("v_lshlrev_b32 v61, 5, v61")
    a("s_cmp_eq_u32 s44, 0")
    a("s_cbranch_scc1 L_g_pa_red")
    a(f"s_add_u32 s{T0}, s{T0}, s{T1}")
    a("s_mov_b32 s78, -1")
    a("s_mov_b32 s79, 0")
    a("v_bfe_u32 v60, v1, 2, 1")
    a("v_lshlrev_b32 v60, 3, v60")
    a("v_bfe_u32 v61, v1, 3, 1")
    a("v_lshl_add_u32 v60, v61, 2, v60")
    a("v_and_b32 v61, 3, v1")
    a("v_add_u32 v60, v60, v61")
    a("v_lshlrev_b32 v60, 7, v60")
    a("v_lshrrev_b32 v61, 4, v1")
    a("v_lshl_add_u32 v61, v61, 5, v60")
    a("v_add_u32 v61, 2048, v61")
    a(f"s_add_u32 s{T0}, s{T0}, {WS_VF}")
    a.label("L_g_pa_red")
    a(f"v_add_u32 v61, {PA}, v61")
    for w in range(4):
        a(f"ds_read_b128 v[{64+8*w}:{67+8*w}], v61 offset:{w*PA_W}")
        a(f"ds_read_b128 v[{68+8*w}:{71+8*w}], v61 offset:{w*PA_W+16}")
    a("s_waitcnt lgkmcnt(0)")
    for w in (2, 1):
        for q in range(w):
            for j in range(0, 8, 2):
                d = 64 + 8 * q + j; e = d + 8 * w
                a(f"v_pk_add_f32 v[{d}:{d+1}], v[{d}:{d+1}], v[{e}:{e+1}]")
    for j in range(4):
        a(f"v_cvt_pk_bf16_f32 v{140+j}, v{64+2*j}, v{65+2*j}")
    a("s_mov_b64 exec, s[78:79]")
    a(f"buffer_store_dwordx4 v[140:143], v2, s[{SRD_WS}:{SRD_WS+3}], s{T0} offen sc1")
    a("s_mov_b64 exec, -1")
    a("s_branch L_g_ev_start")
    a.label("L_g_pa_z")
    a("v_and_b32 v6, 15, v1")
    a("v_lshlrev_b32 v6, 2, v6")
    a(f"v_add_u32 v60, {PA}, v6")
    for w in range(4):
        a(f"ds_read_b32 v{64+w}, v60 offset:{w*PA_W+4096}")
    a(f"s_cmp_lg_u32 s{S_FS}, 1")
    a("s_cbranch_scc1 L_g_nofl")
    a("v_mov_b32 v7, 0")
    a(f"s_lshl_b32 s{T0}, s{S_MT}, 7")
    a(f"s_add_u32 s{T0}, s{T0}, {WS_FL}")
    a(f"buffer_store_dword v7, v7, s[{SRD_WS}:{SRD_WS+3}], s{T0} offen sc1")
    a.label("L_g_nofl")
    a("s_waitcnt lgkmcnt(0)")
    for w in range(1, 4):
        a(f"v_add_f32 v64, v64, v{64+w}")
    a(f"v_mul_f32 v64, {f32hex(-LOG2E)}, v64")
    a("v_exp_f32 v64, v64")
    a(f"s_lshl_b32 s{T0}, s77, 6")
    a("v_add_f32 v64, 1.0, v64")
    a("v_rcp_f32 v140, v64")
    a(f"s_add_u32 s{T0}, s{T0}, {WS_G}")
    a(f"buffer_store_dword v140, v6, s[{SRD_WS}:{SRD_WS+3}], s{T0} offen sc1")
    a("s_branch L_g_ev_start")
    a.label("L_g_ev_drain")
    a("s_cmp_lg_u32 s3, 0")
    a("s_cbranch_scc1 L_g_loop")
    a(f"v_mov_b32 v3, {MISC+68}")
    a("v_mov_b32 v7, 1")
    a("s_and_b32 s72, s2, 1")
    a("s_lshl_b32 s72, s72, 7")
    a("v_mov_b32 v6, s72")
    a(f"s_waitcnt vmcnt({ND})")
    a("s_mov_b64 exec, 1")
    a("ds_add_rtn_u32 v4, v3, v7")
    a("s_waitcnt lgkmcnt(0)")
    a("v_cmp_eq_u32 vcc, 3, v4")
    a("s_nop 1")
    a("s_and_b64 exec, exec, vcc")
    a("s_cbranch_execz L_g_nsig")
    a(f"global_atomic_add v6, v7, s[{S_DBG}:{S_DBG+1}] sc1")
    a.label("L_g_nsig")
    a("s_mov_b64 exec, -1")
    stamp(a, 2)
    a("s_branch L_g_loop")
    a.label("L_g_tail")
    groups = kv_pieces()
    def issue_kv(pieces):
        n = (len(pieces) + 3) // 4
        for q in range(n):
            idx = [pieces[min(4 * q + j, len(pieces) - 1)] for j in range(4)]
            if idx == [idx[0] + k for k in range(4)]:
                a(f"s_add_u32 s{T0}, s45, {idx[0]*1024}")
            else:
                a(f"s_mov_b32 s{T0}, {idx[0]*1024}")
                for j in range(1, 4):
                    a(f"s_cmp_eq_u32 s44, {j}")
                    a(f"s_cselect_b32 s{T0}, {idx[j]*1024}, s{T0}")
            a(f"s_mov_b32 m0, s{T0}")
            a("s_nop 0")
            a(f"buffer_load_dwordx4 v2, s[{SRD_WS}:{SRD_WS+3}], s{T0} offen sc1 lds")
        return n
    kv_out = 0
    for s in range(11, 16):
        ring_after = max(0, 15 - (s + 1)) * ND
        if s < 15:
            a(f"s_waitcnt vmcnt({min(63, ring_after + kv_out)})")
        a("s_barrier")
        last_n = issue_kv(groups[s])
        kv_out += last_n
    a("v_cmp_gt_u32 vcc, 4, v1")
    a("v_lshlrev_b32 v3, 2, v1")
    a(f"v_add_u32 v3, {MISC}, v3")
    a("v_cndmask_b32 v4, 0, 2, vcc".replace("v_cndmask_b32 ", "v_cndmask_b32_e64 "))
    a("s_mov_b64 exec, 0xffff")
    a("ds_write_b32 v3, v4")
    a("s_mov_b64 exec, -1")
    a(f"s_waitcnt vmcnt({last_n}) lgkmcnt(0)")
    a("s_barrier")
    a(f"v_mov_b32 v3, {M_KV}")
    a("v_mov_b32 v4, 1")
    a("s_waitcnt vmcnt(0)")
    a("s_mov_b64 exec, 1")
    a("ds_add_u32 v3, v4")
    a("s_mov_b64 exec, -1")
    a("s_branch L_g2")

def gen_g2(a):
    ROLE[0] = "g"
    a.label("L_g2")
    stamp(a, 4)
    ACC = 64; AFR = 16; WF = 40
    WO = 128
    make_srd(a, 48, S_WD, 1792 * 512 * 2)
    make_srd(a, 52, S_WO, 512 * 512 * 2)
    make_srd(a, 56, S_OUT, 2048 * 512 * 2)
    a("v_lshlrev_b32 v3, 7, v1")
    a("s_lshr_b32 s64, s2, 3")
    a(f"s_mul_i32 s65, s64, 57344")
    a(f"s_lshl_b32 s{T0}, s44, 14")
    a(f"s_add_u32 s65, s65, s{T0}")
    a("buffer_load_dword v14, v3, s[48:51], s65 offen")
    a("s_add_u32 s65, s65, 8192")
    a("s_cmp_eq_u32 s44, 3")
    a("s_cbranch_scc1 L_g_pfo")
    a("buffer_load_dword v15, v3, s[48:51], s65 offen")
    a("s_branch L_g_pfd")
    a.label("L_g_pfo")
    a("s_lshl_b32 s65, s64, 14")
    a("buffer_load_dword v15, v3, s[52:55], s65 offen")
    a("s_add_u32 s65, s65, 8192")
    a("buffer_load_dword v14, v3, s[52:55], s65 offen")
    a.label("L_g_pfd")
    a("v_lshrrev_b32 v3, 3, v1")
    a("v_bfe_u32 v4, v1, 4, 1")
    a("v_lshlrev_b32 v4, 2, v4")
    a("v_and_b32 v5, 7, v1")
    a("v_xor_b32 v5, v5, v4")
    a("v_lshlrev_b32 v5, 4, v5")
    a("v_lshl_add_u32 v5, v3, 10, v5")
    a(f"s_lshl_b32 s{T0}, s{S_CT}, 7")
    a(f"v_add_u32 v5, s{T0}, v5")
    a("v_add_u32 v8, 0x2000, v5")
    a("v_lshrrev_b32 v3, 4, v1")
    a("v_bfe_u32 v4, v1, 2, 2")
    a("v_lshrrev_b32 v6, 1, v3")
    a("v_lshl_add_u32 v6, v6, 3, v4")
    a("v_lshlrev_b32 v6, 7, v6")
    a("v_lshrrev_b32 v4, 1, v4")
    a("v_lshl_add_u32 v6, v4, 6, v6")
    a("v_and_b32 v3, 1, v3")
    a("v_lshl_add_u32 v6, v3, 5, v6")
    a("v_and_b32 v3, 1, v1")
    a("v_lshl_add_u32 v6, v3, 4, v6")
    a("v_bfe_u32 v3, v1, 1, 1")
    a("v_lshl_add_u32 v6, v3, 3, v6")
    a(f"s_mul_i32 s46, s44, {GS_W}")
    a(f"s_add_u32 s46, s46, {GS}")
    a("v_add_u32 v6, s46, v6")
    a("v_xor_b32 v7, 64, v6")
    a(f"v_add_u32 v9, {144*1024}, v2")
    for i in range(64):
        a(f"v_mov_b32 v{ACC+i}, 0")
    a(f"s_lshl_b32 s{T0}, s{S_TP}, 8")
    a(f"s_add_u32 s{T0}, s{T0}, {WS_G}")
    a("v_and_b32 v3, 31, v1")
    a("v_lshlrev_b32 v3, 2, v3")
    a(f"buffer_load_dword v12, v3, s[{SRD_WS}:{SRD_WS+3}], s{T0} offen sc1")
    a(f"buffer_load_dword v13, v3, s[{SRD_WS}:{SRD_WS+3}], s{T0} offen offset:128 sc1")
    a(f"s_mul_i32 s64, s44, {28*16384}")
    a(f"s_lshl_b32 s{T0}, s{S_TP}, 1")
    a(f"s_mul_i32 s65, s{T0}, 144")
    a("s_mov_b32 s72, s65")
    a(f"s_mul_i32 s{T1}, s44, 28")
    a(f"s_add_u32 s65, s65, s{T1}")
    a("s_lshl_b32 s65, s65, 10")
    a(f"s_add_u32 s65, s65, {WS_AF}")
    a("s_cmp_lg_u32 s44, 0")
    a("s_cbranch_scc1 L_g_nosig")
    a(f"v_mov_b32 v3, {M_HD}")
    a("s_mov_b64 exec, 1")
    a("s_mov_b32 s71, 0")
    a.label("L_g_hd")
    a("ds_read_b32 v4, v3")
    a("s_add_u32 s71, s71, 1")
    a("s_waitcnt lgkmcnt(0)")
    a("v_cmp_gt_u32 vcc, 8, v4")
    a(f"s_cmp_ge_u32 s71, {SPIN*4}")
    a("s_cbranch_scc1 L_g_hd2")
    a("s_sleep 2")
    a("s_cbranch_vccnz L_g_hd")
    a.label("L_g_hd2")
    a(f"s_lshl_b32 s{T0}, s{S_MT}, 7")
    a(f"s_add_u32 s{T0}, s{T0}, {WS_FL}")
    a(f"v_mov_b32 v3, s{T0}")
    a("v_mov_b32 v4, 1")
    a(f"global_atomic_add v3, v4, s[{S_WS}:{S_WS+1}] sc1")
    a("s_mov_b64 exec, -1")
    a.label("L_g_nosig")
    a(f"s_lshr_b32 s{T0}, s{S_TP}, 1")
    a(f"s_lshl_b32 s{T0}, s{T0}, 7")
    a(f"s_add_u32 s73, s{T0}, {WS_FL}")
    a("v_mov_b32 v3, s73")
    poll(a, "L_h", S_WS, 3, 4, 16, sleep=16)
    a(f"v_mov_b32 v3, {M_CD}")
    a("s_mov_b32 s71, 0")
    a.label("L_g_qr")
    a("ds_read_b32 v4, v3")
    a("s_add_u32 s71, s71, 1")
    a("s_waitcnt lgkmcnt(0)")
    a("v_cmp_gt_u32 vcc, 8, v4")
    a(f"s_cmp_ge_u32 s71, {SPIN*4}")
    a("s_cbranch_scc1 L_g_qr2")
    a("s_nop 1")
    a("s_cbranch_vccnz L_g_qr")
    a.label("L_g_qr2")
    stamp(a, 5)
    def issue(sl, srd):
        a(f"s_add_u32 m0, s46, {sl*2048}")
        a("s_nop 0")
        a(f"buffer_load_dwordx4 v5, s[{srd}:{srd+3}], s64 offen lds")
        a(f"s_add_u32 m0, s46, {sl*2048+1024}")
        a("s_nop 0")
        a(f"buffer_load_dwordx4 v8, s[{srd}:{srd+3}], s64 offen lds")
        a("s_add_u32 s64, s64, 16384")
    def issue_act(sl):
        r = AFR + sl * 8
        a(f"buffer_load_dwordx4 v[{r}:{r+3}], v2, s[{SRD_WS}:{SRD_WS+3}], s65 offen sc1")
        a(f"buffer_load_dwordx4 v[{r+4}:{r+7}], v9, s[{SRD_WS}:{SRD_WS+3}], s65 offen sc1")
        a("s_add_u32 s65, s65, 1024")
    def trreads(sl, dst):
        a(f"ds_read_b64_tr_b16 v[{dst}:{dst+1}], v6 offset:{sl*2048}")
        a(f"ds_read_b64_tr_b16 v[{dst+2}:{dst+3}], v6 offset:{sl*2048+512}")
        a(f"ds_read_b64_tr_b16 v[{dst+4}:{dst+5}], v7 offset:{sl*2048}")
        a(f"ds_read_b64_tr_b16 v[{dst+6}:{dst+7}], v7 offset:{sl*2048+512}")
    def mf4(w, r):
        for t in range(2):
            for c in range(2):
                d = ACC + (t * 2 + c) * 16
                a(f"v_mfma_f32_32x32x16_bf16 v[{d}:{d+15}], v[{w+4*c}:{w+4*c+3}], v[{r+4*t}:{r+4*t+3}], v[{d}:{d+15}]")
    for sl in range(3):
        issue(sl, 48); issue_act(sl)
    WF2 = (WF, 48)
    def dstep(sl, wcur, wnext, issue_next, rd_next, vm):
        r = AFR + sl * 8
        def mf(t, c):
            if "nog" in FLAGS: return
            d = ACC + (t * 2 + c) * 16
            a(f"v_mfma_f32_32x32x16_bf16 v[{d}:{d+15}], v[{wcur+4*c}:{wcur+4*c+3}], v[{r+4*t}:{r+4*t+3}], v[{d}:{d+15}]")
        a("s_waitcnt lgkmcnt(0)")
        mf(0, 0)
        if issue_next:
            a(f"s_add_u32 m0, s46, {sl*2048}")
            a("s_nop 0")
            a(f"buffer_load_dwordx4 v5, s[48:51], s64 offen lds")
            a(f"s_add_u32 m0, s46, {sl*2048+1024}")
            a("s_nop 0")
            a(f"buffer_load_dwordx4 v8, s[48:51], s64 offen lds")
            a("s_add_u32 s64, s64, 16384")
        mf(0, 1)
        if issue_next:
            a(f"buffer_load_dwordx4 v[{r}:{r+3}], v2, s[{SRD_WS}:{SRD_WS+3}], s65 offen sc1")
        if rd_next:
            a(f"s_waitcnt vmcnt({vm})")
        mf(1, 0)
        if rd_next:
            trreads((sl + 1) % 3, wnext)
        mf(1, 1)
        if issue_next:
            a(f"buffer_load_dwordx4 v[{r+4}:{r+7}], v9, s[{SRD_WS}:{SRD_WS+3}], s65 offen sc1")
            a("s_add_u32 s65, s65, 1024")
    a("s_waitcnt vmcnt(8)")
    trreads(0, WF2[0])
    a("s_mov_b32 s71, 0")
    a.label("L_d_loop")
    for st in range(6):
        dstep(st % 3, WF2[st % 2], WF2[(st + 1) % 2], True, True, 7)
    a("s_add_u32 s71, s71, 1")
    a("s_cmp_lt_u32 s71, %d" % (1 if "nog2" in FLAGS else 4))
    a("s_cbranch_scc1 L_d_loop")
    dstep(0, WF2[0], WF2[1], True, True, 7)
    dstep(1, WF2[1], WF2[0], False, True, 4)
    dstep(2, WF2[0], WF2[1], False, True, 0)
    dstep(0, WF2[1], WF2[0], False, False, 0)
    stamp(a, 6)
    a(f"s_mul_i32 s64, s44, {8*16384}")
    WOR = [128, 136, 144, 152, 16, 24, 32, 40]
    for sl in range(3):
        issue(sl, 52)
    a("v_sub_f32 v12, 1.0, v12")
    a("v_sub_f32 v13, 1.0, v13")
    a("s_nop 7")
    for t in range(2):
        for i in range(32):
            a(f"v_mul_f32 v{ACC+t*32+i}, v{ACC+t*32+i}, v{12+t}")
    for k in range(8):
        sl = k % 3
        left = min(8, k + 3) - k - 1
        a(f"s_waitcnt vmcnt({2*left})")
        trreads(sl, WOR[k])
        a("s_waitcnt lgkmcnt(0)")
        if k + 3 < 8:
            issue(sl, 52)
    a(f"v_mov_b32 v3, {M_GD}")
    a("v_mov_b32 v4, 1")
    a("s_mov_b64 exec, 1")
    a("ds_add_u32 v3, v4")
    a(f"s_lshl_b32 s{T1}, s44, 3")
    a(f"s_add_u32 s65, s72, s{T1}")
    a("s_add_u32 s65, s65, 112")
    a("s_lshl_b32 s65, s65, 10")
    a(f"s_add_u32 s65, s65, {WS_AF}")
    a("s_add_u32 s66, s65, 4096")
    a(f"s_lshl_b32 s{T0}, s44, 2")
    a(f"s_add_u32 s{T0}, s{T0}, {M_FIN}")
    a(f"v_mov_b32 v3, s{T0}")
    a("s_mov_b32 s71, 0")
    a.label("L_g_cd")
    a("ds_read_b32 v4, v3")
    a("s_add_u32 s71, s71, 1")
    a("s_waitcnt lgkmcnt(0)")
    a(f"v_cmp_gt_u32 vcc, 2, v4")
    a(f"s_cmp_ge_u32 s71, {SPIN}")
    a("s_cbranch_scc1 L_g_cd2")
    a("s_sleep 4")
    a("s_cbranch_vccnz L_g_cd")
    a.label("L_g_cd2")
    a("s_mov_b64 exec, -1")
    if "tailprio0" in FLAGS: a("s_setprio 0")
    stamp(a, 7)
    AR = [48, 56, 8, 48, WOR[0], 56, WOR[1], 8]
    a("v_mov_b32 v160, v9")
    a("s_mov_b32 s71, 0")
    def issue_o(k):
        r = AR[k]
        so = 65 if k < 4 else 66
        a(f"buffer_load_dwordx4 v[{r}:{r+3}], v2, s[{SRD_WS}:{SRD_WS+3}], s{so} offen offset:{(k%4)*1024} sc1")
        a(f"buffer_load_dwordx4 v[{r+4}:{r+7}], v160, s[{SRD_WS}:{SRD_WS+3}], s{so} offen offset:{(k%4)*1024} sc1")
    after = {0: [3, 4], 1: [5, 6], 2: [7]}
    issued = 3
    for k in range(3): issue_o(k)
    for k in range(8):
        r = AR[k]
        a.label(f"L_o_chk{k}")
        a(f"s_waitcnt vmcnt({2*(issued-k-1)})")
        a(f"v_max3_u32 v3, v{r}, v{r+1}, v{r+2}")
        a(f"v_max3_u32 v4, v{r+3}, v{r+4}, v{r+5}")
        a(f"v_max3_u32 v3, v3, v{r+6}, v{r+7}")
        a("v_max_u32 v3, v3, v4")
        a("v_cmp_eq_u32 vcc, -1, v3")
        a(f"s_cmp_ge_u32 s71, {SPIN}")
        a(f"s_cbranch_scc1 L_o_ok{k}")
        a("s_add_u32 s71, s71, 1")
        a(f"s_cbranch_vccz L_o_ok{k}")
        a("s_waitcnt vmcnt(0)")
        for kk in range(k, issued): issue_o(kk)
        a(f"s_branch L_o_chk{k}")
        a.label(f"L_o_ok{k}")
        mf4(WOR[k], r)
        for kk in after.get(k, []):
            issue_o(kk); issued += 1
    a("s_barrier")
    stamp(a, 8)
    a("s_lshl_b32 s65, s44, 14")
    a("v_add_u32 v3, s65, v2")
    a("s_nop 15")
    for i in range(16):
        a(f"ds_write_b128 v3, v[{ACC+4*i}:{ACC+4*i+3}] offset:{i*1024}")
    a("s_lshl_b32 s65, s44, 12")
    a("v_add_u32 v3, s65, v2")
    a("s_waitcnt lgkmcnt(0)")
    a("s_barrier")
    for w in range(4):
        for q in range(4):
            a(f"ds_read_b128 v[{ACC+16*w+4*q}:{ACC+16*w+4*q+3}], v3 offset:{w*16384+q*1024}")
    a("s_lshr_b32 s65, s44, 1")
    a("s_lshl_b32 s65, s65, 5")
    a(f"s_lshl_b32 s{T0}, s{S_TP}, 6")
    a(f"s_add_u32 s65, s65, s{T0}")
    a("s_lshl_b32 s65, s65, 10")
    a(f"s_lshl_b32 s{T0}, s{S_CT}, 7")
    a(f"s_add_u32 s65, s65, s{T0}")
    a(f"s_and_b32 s{T0}, s44, 1")
    a(f"s_lshl_b32 s{T0}, s{T0}, 6")
    a(f"s_add_u32 s65, s65, s{T0}")
    a("v_and_b32 v3, 31, v1")
    a("v_lshlrev_b32 v3, 10, v3")
    a("v_lshrrev_b32 v4, 5, v1")
    a("v_lshl_add_u32 v3, v4, 4, v3")
    a("s_waitcnt lgkmcnt(0)")
    for w in range(1, 4):
        for i in range(16):
            a(f"v_add_f32 v{ACC+i}, v{ACC+i}, v{ACC+16*w+i}")
    for j in range(8):
        a(f"v_cvt_pk_bf16_f32 v{ACC+j}, v{ACC+2*j}, v{ACC+2*j+1}")
    om = " sc1" if "outsc1" in FLAGS else (" nt" if "outnt" in FLAGS else "")
    a(f"buffer_store_dwordx4 v[{ACC}:{ACC+3}], v3, s[56:59], s65 offen{om}")
    a(f"buffer_store_dwordx4 v[{ACC+4}:{ACC+7}], v3, s[56:59], s65 offen offset:32{om}")
    stamp(a, 9)

def main(out):
    a = Asm()
    gen(a)
    txt = HEADER
    txt += f"; @launch grid=(256,1,1) block=(768,1,1) lds={LDS}\n"
    txt += '.amdgcn_target "amdgcn-amd-amdhsa--gfx950"\n.text\n' + a.text()
    txt += '.section .rodata,"a"\n'
    txt += kernel_desc(KN, 168)
    open(out, "w").write(txt)

if __name__ == "__main__":
    if "stamps" in sys.argv: STAMPS = True
    FLAGS.update(sys.argv[2:])
    if "pre3" in FLAGS: NPRE = 3
    for f in list(FLAGS):
        if f.startswith("ninit="): NINIT = int(f[6:])
        if f.startswith("pstep="): PSTEP = int(f[6:])
        if f.startswith("na="): NA = int(f[3:])
        if f.startswith("pst0="): PST0 = int(f[5:])
    main(sys.argv[1] if len(sys.argv) > 1 else f"cdna_kernels/{NAME}.s")
```

```python
import sys, math
from common import *

WS_KF = 0
WS_VF = 65536
WS_G = 131072
WS_FL = 0x30000
WS_QF = 0x40000
WS_AF = 0x400000
WS_ST = 0x2000000
WS_BYTES = 0x10000000
LOG2E = 1.4426950408889634
QSCALE = 0.25 * LOG2E
STAMPS = False
FLAGS = set()
KN = NAME + "_kernel"

SLOT = 26624; NS = 5; NPRE = 4; ND = 7
O_X = 18432; O_Q = 16384
B_UP = 6176
WS_QH = 0x1000000
PA = 4 * SLOT; PA_W = 9472
L_K = 0; L_V = 65536
GS = 131072; GS_W = 6144
QX = 131072
MISC = 162304
OX = 131072; OXS = 4608
M_CNT, M_FIN, M_RDY, M_GD, M_CD, M_HD, M_KV = MISC, MISC + 16, MISC + 32, MISC + 48, MISC + 52, MISC + 56, MISC + 60
M_KF = MISC + 72
CROT = 7
LDS = 163840
SPIN = 200000
GATE = 18
NINIT = 4
PSTEP = 2
NA = 7
FGATE = 1
PST0 = 1

S_X, S_WQ, S_WK, S_WV, S_WO = 4, 6, 8, 10, 12
S_WG, S_WU, S_WD, S_GW = 16, 18, 20, 22
S_OUT, S_DBG, S_WS = 24, 26, 28
S_W, S_MT, S_FS, S_TP, S_CT = 30, 31, 32, 33, 34
T0, T1, T2 = 14, 15, 35
SRD_X, SRD_WS = 36, 40

DBGMAP_C = {2: 3, 3: 4, 6: 5, 5: 6}
DBGMAP_G = {1: 8, 2: 9, 5: 10, 6: 11, 7: 12, 8: 13}
ROLE = ["c"]
def dstamp(a, idx):
    u = a.new_label("ds")
    if idx == 0 or idx == 9:
        a("s_memrealtime s[92:93]")
        a("s_waitcnt lgkmcnt(0)")
        if idx == 0: a("s_not_b32 s92, s92")
        a(f"s_cmp_lg_u32 s{S_W}, 8")
        a(f"s_cbranch_scc1 {u}")
        a("v_mov_b32 v164, s92")
        a(f"v_mov_b32 v165, {4 if idx == 0 else 8}")
        a("s_mov_b64 exec, 1")
        a(f"global_atomic_umax v165, v164, s[{S_DBG}:{S_DBG+1}] sc1")
        a("s_mov_b64 exec, -1")
        a.label(u)
        return
    m = DBGMAP_C if ROLE[0] == "c" else DBGMAP_G
    if idx not in m: return
    a(f"s_lshl_b32 s94, s2, 4")
    a(f"s_add_u32 s94, s94, s{S_W}")
    a(f"s_cmp_lg_u32 s94, {0 if ROLE[0] == 'c' else 8}")
    a(f"s_cbranch_scc1 {u}")
    a("s_memrealtime s[92:93]")
    a("s_waitcnt lgkmcnt(0)")
    a("v_mov_b32 v164, s92")
    a(f"v_mov_b32 v165, {4*m[idx]}")
    a(f"global_store_dword v165, v164, s[{S_DBG}:{S_DBG+1}]")
    a.label(u)

def stamp(a, idx, sreg=None):
    if "dstamp" in FLAGS: return dstamp(a, idx)
    if not STAMPS: return
    a("s_memtime s[90:91]")
    a("s_memrealtime s[92:93]")
    a(f"s_lshl_b32 s94, s2, 4")
    a(f"s_add_u32 s94, s94, s{S_W}")
    a(f"s_lshl_b32 s94, s94, 8")
    a(f"s_add_u32 s94, s94, {WS_ST + idx*8}")
    if sreg is not None:
        a(f"s_lshl_b32 s95, s{sreg}, 3")
        a("s_add_u32 s94, s94, s95")
    a("s_waitcnt lgkmcnt(0)")
    a("v_mov_b32 v164, s90")
    a("v_mov_b32 v165, s92")
    a("v_mov_b32 v166, 0")
    a(f"buffer_store_dwordx2 v[164:165], v166, s[{SRD_WS}:{SRD_WS+3}], s94 offen")

def srd_hi(a, d, nbytes):
    a(f"s_mov_b32 s{d+2}, {nbytes}")
    a(f"s_mov_b32 s{d+3}, 0x00020000")
def srd_lo(a, d, p):
    a(f"s_mov_b64 s[{d}:{d+1}], s[{p}:{p+1}]")

def tr_lane(a, v_mat, v_row, v_colb, t):
    a(f"v_lshrrev_b32 v{v_mat}, 4, v1")
    a(f"v_bfe_u32 v{v_row}, v1, 2, 2")
    a(f"v_and_b32 v{t}, 1, v1")
    a(f"v_lshlrev_b32 v{v_colb}, 4, v{t}")
    a(f"v_bfe_u32 v{t}, v1, 1, 1")
    a(f"v_lshl_or_b32 v{v_colb}, v{t}, 3, v{v_colb}")
    a(f"v_lshrrev_b32 v{t}, 1, v{v_mat}")
    a(f"v_lshl_add_u32 v{v_row}, v{t}, 3, v{v_row}")
    a(f"v_and_b32 v{v_mat}, 1, v{v_mat}")

def poll(a, nm, base_pair, voff_reg, vtmp, target, nwords=1, sleep=4):
    a(f"s_mov_b64 exec, {(1 << nwords) - 1}")
    a(f"s_mov_b32 s{T2}, 0")
    a.label(f"{nm}_poll")
    a(f"global_load_dword v{vtmp}, v{voff_reg}, s[{base_pair}:{base_pair+1}] sc1")
    a(f"s_add_u32 s{T2}, s{T2}, 1")
    a("s_waitcnt vmcnt(0)")
    a(f"v_cmp_gt_u32 vcc, {target}, v{vtmp}")
    a(f"s_cmp_ge_u32 s{T2}, {SPIN}")
    a(f"s_cbranch_scc1 {nm}_pdone")
    a("s_nop 1")
    a(f"s_cbranch_vccz {nm}_pdone")
    a(f"s_sleep {sleep}")
    a(f"s_branch {nm}_poll")
    a.label(f"{nm}_pdone")
    a("s_mov_b64 exec, -1")

def kv_pieces():
    last = {s % NS: s for s in range(16)}
    groups = {}
    for i in range(128):
        lo, hi = i * 1024, i * 1024 + 1023
        need = 11
        for sl in range(NS):
            if lo < (sl + 1) * SLOT and hi >= sl * SLOT:
                need = max(need, last[sl])
        groups.setdefault(need, []).append(i)
    return groups

def gen(a):
    name = KN
    kernel_begin(a, name)
    a("s_cmp_ge_u32 s2, 256")
    a(f"s_cbranch_scc1 L_exit")
    a("s_load_dwordx8 s[4:11], s[0:1], 0")
    a("s_load_dwordx2 s[12:13], s[0:1], 32")
    a("s_load_dwordx8 s[16:23], s[0:1], 48")
    a("s_load_dwordx4 s[24:27], s[0:1], 80")
    a("s_load_dwordx2 s[28:29], s[0:1], 96")
    a("s_getpc_b64 s[80:81]")
    a.label("L_pc_ref")
    a("s_mov_b32 s82, L_code_end-L_pc_ref")
    a("s_mov_b32 s83, 0x00020000")
    a("v_lshlrev_b32 v3, 7, v0")
    if "nocpf" not in FLAGS:
        a("buffer_load_dword v163, v3, s[80:83], 0 offen")
    a("v_lshrrev_b32 v2, 6, v0")
    a("v_and_b32 v1, 63, v0")
    a(f"v_readfirstlane_b32 s{S_W}, v2")
    a(f"s_and_b32 s{T0}, s2, 7")
    a(f"s_lshr_b32 s{T1}, s2, 3")
    a(f"s_and_b32 s{S_MT}, s{T0}, 1")
    a(f"s_lshl_b32 s{S_MT}, s{S_MT}, 3")
    a(f"s_and_b32 s{S_FS}, s{T1}, 7")
    a(f"s_add_u32 s{S_MT}, s{S_MT}, s{S_FS}")
    a(f"s_lshr_b32 s{S_FS}, s{T0}, 1")
    a(f"s_lshl_b32 s{S_FS}, s{S_FS}, 2")
    a(f"s_lshr_b32 s{T2}, s{T1}, 3")
    a(f"s_add_u32 s{S_FS}, s{S_FS}, s{T2}")
    a(f"s_lshl_b32 s{S_TP}, s{T0}, 2")
    a(f"s_and_b32 s{T2}, s{T1}, 3")
    a(f"s_add_u32 s{S_TP}, s{S_TP}, s{T2}")
    a(f"s_lshr_b32 s{S_CT}, s{T1}, 2")
    a(f"s_andn2_b32 s3, 1, s{S_FS}")
    a(f"s_and_b32 s{T2}, s{S_FS}, 3")
    a(f"s_lshl_b32 s{T2}, s{T2}, 3")
    a(f"s_lshr_b32 s98, 0x16081000, s{T2}")
    a("s_and_b32 s98, s98, 0xff")
    a(f"s_lshr_b32 s{T2}, s{S_FS}, 2")
    a(f"s_mul_i32 s{T2}, s{T2}, 28")
    a(f"s_add_u32 s98, s98, s{T2}")
    a("v_lshlrev_b32 v2, 4, v1")
    a(f"v_mov_b32 v4, {MISC+64}")
    a("v_mov_b32 v6, 0")
    a("v_mov_b32 v7, 0")
    a("ds_write_b64 v4, v[6:7]")
    a("ds_write_b32 v4, v6 offset:8")
    srd_hi(a, SRD_X, 2048 * 512 * 2)
    srd_hi(a, SRD_WS, WS_BYTES)
    a(f"s_cmp_lt_u32 s{S_W}, 8")
    a("s_cbranch_scc1 L_role_c")
    gen_g1(a)
    gen_c(a)
    gen_g2(a)
    a.label("L_exit")
    a("s_endpgm")
    a.label("L_code_end")

def gen_c(a):
    ROLE[0] = "c"
    a.label("L_role_c")
    a("s_waitcnt lgkmcnt(0)")
    srd_lo(a, SRD_X, S_X)
    srd_lo(a, SRD_WS, S_WS)
    stamp(a, 0)
    a(f"v_mov_b32 v158, s{S_X}")
    a(f"v_mov_b32 v159, s{S_X+1}")
    a("v_mov_b32 v157, 0")
    a(f"s_add_u32 s47, s{S_W}, 1")
    a("s_cmp_eq_u32 s3, 0")
    a("s_cbranch_scc1 L_c_pfB")
    a(f"s_cmp_ge_u32 s{S_W}, {NA}")
    a("s_cbranch_scc1 L_c_latepf")
    a("s_branch L_c_pfgo")
    a.label("L_c_pfB")
    a(f"s_mov_b32 s47, {min(NA+1, 7)}")
    a(f"s_cmp_lg_u32 s{S_W}, 7")
    a("s_cbranch_scc1 L_c_latepf")
    a.label("L_c_pfgo")
    a("s_lshr_b32 s44, s2, 3")
    a("s_lshr_b32 s45, s2, 7")
    a("s_and_b32 s44, s44, 7")
    a("s_lshl_b32 s45, s45, 3")
    a("s_add_u32 s44, s44, s45")
    a("s_and_b32 s45, s2, 7")
    a("s_lshr_b32 s46, s45, 1")
    a("s_lshl_b32 s47, s47, 6")
    a("s_add_u32 s47, s47, s44")
    a("v_lshrrev_b32 v3, 4, v1")
    a("v_lshl_add_u32 v3, v3, 4, s47")
    a("v_and_b32 v4, 15, v1")
    a("s_mul_i32 s48, s46, 896")
    a("v_mul_u32_u24 v5, 3584, v3")
    a("v_lshl_add_u32 v5, v4, 7, v5")
    a("v_add_u32 v5, s48, v5")
    a(f"v_mov_b32 v6, s{S_WG}")
    a(f"v_mov_b32 v7, s{S_WG+1}")
    a("v_cmp_lt_u32 vcc, 6, v4")
    a(f"v_mov_b32 v8, s{S_WU}")
    a(f"v_mov_b32 v9, s{S_WU+1}")
    a("v_subrev_u32 v10, 896, v5")
    a("v_cndmask_b32 v6, v6, v8, vcc")
    a("v_cndmask_b32 v7, v7, v9, vcc")
    a("v_cndmask_b32 v5, v5, v10, vcc")
    a("v_cmp_lt_u32 vcc, 13, v4")
    a(f"v_mov_b32 v8, s{S_WQ}")
    a(f"v_mov_b32 v9, s{S_WQ+1}")
    a("v_lshlrev_b32 v10, 10, v3")
    a("v_and_b32 v11, 1, v1")
    a("v_lshl_add_u32 v10, v11, 7, v10")
    a("s_lshl_b32 s48, s46, 8")
    a("v_add_u32 v10, s48, v10")
    a("v_cndmask_b32 v6, v6, v8, vcc")
    a("v_cndmask_b32 v7, v7, v9, vcc")
    a("v_cndmask_b32 v5, v5, v10, vcc")
    a(f"v_mov_b32 v157, {64*3584}")
    a(f"v_mov_b32 v10, {64*1024}")
    a("v_cndmask_b32 v157, v157, v10, vcc")
    a("v_add_co_u32 v158, vcc, v6, v5")
    a("s_nop 1")
    a("v_addc_co_u32 v159, vcc, 0, v7, vcc")
    a("s_cmp_eq_u32 s3, 0")
    a("s_cbranch_scc1 L_c_latepf")
    a("s_barrier")
    a("global_load_dword v160, v[158:159], off")
    a("s_branch L_c_pfend")
    if "pfx" in FLAGS:
        a("s_and_b32 s48, s45, 1")
        a("s_lshl_b32 s48, s48, 4")
        a("s_add_u32 s48, s48, s44")
        a("s_lshl_b32 s48, s48, 16")
        a(f"s_lshl_b32 s49, s{S_W}, 7")
        a("s_add_u32 s48, s48, s49")
        a("v_lshlrev_b32 v10, 10, v1")
        a(f"buffer_load_dword v162, v10, s[{SRD_X}:{SRD_X+3}], s48 offen")
    a.label("L_c_latepf")
    a("s_barrier")
    a.label("L_c_pfend")
    a(f"s_and_b32 s70, s{S_W}, 3")
    a(f"s_lshr_b32 s71, s{S_W}, 2")
    a(f"s_lshl_b32 s72, s{S_MT}, 2")
    a("s_add_u32 s72, s72, s70")
    a("s_mul_i32 s78, s72, 144")
    a(f"s_lshl_b32 s73, s{S_FS}, 1")
    a("s_add_u32 s78, s78, s73")
    a("s_add_u32 s78, s78, 112")
    a("s_lshl_b32 s78, s78, 10")
    a(f"s_add_u32 s78, s78, {WS_AF}")
    a("s_lshl_b32 s73, s71, 10")
    a("s_add_u32 s73, s73, s78")
    for i in range(4):
        a(f"v_mov_b32 v{8+i}, -1")
    a(f"buffer_store_dwordx4 v[8:11], v2, s[{SRD_WS}:{SRD_WS+3}], s73 offen sc1")
    tr_lane(a, 3, 4, 5, 6)
    a(f"s_and_b32 s60, s{S_W}, 1")
    a(f"s_lshr_b32 s61, s{S_W}, 1")
    a("v_and_b32 v6, 31, v1")
    a("v_bfe_u32 v60, v1, 2, 2")
    a("v_lshrrev_b32 v61, 5, v1")
    a("v_xor_b32 v61, v61, v60")
    a("v_xor_b32 v60, 2, v61")
    a("v_lshlrev_b32 v6, 6, v6")
    a(f"s_lshl_b32 s{T0}, s60, 12")
    a(f"s_add_u32 s{T0}, s{T0}, {O_X}")
    a(f"v_add_u32 v6, s{T0}, v6")
    a("v_lshl_add_u32 v53, v61, 4, v6")
    a("v_lshl_add_u32 v54, v60, 4, v6")
    a("s_lshl_b32 s62, s61, 1")
    a("v_lshlrev_b32 v48, 6, v4")
    a("v_lshl_add_u32 v48, v3, 5, v48")
    a("v_add_u32 v48, v48, v5")
    a(f"v_add_u32 v48, {O_Q}, v48")
    a("s_cmp_eq_u32 s3, 0")
    a("s_cbranch_scc1 L_c_tB")
    a("v_and_b32 v6, 3, v4")
    a("v_lshl_or_b32 v6, v6, 1, v3")
    a("v_xor_b32 v6, s62, v6")
    a("v_lshlrev_b32 v60, 13, v3")
    a("v_lshl_add_u32 v60, v4, 8, v60")
    a("v_add_u32 v60, v60, v5")
    a("v_lshl_add_u32 v55, v6, 5, v60")
    a("v_xor_b32 v59, 32, v55")
    a(f"s_mov_b32 s{T0}, 1024")
    a("s_branch L_c_u1done")
    a.label("L_c_tB")
    a(f"v_mul_u32_u24 v6, {B_UP}, v3")
    a("v_mul_u32_u24 v60, 192, v4")
    a("v_add3_u32 v6, v6, v60, v5")
    a(f"s_lshl_b32 s{T0}, s61, 6")
    a(f"v_add_u32 v55, s{T0}, v6")
    a("v_add_u32 v59, 32, v55")
    a(f"s_mov_b32 s{T0}, 768")
    a.label("L_c_u1done")
    a(f"s_lshl_b32 s{T1}, s{T0}, 2")
    for b in (55, 59):
        a(f"v_add_u32 v{b+1}, s{T0}, v{b}")
        a(f"v_add_u32 v{b+2}, s{T1}, v{b}")
        a(f"v_add_u32 v{b+3}, s{T0}, v{b+2}")
    a("s_mov_b32 s99, 0")
    a("s_cmp_eq_u32 s3, 0")
    a("s_cbranch_scc1 L_c_vB")
    a("s_add_u32 s65, s61, 1")
    a(f"s_cmp_lt_u32 s{S_W}, 4")
    a("s_cselect_b32 s99, s65, 0")
    a("s_branch L_c_vdone")
    a.label("L_c_vB")
    a("s_cmp_eq_u32 s61, 3")
    a("s_cselect_b32 s99, 3, 0")
    a.label("L_c_vdone")
    a(f"s_cmp_eq_u32 s{S_W}, 0")
    a("s_cselect_b32 s69, 8, 99")
    a(f"s_cmp_eq_u32 s{S_W}, 7")
    a(f"s_cselect_b32 s69, {PST0 if NA < 7 else 99}, s69")
    a(f"s_mov_b32 s68, {7-NA}")
    XA = (8, 12); WA = (16, 20)
    XB = (28, 32); WB = (36, 40)
    def rd_list(X, W, c_x, w0a, w0b, w1a, w1b):
        return [f"ds_read_b128 v[{X[0]}:{X[0]+3}], v{c_x}",
                f"ds_read_b64_tr_b16 v[{W[0]}:{W[0]+1}], v{w0a}",
                f"ds_read_b64_tr_b16 v[{W[0]+2}:{W[0]+3}], v{w0b}",
                f"ds_read_b64_tr_b16 v[{W[1]}:{W[1]+1}], v{w1a}",
                f"ds_read_b64_tr_b16 v[{W[1]+2}:{W[1]+3}], v{w1b}",
                f"ds_read_b128 v[{X[1]}:{X[1]+3}], v{c_x} offset:2048"]
    QA_, QB_ = 24, 44
    QACC = 138
    def qrd(dst, c_q, ks):
        return [f"ds_read_b64_tr_b16 v[{dst}:{dst+1}], v{c_q} offset:{16*ks*64}",
                f"ds_read_b64_tr_b16 v[{dst+2}:{dst+3}], v{c_q} offset:{(16*ks+4)*64}"]
    def reads(var, X, W, Q, regs, c_q, ks):
        r = rd_list(X, W, *regs)
        if var in (1, 2): r = r + qrd(Q, c_q, ks)
        if var == 3: r = [r[0]] + qrd(Q, c_q, ks) + [r[5]]
        return r
    def mf_rd(var, X, W, Q, rds, first=False, extra=()):
        rds = list(rds); extra = list(extra)
        ops = []
        if var == 3:
            ops = [(64 + t * 32, Q, X[t]) for t in range(2)]
        else:
            ops = [(64 + (t * 2 + u) * 16, W[u], X[t]) for t in range(2) for u in range(2)]
            if var: ops.insert(2, (QACC, Q, X[var - 1]))
        for k, (d, w_, x_) in enumerate(ops):
            c = "0" if first else f"v[{d}:{d+15}]"
            a(f"v_mfma_f32_32x32x16_bf16 v[{d}:{d+15}], v[{w_}:{w_+3}], v[{x_}:{x_+3}], {c}")
            for _ in range(4 if var == 3 else 3):
                if rds: a(rds.pop(0))
            if k == len(ops) - 2:
                for e in extra: a(e)
    BK = [f"s_add_u32 s63, s63, {SLOT}", f"s_cmp_eq_u32 s63, {NS*SLOT}", "s_cselect_b32 s63, 0, s63", "s_add_u32 s64, s64, 1", "s_cmp_lt_u32 s64, 16"]
    a(f"s_mov_b32 s63, {SLOT}")
    a("s_mov_b32 s64, 0")
    for var in (1, 2, 3):
        a(f"s_cmp_eq_u32 s99, {var}")
        a(f"s_cbranch_scc1 L_c_var{var}")
    for var in (0, 1, 2, 3):
        CUR = [f"v_add_u32 v{128+i}, s63, v{53+i}" for i in (range(2) if var == 3 else range(10))]
        if var: CUR.append("v_add_u32 v154, s63, v48")
        RA = reads(var, XA, WA, QA_, (128, 130, 131, 134, 135), 154, 0)
        RB = reads(var, XB, WB, QB_, (129, 132, 133, 136, 137), 154, 1)
        a.label(f"L_c_var{var}")
        a("s_barrier")
        stamp(a, 2)
        for r in reads(var, XA, WA, QA_, (53, 55, 56, 59, 60), 48, 0): a(r)
        a("s_waitcnt lgkmcnt(0)")
        mf_rd(var, XA, WA, QA_, reads(var, XB, WB, QB_, (54, 57, 58, 61, 62), 48, 1), first=True, extra=CUR)
        a(f"s_branch L_c_noside{var}")
        a.label(f"L_c_loop{var}")
        a("s_waitcnt lgkmcnt(0)")
        if "stagest" in FLAGS: a("s_mov_b32 m0, s64\ns_nop 0\nv_writelane_b32 v167, s96, m0")
        if var == 3:
            mf_rd(var, XA, WA, QA_, RB, extra=CUR + ["s_cmp_eq_u32 s64, s69"])
            a("s_cbranch_scc1 L_c_side3")
        elif var < 2:
            mf_rd(var, XA, WA, QA_, RB, extra=CUR + ["s_cmp_eq_u32 s64, s69"])
            a("s_cbranch_scc1 L_c_side")
        else:
            mf_rd(var, XA, WA, QA_, RB, extra=CUR)
        a.label(f"L_c_noside{var}")
        a("s_waitcnt lgkmcnt(0)")
        a("s_barrier")
        if "stagest" in FLAGS: a("s_memtime s[96:97]")
        mf_rd(var, XB, WB, QB_, RA, extra=BK)
        a(f"s_cbranch_scc1 L_c_loop{var}")
        a("s_branch L_c_p1end")
    a.label("L_c_noside")
    a("s_cmp_eq_u32 s99, 0")
    a("s_cbranch_scc1 L_c_noside0")
    a("s_branch L_c_noside1")
    a.label("L_c_side3")
    a("global_load_dword v160, v[158:159], off")
    a("v_add_co_u32 v158, vcc, v158, v157")
    a(f"s_add_u32 s69, s69, {PSTEP}")
    a("s_sub_u32 s68, s68, 1")
    a("v_addc_co_u32 v159, vcc, 0, v159, vcc")
    a("s_cmp_eq_u32 s68, 0")
    a("s_cselect_b32 s69, 99, s69")
    a("s_branch L_c_noside3")
    a.label("L_c_side")
    a(f"s_cmp_lg_u32 s{S_W}, 0")
    a("s_cbranch_scc1 L_c_noside")
    a.label("L_c_side10")
    a("v_lshlrev_b32 v6, 7, v1")
    a("s_cmp_eq_u32 s64, 11")
    a("s_cbranch_scc1 L_c_side11")
    a("s_mov_b32 s69, 11")
    a("s_mov_b64 exec, 3")
    a(f"global_load_dword v161, v6, s[{S_DBG}:{S_DBG+1}] sc1")
    a("s_mov_b64 exec, -1")
    a("s_branch L_c_noside")
    a.label("L_c_side11")
    a("s_mov_b32 s69, 99")
    a("s_mov_b64 exec, 3")
    a("s_waitcnt vmcnt(0)")
    a("v_cmp_gt_u32 vcc, 64, v161")
    a("s_mov_b64 exec, -1")
    a("s_nop 1")
    a("s_cbranch_vccz L_c_noside")
    poll(a, "L_kv", S_DBG, 6, 7, 64, nwords=2, sleep=32)
    a("s_branch L_c_noside")
    a.label("L_c_p1end")
    stamp(a, 3)
    if "stagest" in FLAGS:
        a("s_mov_b32 m0, s64\ns_nop 0\nv_writelane_b32 v167, s96, m0")
        a(f"s_lshl_b32 s94, s2, 4")
        a(f"s_add_u32 s94, s94, s{S_W}")
        a(f"s_lshl_b32 s94, s94, 8")
        a(f"s_add_u32 s94, s94, {WS_ST + 0x100000}")
        a("v_lshlrev_b32 v166, 2, v1")
        a(f"buffer_store_dword v167, v166, s[{SRD_WS}:{SRD_WS+3}], s94 offen")
    a("s_waitcnt lgkmcnt(0)")
    a("s_nop 7")
    a(f"s_lshl_b32 s66, s{S_MT}, 2")
    a("s_lshl_b32 s65, s60, 1")
    a("s_add_u32 s66, s66, s65")
    def h_tile(t, u):
        d = 64 + (t * 2 + u) * 16
        for j in range(0, 8, 2):
            a(f"v_pk_mul_f32 v[{d+j}:{d+j+1}], v[{d+j}:{d+j+1}], v[{d+8+j}:{d+9+j}]")
        for j in range(4):
            a(f"v_cvt_pk_bf16_f32 v{144+(t*2+u)*4+j}, v{d+2*j}, v{d+2*j+1}")
    a(f"v_mov_b32 v8, {f32hex(QSCALE)}")
    a(f"v_mov_b32 v9, {f32hex(QSCALE)}")
    def q_tile(d, off):
        for j in range(0, 16, 2):
            a(f"v_pk_mul_f32 v[{d+j}:{d+j+1}], v[{d+j}:{d+j+1}], v[8:9]")
        for j in range(8):
            a(f"v_cvt_pk_bf16_f32 v{d+j}, v{d+2*j}, v{d+2*j+1}")
    a(f"s_lshl_b32 s65, s60, 12")
    a(f"s_add_u32 s65, s65, {QX}")
    a("s_cmp_eq_u32 s99, 3")
    a("s_cbranch_scc1 L_c_qep")
    a("s_cmp_eq_u32 s99, 0")
    a("s_cbranch_scc1 L_c_hep")
    a("s_lshl_b32 s67, s61, 11")
    a("s_add_u32 s65, s65, s67")
    a("v_add_u32 v6, s65, v2")
    for j in range(0, 16, 2):
        a(f"v_pk_mul_f32 v[{QACC+j}:{QACC+j+1}], v[{QACC+j}:{QACC+j+1}], v[8:9]")
    for j in range(8):
        a(f"v_cvt_pk_bf16_f32 v{16+j}, v{QACC+2*j}, v{QACC+2*j+1}")
    a("ds_write_b128 v6, v[16:19]")
    a("ds_write_b128 v6, v[20:23] offset:1024")
    a.label("L_c_hep")
    a("s_mul_i32 s67, s66, 144")
    a("s_add_u32 s67, s67, s98")
    a("s_add_u32 s67, s67, s62")
    a("s_lshl_b32 s67, s67, 10")
    a(f"s_add_u32 s67, s67, {WS_AF}")
    a(f"s_add_u32 s68, s67, {144*1024}")
    h_tile(0, 0)
    h_tile(1, 0)
    h_tile(0, 1)
    h_tile(1, 1)
    a("s_waitcnt lgkmcnt(0)")
    a("s_branch L_c_epdone")
    a.label("L_c_qep")
    a("v_add_u32 v6, s65, v2")
    for t in range(2):
        d = 64 + t * 32
        q_tile(d, 0)
        a(f"ds_write_b128 v6, v[{d}:{d+3}] offset:{t*2048}")
        a(f"ds_write_b128 v6, v[{d+4}:{d+7}] offset:{t*2048+1024}")
    a.label("L_c_epdone")
    SA = (32, 48); SB = (64, 80); OA = 96; OB = 112
    QA = 4; QB = 8; KF = (12, 16); VF = (20, 128)
    IDX = 28; AK = 29; AV = 30; VG = 31
    AKN = 136; AVN = 137; VB = 138; MA = 139; ONE = 140; NX = 141
    a("s_lshl_b32 s65, s72, 7")
    a(f"s_add_u32 s65, s65, {WS_G}")
    a("v_and_b32 v3, 31, v1")
    a("v_lshlrev_b32 v3, 2, v3")
    a(f"buffer_load_dword v{VG}, v3, s[{SRD_WS}:{SRD_WS+3}], s65 offen sc1")
    a(f"s_add_u32 s65, s71, {CROT}")
    a("s_lshl_b32 s65, s65, 12")
    a(f"v_add_u32 v{AK}, s65, v2")
    a("v_lshrrev_b32 v3, 5, v1")
    a("v_and_b32 v32, 15, v1")
    a("v_lshl_add_u32 v3, v3, 4, v32")
    a("v_lshlrev_b32 v3, 4, v3")
    a(f"v_add_u32 v{VB}, {L_V}, v3")
    a(f"v_add_u32 v{AV}, s65, v{VB}")
    a(f"v_mov_b32 v{IDX}, 0xdddddddd")
    a("v_and_b32 v3, 27, v1")
    a("v_cmp_eq_u32 vcc, 16, v3")
    a("v_mov_b32 v3, 0x3f803f80")
    a("s_lshl_b32 s65, s70, 2")
    a("v_cndmask_b32 v3, 0, v3, vcc")
    a("v_mov_b32 v20, v3")
    a("v_mov_b32 v21, v3")
    for b in VF:
        for i in range(0, 8, 2):
            if b + i != 20: a(f"v_pk_mov_b32 v[{b+i}:{b+i+1}], v[20:21], v[20:21] op_sel:[0,1]")
    a("s_mov_b32 s74, 0x0000ffff")
    a("s_mov_b32 s75, 0x0000ffff")
    a(f"s_add_u32 s65, s65, {MISC}")
    a(f"v_mov_b32 v{MA}, s65")
    a(f"v_mov_b32 v{ONE}, 1")
    a("s_lshl_b32 s65, s70, 11")
    a(f"s_add_u32 s65, s65, {QX}")
    a("v_add_u32 v3, s65, v2")
    a(f"v_mov_b32 v33, {M_CD}")
    a("s_waitcnt lgkmcnt(0)")
    a(f"v_mov_b32 v{OA}, 0")
    a(f"v_mov_b32 v{OA+1}, 0")
    for r in [OA + i for i in range(2, 10, 2)] + [OB + i for i in range(0, 10, 2)] + [SB[1] + i for i in range(8, 16, 2)]:
        a(f"v_pk_mov_b32 v[{r}:{r+1}], v[{OA}:{OA+1}], v[{OA}:{OA+1}] op_sel:[0,1]")
    a("s_barrier")
    stamp(a, 4)
    a(f"ds_read_b128 v[{QA}:{QA+3}], v3")
    a(f"ds_read_b128 v[{KF[0]}:{KF[0]+3}], v{AK}")
    a(f"ds_read_b128 v[{QB}:{QB+3}], v3 offset:1024")
    a(f"ds_read_b128 v[{KF[1]}:{KF[1]+3}], v{AK} offset:1024")
    a("s_mov_b64 exec, s[74:75]")
    a(f"ds_read_b128 v[{VF[0]}:{VF[0]+3}], v{AV}")
    a(f"ds_read_b128 v[{VF[0]+4}:{VF[0]+7}], v{AV} offset:512")
    a("s_mov_b64 exec, 1")
    a(f"ds_add_u32 v33, v{ONE}")
    a("s_mov_b64 exec, -1")
    a("s_waitcnt lgkmcnt(0)")
    if "dumpq" in FLAGS:
        a("s_lshl_b32 s65, s72, 5")
        a(f"s_lshl_b32 s73, s{S_FS}, 1")
        a("s_add_u32 s65, s65, s73")
        a("s_lshl_b32 s65, s65, 10")
        a(f"s_add_u32 s65, s65, {WS_QF}")
        a(f"buffer_store_dwordx4 v[{QA}:{QA+3}], v2, s[{SRD_WS}:{SRD_WS+3}], s65 offen")
        a(f"buffer_store_dwordx4 v[{QB}:{QB+3}], v2, s[{SRD_WS}:{SRD_WS+3}], s65 offen offset:1024")
    a(f"v_mfma_f32_32x32x16_bf16 v[{SA[0]}:{SA[0]+15}], v[{KF[0]}:{KF[0]+3}], v[{QA}:{QA+3}], 0")
    a(f"v_mfma_f32_32x32x16_bf16 v[{SB[0]}:{SB[0]+15}], v[{KF[0]}:{KF[0]+3}], v[{QB}:{QB+3}], 0")
    a("s_nop 15")
    def smf(O, V, P):
        a(f"v_smfmac_f32_32x32x32_bf16 v[{O}:{O+15}], v[{V}:{V+3}], v[{P}:{P+7}], v{IDX}")
    UN = 4
    def tile(t):
        c = t & 1; n = c ^ 1
        sa, sb = SA[c], SB[c]
        def E(S, i): a(f"v_exp_f32 v{S+i}, v{S+i}")
        a("s_waitcnt lgkmcnt(0)")
        if t == 1:
            a(f"v_readfirstlane_b32 s73, v{NX}")
        if t + 2 < UN: a(f"ds_read_b128 v[{KF[c]}:{KF[c]+3}], v{AK} offset:{(t+2)*1024}")
        else:          a(f"ds_read_b128 v[{KF[c]}:{KF[c]+3}], v{AKN} offset:{(t+2-UN)*1024}")
        E(sa, 0); E(sa, 1)
        smf(OB, VF[n] + 4, SB[n] + 8)
        a("s_mov_b64 exec, s[74:75]")
        av, vo = (AV, (t + 1) * 1024) if t + 1 < UN else (AVN, 0)
        a(f"ds_read_b128 v[{VF[n]}:{VF[n]+3}], v{av} offset:{vo}")
        a(f"ds_read_b128 v[{VF[n]+4}:{VF[n]+7}], v{av} offset:{vo+512}")
        if t == 0:
            a("s_mov_b64 exec, 1")
            a(f"ds_add_rtn_u32 v{NX}, v{MA}, v{ONE}")
        a("s_mov_b64 exec, -1")
        if t == 1:
            a(f"s_add_u32 s65, s73, {CROT}")
            a("s_and_b32 s65, s65, 15")
            a("s_lshl_b32 s65, s65, 12")
        for i in range(2, 6): E(sa, i)
        a(f"v_mfma_f32_32x32x16_bf16 v[{SA[n]}:{SA[n]+15}], v[{KF[n]}:{KF[n]+3}], v[{QA}:{QA+3}], 0")
        if t == 1:
            a(f"v_add_u32 v{AKN}, s65, v2")
            a(f"v_add_u32 v{AVN}, s65, v{VB}")
        for i in range(6, 11): E(sa, i)
        smf(OA, VF[c], sa)
        for i in range(11, 16): E(sa, i)
        E(sb, 0); E(sb, 1)
        smf(OA, VF[c] + 4, sa + 8)
        for i in range(2, 6): E(sb, i)
        a(f"v_mfma_f32_32x32x16_bf16 v[{SB[n]}:{SB[n]+15}], v[{KF[n]}:{KF[n]+3}], v[{QB}:{QB+3}], 0")
        for i in range(6, 11): E(sb, i)
        smf(OB, VF[c], sb)
        if t == UN - 1:
            a(f"v_mov_b32 v{AK}, v{AKN}")
            a(f"v_mov_b32 v{AV}, v{AVN}")
        for i in range(11, 16): E(sb, i)
        if t < 2:
            a(f"s_cbranch_vccnz L_a_hs{t}")
            a.label(f"L_a_hsr{t}")
    a("s_cmp_lg_u32 s99, 3")
    a("s_cselect_b64 vcc, -1, 0")
    a("s_mov_b32 s79, 0")
    a("s_mov_b32 s73, 0")
    a("s_cmp_lg_u32 s71, 0")
    a("s_cbranch_scc1 L_a_job")
    stamp(a, 6)
    a.label("L_a_loop")
    for t in range(UN):
        tile(t)
    a("s_cmp_eq_u32 s79, 0")
    a("s_cbranch_scc1 L_a_job")
    a.label("L_a_next")
    a(f"s_cmp_lt_u32 s73, {64//UN}")
    a("s_cbranch_scc1 L_a_loop")
    a("s_mov_b64 exec, 1")
    a(f"ds_add_rtn_u32 v{NX}, v{MA}, v{ONE} offset:16")
    a(f"v_mov_b32 v3, {M_GD}")
    a("s_mov_b64 exec, -1")
    smf(OB, VF[1] + 4, SB[1] + 8)
    a(f"s_mul_i32 s65, s70, {OXS}")
    a(f"s_add_u32 s65, s65, {OX}")
    a("v_add_u32 v32, s65, v2")
    a("v_lshrrev_b32 v33, 1, v2")
    a("v_add_u32 v33, s65, v33")
    a("s_waitcnt lgkmcnt(0)")
    a(f"v_readfirstlane_b32 s73, v{NX}")
    stamp(a, 5)
    a("s_nop 3")
    a("s_cmp_lg_u32 s73, 0")
    a("s_cbranch_scc1 L_a_second")
    a("s_mov_b64 exec, 1")
    a("s_mov_b32 s65, 0")
    a.label("L_a_gd")
    a("ds_read_b32 v34, v3")
    a("s_add_u32 s65, s65, 1")
    a("s_waitcnt lgkmcnt(0)")
    a("v_cmp_gt_u32 vcc, 4, v34")
    a(f"s_cmp_ge_u32 s65, {SPIN*4}")
    a("s_cbranch_scc1 L_a_gd2")
    a("s_nop 1")
    a("s_cbranch_vccnz L_a_gd")
    a.label("L_a_gd2")
    a("s_mov_b64 exec, -1")
    a(f"v_mov_b32 v{OA+9}, v{OB+8}")
    a(f"ds_write_b128 v32, v[{OA}:{OA+3}]")
    a(f"ds_write_b128 v32, v[{OA+4}:{OA+7}] offset:1024")
    a(f"ds_write_b128 v32, v[{OB}:{OB+3}] offset:2048")
    a(f"ds_write_b128 v32, v[{OB+4}:{OB+7}] offset:3072")
    a(f"ds_write_b64 v33, v[{OA+8}:{OA+9}] offset:4096")
    a("s_waitcnt lgkmcnt(0)")
    a("s_mov_b64 exec, 1")
    a(f"ds_write_b32 v{MA}, v{ONE} offset:32")
    a(f"ds_add_u32 v3, v{ONE} offset:{M_KF-M_GD}")
    a("s_endpgm")
    a.label("L_a_second")
    a("s_mov_b64 exec, 1")
    a("s_mov_b32 s65, 0")
    a.label("L_a_rdy")
    a(f"ds_read_b32 v34, v{MA} offset:32")
    a("s_add_u32 s65, s65, 1")
    a("s_waitcnt lgkmcnt(0)")
    a("v_cmp_eq_u32 vcc, 0, v34")
    a(f"s_cmp_ge_u32 s65, {SPIN*4}")
    a("s_cbranch_scc1 L_a_rdy2")
    a("s_nop 1")
    a("s_cbranch_vccnz L_a_rdy")
    a.label("L_a_rdy2")
    a("s_mov_b64 exec, -1")
    a("ds_read_b128 v[64:67], v32")
    a("ds_read_b128 v[68:71], v32 offset:1024")
    a("ds_read_b128 v[72:75], v32 offset:2048")
    a("ds_read_b128 v[76:79], v32 offset:3072")
    a("ds_read_b64 v[80:81], v33 offset:4096")
    a("s_mov_b32 s79, 0")
    a("s_waitcnt lgkmcnt(0)")
    for i in range(0, 8, 2):
        a(f"v_pk_add_f32 v[{OA+i}:{OA+i+1}], v[{OA+i}:{OA+i+1}], v[{64+i}:{65+i}]")
        a(f"v_pk_add_f32 v[{OB+i}:{OB+i+1}], v[{OB+i}:{OB+i+1}], v[{72+i}:{73+i}]")
    a(f"v_add_f32 v{OA+8}, v{OA+8}, v80")
    a(f"v_add_f32 v{OB+8}, v{OB+8}, v81")
    a.label("L_a_finloop")
    a(f"v_add_f32 v35, v{OA}, v{OA+1}")
    a(f"v_add_f32 v36, v{OA+2}, v{OA+3}")
    a(f"v_add_f32 v37, v{OA+4}, v{OA+5}")
    a(f"v_add_f32 v34, v{OA+6}, v{OA+7}")
    a("v_add_f32 v35, v35, v36")
    a("v_add_f32 v34, v34, v37")
    a("v_add_f32 v35, v35, v34")
    a(f"v_fma_f32 v35, v35, 0, v{OA+8}")
    a(f"v_cmp_nle_f32 vcc, {f32hex(2.0**-30)}, v35")
    a("s_mov_b64 s[76:77], vcc")
    a(f"v_cmp_nge_f32 vcc, {f32hex(2.0**30)}, v35")
    a("s_or_b64 s[76:77], s[76:77], vcc")
    a("s_cmp_lg_u64 s[76:77], 0")
    a("s_cbranch_scc1 L_a_fallback")
    a.label("L_a_fin")
    a(f"v_rcp_f32 v32, v{OA+8}")
    a("s_nop 0")
    a(f"v_mul_f32 v32, v32, v{VG}")
    for i in range(8):
        a(f"v_mul_f32 v{OA+i}, v{OA+i}, v32")
    for j in range(4):
        a(f"v_cvt_pk_bf16_f32 v{36+j}, v{OA+2*j}, v{OA+2*j+1}")
    for j in range(4):
        a(f"v_min_u32 v{36+j}, -2, v{36+j}")
    a(f"buffer_store_dwordx4 v[36:39], v2, s[{SRD_WS}:{SRD_WS+3}], s78 offen sc1")
    a("s_cmp_lg_u32 s79, 0")
    a("s_cbranch_scc1 L_a_done")
    a("s_mov_b32 s79, 1")
    a("s_add_u32 s78, s78, 1024")
    for i in range(9):
        a(f"v_mov_b32 v{OA+i}, v{OB+i}")
    for i in range(4):
        a(f"v_mov_b32 v{QA+i}, v{QB+i}")
    a("s_branch L_a_finloop")
    a.label("L_a_done")
    a(f"v_mov_b32 v3, {M_KF}")
    a("s_mov_b64 exec, 1")
    a(f"ds_add_u32 v3, v{ONE}")
    a("s_mov_b64 exec, -1")
    stamp(a, 7)
    a("s_endpgm")
    for t in range(2):
        a.label(f"L_a_hs{t}")
        for u in range(2):
            r = 144 + (t * 2 + u) * 4
            a(f"buffer_store_dwordx4 v[{r}:{r+3}], v2, s[{SRD_WS}:{SRD_WS+3}], s{67+t} offen offset:{1024*u} sc1")
        a(f"s_branch L_a_hsr{t}")
    a.label("L_a_job")
    a("s_mov_b32 s79, 1")
    a("s_cmp_eq_u32 s71, 0")
    a("s_cbranch_scc1 L_a_job1")
    a("s_cbranch_vccz L_a_job1")
    for t in range(2):
        for u in range(2):
            r = 144 + (t * 2 + u) * 4
            a(f"buffer_store_dwordx4 v[{r}:{r+3}], v2, s[{SRD_WS}:{SRD_WS+3}], s{67+t} offen offset:{1024*u} sc1")
    a.label("L_a_job1")
    a("s_waitcnt vmcnt(0)")
    a("s_mov_b64 exec, 1")
    a(f"v_mov_b32 v3, {M_HD}")
    a(f"ds_add_u32 v3, v{ONE}")
    a("s_mov_b32 s65, 0")
    a.label("L_a_kvw")
    a(f"ds_read_b32 v142, v3 offset:4")
    a("s_add_u32 s65, s65, 1")
    a("s_waitcnt lgkmcnt(0)")
    a("v_cmp_gt_u32 vcc, 4, v142")
    a(f"s_cmp_ge_u32 s65, {SPIN*4}")
    a("s_cbranch_scc1 L_a_kvw2")
    a("s_nop 1")
    a("s_cbranch_vccnz L_a_kvw")
    a.label("L_a_kvw2")
    a("s_mov_b64 exec, -1")
    a("s_mov_b64 vcc, 0")
    a("s_branch L_a_next")
    a.label("L_a_fallback")
    S = SA[1]; M = 3
    a(f"v_mov_b32 v{M}, 0xff800000")
    a(f"v_mov_b32 v{AK}, v2")
    a("s_mov_b32 s73, 0")
    a.label("L_fb1")
    a(f"ds_read_b128 v[{KF[0]}:{KF[0]+3}], v{AK}")
    a("s_waitcnt lgkmcnt(0)")
    a(f"v_mfma_f32_32x32x16_bf16 v[{S}:{S+15}], v[{KF[0]}:{KF[0]+3}], v[{QA}:{QA+3}], 0")
    a(f"v_add_u32 v{AK}, 1024, v{AK}")
    a("s_nop 15")
    for i in range(0, 16, 2):
        a(f"v_max3_f32 v{M}, v{M}, v{S+i}, v{S+i+1}")
    a("s_add_u32 s73, s73, 1")
    a("s_cmp_lt_u32 s73, 64")
    a("s_cbranch_scc1 L_fb1")
    a(f"v_mov_b32 v32, v{M}")
    a("s_nop 1")
    a(f"v_permlane32_swap_b32 v{M}, v32")
    a("s_nop 1")
    a(f"v_max_f32 v{M}, v{M}, v32")
    for i in range(16):
        a(f"v_mov_b32 v{OA+i}, 0")
    a(f"v_mov_b32 v{AK}, v2")
    a(f"v_mov_b32 v{AV}, v{VB}")
    a("s_mov_b32 s73, 0")
    a.label("L_fb2")
    a(f"ds_read_b128 v[{KF[0]}:{KF[0]+3}], v{AK}")
    a("s_mov_b64 exec, s[74:75]")
    a(f"ds_read_b128 v[{VF[0]}:{VF[0]+3}], v{AV}")
    a(f"ds_read_b128 v[{VF[0]+4}:{VF[0]+7}], v{AV} offset:512")
    a("s_mov_b64 exec, -1")
    a("s_waitcnt lgkmcnt(0)")
    a(f"v_mfma_f32_32x32x16_bf16 v[{S}:{S+15}], v[{KF[0]}:{KF[0]+3}], v[{QA}:{QA+3}], 0")
    a(f"v_add_u32 v{AK}, 1024, v{AK}")
    a(f"v_add_u32 v{AV}, 1024, v{AV}")
    a("s_nop 15")
    for i in range(16):
        a(f"v_sub_f32 v{S+i}, v{S+i}, v{M}")
    for i in range(16):
        a(f"v_exp_f32 v{S+i}, v{S+i}")
    a("s_nop 1")
    smf(OA, VF[0], S)
    smf(OA, VF[0] + 4, S + 8)
    a("s_nop 7")
    a("s_add_u32 s73, s73, 1")
    a("s_cmp_lt_u32 s73, 64")
    a("s_cbranch_scc1 L_fb2")
    a("s_nop 15")
    a("s_branch L_a_fin")

def gen_g1(a):
    ROLE[0] = "g"
    a("s_setprio %d" % (1 if "prio1" in FLAGS else 3))
    GUB = 512 * 1792 * 2
    a(f"s_sub_u32 s44, s{S_W}, 8")
    a("s_lshl_b32 s45, s44, 10")
    a(f"s_mul_i32 s76, s44, {PA_W}")
    a(f"s_add_u32 s76, s76, {PA}")
    a(f"s_lshl_b32 s77, s{S_MT}, 3")
    a(f"s_lshr_b32 s{T0}, s{S_FS}, 1")
    a(f"s_add_u32 s77, s77, s{T0}")
    a("s_mov_b32 s78, 0xffff")
    a("s_mov_b32 s79, 0xffff")
    for d in (48, 52, 56, 60): srd_hi(a, d, GUB)
    a("v_lshrrev_b32 v4, 2, v1")
    a("v_lshrrev_b32 v5, 4, v1")
    a("v_and_b32 v10, 3, v1")
    a("v_xor_b32 v10, v10, v5")
    a("v_lshlrev_b32 v10, 4, v10")
    a("v_lshl_add_u32 v10, v4, 10, v10")
    a(f"s_lshl_b32 s{T0}, s{S_MT}, 7")
    a(f"s_lshl_b32 s{T1}, s44, 4")
    a(f"s_add_u32 s{T0}, s{T0}, s{T1}")
    a(f"s_lshl_b32 s{T0}, s{T0}, 10")
    a(f"v_add_u32 v10, s{T0}, v10")
    a("v_add_u32 v11, 0x10000, v10")
    a("s_lshl_b32 s46, s98, 5")
    srd_hi(a, 84, 512 * 512 * 2)
    a("v_lshlrev_b32 v14, 10, v4")
    a("v_and_b32 v15, 3, v1")
    a("v_lshl_add_u32 v14, v15, 4, v14")
    a(f"s_lshl_b32 s{T0}, s{S_FS}, 6")
    a(f"s_lshl_b32 s{T1}, s44, 13")
    a(f"s_add_u32 s{T0}, s{T0}, s{T1}")
    a(f"v_add_u32 v14, s{T0}, v14")
    a("s_lshl_b32 s66, s44, 9")
    a(f"s_add_u32 s66, s66, {O_Q}")
    a("s_mov_b32 s88, -1")
    a("s_mov_b32 s89, 0")
    a("s_cmp_eq_u32 s3, 0")
    a("s_cbranch_scc1 L_g_tB")
    a("s_mov_b32 s71, 0")
    a("v_and_b32 v8, 15, v1")
    a("v_lshlrev_b32 v4, 2, v5")
    a("v_xor_b32 v8, v8, v4")
    a("v_lshlrev_b32 v8, 4, v8")
    a(f"s_lshl_b32 s{T0}, s44, 2")
    a(f"v_add_u32 v4, s{T0}, v5")
    a("v_mul_u32_u24 v4, 3584, v4")
    a("v_add3_u32 v8, v8, v4, s46")
    a("v_xor_b32 v9, 32, v8")
    a(f"v_add_u32 v12, {16*3584}, v8")
    a(f"v_add_u32 v13, {16*3584}, v9")
    a("s_add_u32 s47, s45, 8192")
    a("s_add_u32 s64, s45, 4096")
    a("s_add_u32 s65, s45, 12288")
    a("s_mov_b64 s[74:75], -1")
    a("s_branch L_g_qdone")
    a.label("L_g_tB")
    def b_voff(vd, s_idx):
        a(f"s_lshl_b32 s{T0}, s{s_idx}, 6")
        a(f"v_add_u32 v{vd}, s{T0}, v1")
        a(f"v_mul_u32_u24 v4, 5462, v{vd}")
        a("v_lshrrev_b32 v4, 16, v4")
        a(f"v_lshlrev_b32 v{vd}, 4, v{vd}")
        a(f"v_mul_u32_u24 v4, {3584-192}, v4")
        a(f"v_add3_u32 v{vd}, v{vd}, v4, s46")
    b_voff(8, 44)
    a("v_mov_b32 v9, v8")
    a("s_and_b32 s47, s44, 1")
    a("s_add_u32 s47, s47, 4")
    b_voff(12, 47)
    a("v_mov_b32 v13, v8")
    a("s_lshl_b32 s64, s47, 10")
    a("s_cmp_lt_u32 s44, 2")
    a(f"s_cselect_b32 s71, 0, {B_UP}")
    a("s_add_u32 s64, s64, s71")
    a(f"s_add_u32 s47, s45, {B_UP}")
    a("s_mov_b32 s65, s45")
    a("s_mov_b64 s[74:75], 1")
    a.label("L_g_qdone")
    a("s_mov_b32 s67, 0")
    a("s_mov_b32 s68, 0")
    a("s_mov_b32 s69, 0")
    a("s_mov_b32 s70, 0")
    a("s_getpc_b64 s[72:73]")
    a.label("L_g_ref")
    a("s_add_u32 s72, s72, L_g_after-L_g_ref")
    a("s_addc_u32 s73, s73, 0")
    a("s_waitcnt lgkmcnt(0)")
    srd_lo(a, SRD_X, S_X)
    srd_lo(a, 48, S_WG)
    srd_lo(a, 52, S_WU)
    srd_lo(a, 84, S_WQ)
    a("s_cmp_eq_u32 s71, 0")
    a(f"s_cselect_b64 s[56:57], s[{S_WG}:{S_WG+1}], s[{S_WU}:{S_WU+1}]")
    a("s_cmp_eq_u32 s3, 0")
    a(f"s_cselect_b64 s[60:61], s[{S_WG}:{S_WG+1}], s[{S_WU}:{S_WU+1}]")
    def issue_stage(slot):
        a(f"s_add_u32 s{T0}, s45, s{slot}")
        a(f"s_add_u32 m0, s{T0}, {O_X}")
        a("s_nop 0")
        a(f"buffer_load_dwordx4 v10, s[{SRD_X}:{SRD_X+3}], s69 offen lds")
        a(f"s_add_u32 m0, s{T0}, {O_X+4096}")
        a("s_nop 0")
        a(f"buffer_load_dwordx4 v11, s[{SRD_X}:{SRD_X+3}], s69 offen lds")
        a(f"s_mov_b32 m0, s{T0}")
        a("s_add_u32 s69, s69, 64")
        a("buffer_load_dwordx4 v8, s[48:51], s67 offen lds")
        a(f"s_add_u32 m0, s47, s{slot}")
        a("s_nop 0")
        a("buffer_load_dwordx4 v9, s[52:55], s67 offen lds")
        a(f"s_add_u32 m0, s64, s{slot}")
        a("s_nop 0")
        a("buffer_load_dwordx4 v12, s[56:59], s67 offen lds")
        a(f"s_add_u32 m0, s65, s{slot}")
        a("s_mov_b64 exec, s[74:75]")
        a("buffer_load_dwordx4 v13, s[60:63], s67 offen lds")
        a(f"s_add_u32 m0, s66, s{slot}")
        a("s_mov_b64 exec, s[88:89]")
        a("buffer_load_dwordx4 v14, s[84:87], s68 offen lds")
        a("s_mov_b64 exec, -1")
        a(f"s_add_u32 s67, s67, {32*3584}")
        a(f"s_add_u32 s68, s68, {32*1024}")
        a(f"s_add_u32 s{slot}, s{slot}, {SLOT}")
        a(f"s_cmp_eq_u32 s{slot}, {NS*SLOT}")
        a(f"s_cselect_b32 s{slot}, 0, s{slot}")
    def call(): a("s_call_b64 s[72:73], L_g_issue")
    a.label("L_g_issue")
    issue_stage(70)
    a("s_setpc_b64 s[72:73]")
    a.label("L_g_after")
    srd_lo(a, SRD_WS, S_WS)
    stamp(a, 0)
    a("s_cmp_lg_u32 s3, 0")
    a("s_cbranch_scc1 L_g_noA1")
    make_srd(a, 80, S_WK, 16384)
    a(f"s_lshl_b32 s{T0}, s44, 12")
    a("s_mov_b32 m0, s76")
    a("v_and_b32 v7, 31, v1")
    for i in range(4):
        a(f"buffer_load_dwordx4 v2, s[80:83], s{T0} offen offset:{1024*i} lds")
    make_srd(a, 80, S_WV, 16384)
    a("s_add_u32 m0, s76, 4224")
    a("v_lshlrev_b32 v7, 10, v7")
    for i in range(4):
        a(f"buffer_load_dwordx4 v2, s[80:83], s{T0} offen offset:{1024*i} lds")
    make_srd(a, 80, S_GW, 1024)
    a("s_add_u32 m0, s76, 8448")
    a(f"s_lshl_b32 s{T0}, s77, 14")
    a("buffer_load_dwordx4 v2, s[80:83], 0 offen lds")
    a(f"s_lshl_b32 s{T1}, s44, 8")
    a(f"s_add_u32 s{T0}, s{T0}, s{T1}")
    a("v_lshrrev_b32 v6, 5, v1")
    a("v_lshl_add_u32 v7, v6, 4, v7")
    a("s_mov_b64 exec, s[78:79]")
    for s_ in range(8):
        a(f"buffer_load_dwordx4 v[{96+4*s_}:{99+4*s_}], v7, s[{SRD_X}:{SRD_X+3}], s{T0} offen offset:{32*s_}")
    a("s_mov_b64 exec, -1")
    call()
    a("s_barrier")
    a(f"s_waitcnt vmcnt({ND+17})")
    a("s_branch L_g_start")
    a.label("L_g_noA1")
    call()
    a("s_barrier")
    a(f"s_waitcnt vmcnt({ND})")
    a.label("L_g_start")
    a("s_barrier")
    call()
    a("s_cmp_eq_u32 s3, 0")
    a("s_cbranch_scc1 L_g_ev_pa")
    a.label("L_g_r0")
    a(f"s_waitcnt vmcnt({ND}) lgkmcnt(0)")
    a("s_barrier")
    call()
    a("s_cmp_eq_u32 s3, 0")
    a("s_cbranch_scc1 L_g_ev_red")
    a.label("L_g_r1")
    a(f"s_waitcnt vmcnt({ND}) lgkmcnt(0)")
    a("s_barrier")
    call()
    a(f"s_waitcnt vmcnt({ND})")
    a("s_barrier")
    a("s_or_b32 s71, s3, s44")
    a("s_cmp_lg_u32 s71, 0")
    a("s_cbranch_scc1 L_g_nsig")
    a("s_and_b32 s71, s2, 1")
    a("s_lshl_b32 s71, s71, 7")
    a("v_mov_b32 v6, s71")
    a("v_mov_b32 v7, 1")
    a("s_mov_b64 exec, 1")
    a(f"global_atomic_add v6, v7, s[{S_DBG}:{S_DBG+1}] sc1")
    a("s_mov_b64 exec, -1")
    stamp(a, 2)
    a.label("L_g_nsig")
    call(); call()
    a(f"s_waitcnt vmcnt({2*ND})")
    a("s_barrier")
    call()
    a("s_mov_b32 s71, 8")
    a.label("L_g_loop")
    call()
    a("s_add_u32 s71, s71, 1")
    a("s_cmp_eq_u32 s71, 16")
    a("s_cbranch_scc1 L_g_tail")
    a(f"s_waitcnt vmcnt({ND*(NS-2)})")
    a("s_barrier")
    a("s_branch L_g_loop")
    a.label("L_g_ev_pa")
    tr_lane(a, 3, 4, 5, 6)
    a("v_mul_u32_u24 v6, 4224, v3")
    a("v_lshl_add_u32 v6, v4, 5, v6")
    a("v_add3_u32 v6, v6, v5, s76")
    a("v_lshrrev_b32 v7, 5, v1")
    a("v_lshlrev_b32 v7, 4, v7")
    a(f"s_lshl_b32 s{T0}, s44, 8")
    a(f"s_add_u32 s{T0}, s{T0}, s76")
    a(f"v_add_u32 v7, s{T0}, v7")
    a(f"s_waitcnt vmcnt({2*ND})")
    stamp(a, 1)
    for s_ in range(8):
        for j in range(2):
            a(f"ds_read_b64_tr_b16 v[{128+4*s_+2*j}:{129+4*s_+2*j}], v6 offset:{(16*s_+4*j)*32}")
        if s_ == 3: a("s_waitcnt lgkmcnt(0)")
    a("s_waitcnt lgkmcnt(0)")
    for s_ in range(8):
        a(f"ds_read_b128 v[{16+4*s_}:{19+4*s_}], v7 offset:{8448+32*s_}")
    for s_ in range(8):
        c = "0" if s_ == 0 else "v[64:79]"
        a(f"v_mfma_f32_32x32x16_bf16 v[64:79], v[{128+4*s_}:{131+4*s_}], v[{96+4*s_}:{99+4*s_}], {c}")
    a("s_waitcnt lgkmcnt(0)")
    for s_ in range(8):
        c = "0" if s_ == 0 else "v[80:95]"
        a(f"v_mfma_f32_32x32x16_bf16 v[80:95], v[{16+4*s_}:{19+4*s_}], v[{96+4*s_}:{99+4*s_}], {c}")
    a("v_and_b32 v6, 31, v1")
    a("v_lshrrev_b32 v60, 5, v1")
    a("v_lshl_add_u32 v61, v6, 1, v60")
    a("v_lshlrev_b32 v61, 5, v61")
    a("v_add_u32 v7, s76, v61")
    a("v_lshlrev_b32 v60, 10, v60")
    a("v_lshl_add_u32 v60, v6, 2, v60")
    a("v_add_u32 v60, s76, v60")
    a("v_lshlrev_b32 v6, 2, v6")
    a("v_add_u32 v5, s76, v6")
    a("ds_write_b128 v7, v[64:67]")
    a("ds_write_b128 v7, v[68:71] offset:16")
    for j in range(8):
        a(f"ds_write_b32 v60, v{72+j} offset:{2048+128*j}")
    a("s_nop 3")
    a("ds_write_b32 v5, v80 offset:4096")
    a("s_branch L_g_r0")
    a.label("L_g_ev_red")
    a("s_cmp_eq_u32 s44, 3")
    a("s_cbranch_scc1 L_g_r1")
    a("s_cmp_eq_u32 s44, 2")
    a("s_cbranch_scc1 L_g_pa_z")
    a(f"s_lshr_b32 s{T0}, s77, 1")
    a(f"s_lshl_b32 s{T0}, s{T0}, 10")
    a(f"s_and_b32 s{T1}, s77, 1")
    a(f"s_lshl_b32 s{T1}, s{T1}, 8")
    a(f"s_add_u32 s{T0}, s{T0}, s{T1}")
    a("v_and_b32 v6, 31, v1")
    a("v_lshrrev_b32 v60, 5, v1")
    a("v_lshl_add_u32 v61, v6, 1, v60")
    a("v_lshlrev_b32 v61, 5, v61")
    a("s_cmp_eq_u32 s44, 0")
    a("s_cbranch_scc1 L_g_pa_red")
    a(f"s_add_u32 s{T0}, s{T0}, s{T1}")
    a("s_mov_b32 s78, -1")
    a("s_mov_b32 s79, 0")
    a("v_bfe_u32 v60, v1, 2, 1")
    a("v_lshlrev_b32 v60, 3, v60")
    a("v_bfe_u32 v61, v1, 3, 1")
    a("v_lshl_add_u32 v60, v61, 2, v60")
    a("v_and_b32 v61, 3, v1")
    a("v_add_u32 v60, v60, v61")
    a("v_lshlrev_b32 v60, 7, v60")
    a("v_lshrrev_b32 v61, 4, v1")
    a("v_lshl_add_u32 v61, v61, 5, v60")
    a("v_add_u32 v61, 2048, v61")
    a(f"s_add_u32 s{T0}, s{T0}, {WS_VF}")
    a.label("L_g_pa_red")
    a(f"v_add_u32 v61, {PA}, v61")
    for w in range(4):
        a(f"ds_read_b128 v[{64+8*w}:{67+8*w}], v61 offset:{w*PA_W}")
        a(f"ds_read_b128 v[{68+8*w}:{71+8*w}], v61 offset:{w*PA_W+16}")
    a("s_waitcnt lgkmcnt(0)")
    for w in (2, 1):
        for q in range(w):
            for j in range(0, 8, 2):
                d = 64 + 8 * q + j; e = d + 8 * w
                a(f"v_pk_add_f32 v[{d}:{d+1}], v[{d}:{d+1}], v[{e}:{e+1}]")
    for j in range(4):
        a(f"v_cvt_pk_bf16_f32 v{140+j}, v{64+2*j}, v{65+2*j}")
    a("s_mov_b64 exec, s[78:79]")
    a(f"buffer_store_dwordx4 v[140:143], v2, s[{SRD_WS}:{SRD_WS+3}], s{T0} offen sc1")
    a("s_mov_b64 exec, -1")
    a("s_branch L_g_r1")
    a.label("L_g_pa_z")
    a("v_and_b32 v6, 15, v1")
    a("v_lshlrev_b32 v6, 2, v6")
    a(f"v_add_u32 v60, {PA}, v6")
    for w in range(4):
        a(f"ds_read_b32 v{64+w}, v60 offset:{w*PA_W+4096}")
    a(f"s_cmp_lg_u32 s{S_FS}, 1")
    a("s_cbranch_scc1 L_g_nofl")
    a("v_mov_b32 v7, 0")
    a(f"s_lshl_b32 s{T0}, s{S_MT}, 7")
    a(f"s_add_u32 s{T0}, s{T0}, {WS_FL}")
    a(f"buffer_store_dword v7, v7, s[{SRD_WS}:{SRD_WS+3}], s{T0} offen sc1")
    a.label("L_g_nofl")
    a("s_waitcnt lgkmcnt(0)")
    for w in range(1, 4):
        a(f"v_add_f32 v64, v64, v{64+w}")
    a(f"v_mul_f32 v64, {f32hex(-LOG2E)}, v64")
    a("v_exp_f32 v64, v64")
    a(f"s_lshl_b32 s{T0}, s77, 6")
    a("v_add_f32 v64, 1.0, v64")
    a("v_rcp_f32 v140, v64")
    a(f"s_add_u32 s{T0}, s{T0}, {WS_G}")
    a(f"buffer_store_dword v140, v6, s[{SRD_WS}:{SRD_WS+3}], s{T0} offen sc1")
    a("s_branch L_g_r1")
    a.label("L_g_tail")
    groups = kv_pieces()
    def issue_kv(pieces):
        n = (len(pieces) + 3) // 4
        for q in range(n):
            idx = [pieces[min(4 * q + j, len(pieces) - 1)] for j in range(4)]
            if idx == [idx[0] + k for k in range(4)]:
                a(f"s_add_u32 s{T0}, s45, {idx[0]*1024}")
            else:
                a(f"s_mov_b32 s{T0}, {idx[0]*1024}")
                for j in range(1, 4):
                    a(f"s_cmp_eq_u32 s44, {j}")
                    a(f"s_cselect_b32 s{T0}, {idx[j]*1024}, s{T0}")
            a(f"s_mov_b32 m0, s{T0}")
            a("s_nop 0")
            a(f"buffer_load_dwordx4 v2, s[{SRD_WS}:{SRD_WS+3}], s{T0} offen sc1 lds")
        return n
    kv_out = 0
    for s in range(11, 16):
        ring_after = max(0, 15 - (s + 1)) * ND
        if s < 15:
            a(f"s_waitcnt vmcnt({min(63, ring_after + kv_out)})")
        a("s_barrier")
        last_n = issue_kv(groups[s])
        kv_out += last_n
    a("v_cmp_gt_u32 vcc, 4, v1")
    a("v_lshlrev_b32 v3, 2, v1")
    a(f"v_add_u32 v3, {MISC}, v3")
    a("v_cndmask_b32 v4, 0, 2, vcc".replace("v_cndmask_b32 ", "v_cndmask_b32_e64 "))
    a("s_mov_b64 exec, 0xffff")
    a("ds_write_b32 v3, v4")
    a("s_mov_b64 exec, -1")
    a(f"s_waitcnt vmcnt({last_n}) lgkmcnt(0)")
    a("s_barrier")
    a(f"v_mov_b32 v3, {M_KV}")
    a("v_mov_b32 v4, 1")
    a("s_waitcnt vmcnt(0)")
    a("s_mov_b64 exec, 1")
    a("ds_add_u32 v3, v4")
    a("s_mov_b64 exec, -1")
    a("s_branch L_g2")

def gen_g2(a):
    ROLE[0] = "g"
    a.label("L_g2")
    stamp(a, 4)
    ACC = 64; AFR = 16; WF = 40
    WO = 128
    make_srd(a, 48, S_WD, 1792 * 512 * 2)
    make_srd(a, 52, S_WO, 512 * 512 * 2)
    make_srd(a, 56, S_OUT, 2048 * 512 * 2)
    a("v_lshrrev_b32 v3, 3, v1")
    a("v_bfe_u32 v4, v1, 4, 1")
    a("v_lshlrev_b32 v4, 2, v4")
    a("v_and_b32 v5, 7, v1")
    a("v_xor_b32 v5, v5, v4")
    a("v_lshlrev_b32 v5, 4, v5")
    a("v_lshl_add_u32 v5, v3, 10, v5")
    a(f"s_lshl_b32 s{T0}, s{S_CT}, 7")
    a(f"v_add_u32 v5, s{T0}, v5")
    a("v_add_u32 v8, 0x2000, v5")
    a("v_lshrrev_b32 v3, 4, v1")
    a("v_bfe_u32 v4, v1, 2, 2")
    a("v_lshrrev_b32 v6, 1, v3")
    a("v_lshl_add_u32 v6, v6, 3, v4")
    a("v_lshlrev_b32 v6, 7, v6")
    a("v_lshrrev_b32 v4, 1, v4")
    a("v_lshl_add_u32 v6, v4, 6, v6")
    a("v_and_b32 v3, 1, v3")
    a("v_lshl_add_u32 v6, v3, 5, v6")
    a("v_and_b32 v3, 1, v1")
    a("v_lshl_add_u32 v6, v3, 4, v6")
    a("v_bfe_u32 v3, v1, 1, 1")
    a("v_lshl_add_u32 v6, v3, 3, v6")
    a(f"s_mul_i32 s46, s44, {GS_W}")
    a(f"s_add_u32 s46, s46, {GS}")
    a("v_add_u32 v6, s46, v6")
    a(f"s_and_b32 s{T0}, s44, 1")
    a(f"s_lshl_b32 s{T0}, s{T0}, 6")
    a(f"v_xor_b32 v6, s{T0}, v6")
    a("v_xor_b32 v7, 64, v6")
    a(f"s_lshr_b32 s{T0}, s44, 1")
    a(f"s_mul_i32 s{T1}, s{T0}, {144*1024}")
    a(f"v_add_u32 v10, s{T1}, v2")
    a(f"s_sub_u32 s{T1}, {144*1024}, s{T1}")
    a(f"v_add_u32 v9, s{T1}, v2")
    a(f"s_lshl_b32 s{T0}, s{S_TP}, 8")
    a(f"s_add_u32 s{T0}, s{T0}, {WS_G}")
    a("v_and_b32 v3, 31, v1")
    a("v_lshlrev_b32 v3, 2, v3")
    a(f"s_lshr_b32 s{T1}, s44, 1")
    a(f"s_lshl_b32 s{T1}, s{T1}, 7")
    a(f"v_xor_b32 v3, s{T1}, v3")
    a("v_xor_b32 v4, 0x80, v3")
    a(f"buffer_load_dword v12, v3, s[{SRD_WS}:{SRD_WS+3}], s{T0} offen sc1")
    a(f"buffer_load_dword v13, v4, s[{SRD_WS}:{SRD_WS+3}], s{T0} offen sc1")
    a(f"s_mul_i32 s64, s44, {28*16384}")
    a(f"s_lshl_b32 s{T0}, s{S_TP}, 1")
    a(f"s_mul_i32 s65, s{T0}, 144")
    a("s_mov_b32 s72, s65")
    a(f"s_mul_i32 s{T1}, s44, 28")
    a(f"s_add_u32 s65, s65, s{T1}")
    a("s_lshl_b32 s65, s65, 10")
    a(f"s_add_u32 s65, s65, {WS_AF}")
    a(f"v_mov_b32 v3, {M_HD}")
    a("s_mov_b64 exec, 1")
    a("s_mov_b32 s71, 0")
    a.label("L_g_hd")
    a("ds_read_b32 v4, v3")
    a("s_add_u32 s71, s71, 1")
    a("s_waitcnt lgkmcnt(0)")
    a("v_cmp_gt_u32 vcc, 8, v4")
    a(f"s_cmp_ge_u32 s71, {SPIN*4}")
    a("s_cbranch_scc1 L_g_hd2")
    a("s_sleep 2")
    a("s_cbranch_vccnz L_g_hd")
    a.label("L_g_hd2")
    a("s_cmp_lg_u32 s44, 0")
    a("s_cbranch_scc1 L_g_nosig")
    a(f"s_lshl_b32 s{T0}, s{S_MT}, 7")
    a(f"s_add_u32 s{T0}, s{T0}, {WS_FL}")
    a(f"v_mov_b32 v3, s{T0}")
    a("v_mov_b32 v4, 1")
    a(f"global_atomic_add v3, v4, s[{S_WS}:{S_WS+1}] sc1")
    a.label("L_g_nosig")
    a("s_mov_b64 exec, -1")
    a("v_lshlrev_b32 v3, 7, v1")
    a("s_lshr_b32 s74, s2, 3")
    a(f"s_mul_i32 s75, s74, 57344")
    a(f"s_lshl_b32 s{T0}, s44, 14")
    a(f"s_add_u32 s75, s75, s{T0}")
    a("buffer_load_dword v14, v3, s[48:51], s75 offen")
    a("s_add_u32 s75, s75, 8192")
    a("s_cmp_eq_u32 s44, 3")
    a("s_cbranch_scc1 L_g_pfo")
    a("buffer_load_dword v15, v3, s[48:51], s75 offen")
    a("s_branch L_g_pfd")
    a.label("L_g_pfo")
    a("s_lshl_b32 s75, s74, 14")
    a("buffer_load_dword v15, v3, s[52:55], s75 offen")
    a("s_add_u32 s75, s75, 8192")
    a("buffer_load_dword v14, v3, s[52:55], s75 offen")
    a.label("L_g_pfd")
    a(f"s_lshr_b32 s{T0}, s{S_TP}, 1")
    a(f"s_lshl_b32 s{T0}, s{T0}, 7")
    a(f"s_add_u32 s73, s{T0}, {WS_FL}")
    a("v_mov_b32 v3, s73")
    poll(a, "L_h", S_WS, 3, 4, 16, sleep=16)
    a(f"v_mov_b32 v3, {M_CD}")
    a("s_mov_b32 s71, 0")
    a.label("L_g_qr")
    a("ds_read_b32 v4, v3")
    a("s_add_u32 s71, s71, 1")
    a("s_waitcnt lgkmcnt(0)")
    a("v_cmp_gt_u32 vcc, 8, v4")
    a(f"s_cmp_ge_u32 s71, {SPIN*4}")
    a("s_cbranch_scc1 L_g_qr2")
    a("s_nop 1")
    a("s_cbranch_vccnz L_g_qr")
    a.label("L_g_qr2")
    stamp(a, 5)
    def issue(sl, srd):
        a(f"s_add_u32 m0, s46, {sl*2048}")
        a("s_nop 0")
        a(f"buffer_load_dwordx4 v5, s[{srd}:{srd+3}], s64 offen lds")
        a(f"s_add_u32 m0, s46, {sl*2048+1024}")
        a("s_nop 0")
        a(f"buffer_load_dwordx4 v8, s[{srd}:{srd+3}], s64 offen lds")
        a("s_add_u32 s64, s64, 16384")
    def issue_act(sl):
        r = AFR + sl * 8
        a(f"buffer_load_dwordx4 v[{r}:{r+3}], v10, s[{SRD_WS}:{SRD_WS+3}], s65 offen sc1")
        a(f"buffer_load_dwordx4 v[{r+4}:{r+7}], v9, s[{SRD_WS}:{SRD_WS+3}], s65 offen sc1")
        a("s_add_u32 s65, s65, 1024")
    def trreads(sl, dst):
        a(f"ds_read_b64_tr_b16 v[{dst}:{dst+1}], v6 offset:{sl*2048}")
        a(f"ds_read_b64_tr_b16 v[{dst+2}:{dst+3}], v6 offset:{sl*2048+512}")
        a(f"ds_read_b64_tr_b16 v[{dst+4}:{dst+5}], v7 offset:{sl*2048}")
        a(f"ds_read_b64_tr_b16 v[{dst+6}:{dst+7}], v7 offset:{sl*2048+512}")
    def mf4(w, r):
        for t in range(2):
            for c in range(2):
                d = ACC + (t * 2 + c) * 16
                a(f"v_mfma_f32_32x32x16_bf16 v[{d}:{d+15}], v[{w+4*c}:{w+4*c+3}], v[{r+4*t}:{r+4*t+3}], v[{d}:{d+15}]")
    for sl in range(3):
        issue(sl, 48); issue_act(sl)
    WF2 = (WF, 48)
    def dstep(sl, wcur, wnext, issue_next, rd_next, vm, first=False):
        r = AFR + sl * 8
        def mf(t, c):
            if "nog" in FLAGS: return
            d = ACC + (t * 2 + c) * 16
            cc = "0" if first else f"v[{d}:{d+15}]"
            a(f"v_mfma_f32_32x32x16_bf16 v[{d}:{d+15}], v[{wcur+4*c}:{wcur+4*c+3}], v[{r+4*t}:{r+4*t+3}], {cc}")
        a("s_waitcnt lgkmcnt(0)")
        mf(0, 0)
        if issue_next:
            a(f"s_add_u32 m0, s46, {sl*2048}")
            a("s_nop 0")
            a(f"buffer_load_dwordx4 v5, s[48:51], s64 offen lds")
            a(f"s_add_u32 m0, s46, {sl*2048+1024}")
            a("s_nop 0")
            a(f"buffer_load_dwordx4 v8, s[48:51], s64 offen lds")
            a("s_add_u32 s64, s64, 16384")
        mf(0, 1)
        if issue_next:
            a(f"buffer_load_dwordx4 v[{r}:{r+3}], v10, s[{SRD_WS}:{SRD_WS+3}], s65 offen sc1")
        if rd_next:
            a(f"s_waitcnt vmcnt({vm})")
        mf(1, 0)
        if rd_next:
            trreads((sl + 1) % 3, wnext)
        mf(1, 1)
        if issue_next:
            a(f"buffer_load_dwordx4 v[{r+4}:{r+7}], v9, s[{SRD_WS}:{SRD_WS+3}], s65 offen sc1")
            a("s_add_u32 s65, s65, 1024")
    a("s_waitcnt vmcnt(8)")
    trreads(0, WF2[0])
    dstep(0, WF2[0], WF2[1], True, True, 7, first=True)
    a("s_mov_b32 s71, 0")
    a.label("L_d_loop")
    for st in range(1, 7):
        dstep(st % 3, WF2[st % 2], WF2[(st + 1) % 2], True, True, 7)
    a("s_add_u32 s71, s71, 1")
    a("s_cmp_lt_u32 s71, 4")
    a("s_cbranch_scc1 L_d_loop")
    dstep(1, WF2[1], WF2[0], False, True, 4)
    dstep(2, WF2[0], WF2[1], False, True, 0)
    dstep(0, WF2[1], WF2[0], False, False, 0)
    stamp(a, 6)
    a(f"s_mul_i32 s64, s44, {8*16384}")
    WOR = [128, 136, 144, 152, 16, 24, 32, 40]
    for sl in range(3):
        issue(sl, 52)
    a("v_sub_f32 v12, 1.0, v12")
    a("v_sub_f32 v13, 1.0, v13")
    a("s_nop 7")
    for t in range(2):
        for i in range(0, 32, 2):
            a(f"v_pk_mul_f32 v[{ACC+t*32+i}:{ACC+t*32+i+1}], v[{ACC+t*32+i}:{ACC+t*32+i+1}], v[12:13] op_sel:[0,{t}] op_sel_hi:[1,{t}]")
    for k in range(8):
        sl = k % 3
        left = min(8, k + 3) - k - 1
        a(f"s_waitcnt vmcnt({2*left})")
        trreads(sl, WOR[k])
        a("s_waitcnt lgkmcnt(0)")
        if k + 3 < 8:
            issue(sl, 52)
    a(f"v_mov_b32 v3, {M_GD}")
    a("v_mov_b32 v4, 1")
    a("s_mov_b64 exec, 1")
    a("ds_add_u32 v3, v4")
    a(f"s_lshl_b32 s{T1}, s44, 3")
    a(f"s_add_u32 s65, s72, s{T1}")
    a("s_add_u32 s65, s65, 112")
    a("s_lshl_b32 s65, s65, 10")
    a(f"s_add_u32 s65, s65, {WS_AF}")
    a("s_add_u32 s66, s65, 4096")
    a("s_mov_b64 exec, -1")
    a("v_lshrrev_b32 v3, 1, v1")
    a("v_lshlrev_b32 v3, 11, v3")
    a("v_and_b32 v4, 1, v1")
    a(f"v_mul_u32_u24 v4, {144*1024}, v4")
    a("v_add_u32 v3, v3, v4")
    a("v_add_u32 v3, 2044, v3")
    a("s_lshl_b32 s72, s44, 14")
    a("v_add_u32 v161, s72, v2")
    a(f"s_lshl_b32 s{T0}, s44, 2")
    a(f"s_add_u32 s{T0}, s{T0}, {M_FIN}")
    a(f"v_mov_b32 v5, s{T0}")
    a(f"v_mov_b32 v8, {M_KF}")
    a("s_mov_b32 s71, 0")
    a("s_mov_b64 exec, 0xff")
    a.label("L_g_cd")
    a("ds_read_b32 v4, v5")
    a("s_add_u32 s71, s71, 1")
    a("s_waitcnt lgkmcnt(0)")
    a(f"v_cmp_gt_u32 vcc, {FGATE}, v4")
    a(f"s_cmp_ge_u32 s71, {SPIN}")
    a("s_cbranch_scc1 L_g_cd2")
    a("s_sleep 4")
    a("s_cbranch_vccnz L_g_cd")
    a.label("L_g_cd2")
    stamp(a, 7)
    a("s_mov_b32 s71, 0")
    a.label("L_o_probe")
    a(f"buffer_load_dword v4, v3, s[{SRD_WS}:{SRD_WS+3}], s65 offen sc1")
    a("s_add_u32 s71, s71, 1")
    a("s_waitcnt vmcnt(0)")
    a("v_cmp_eq_u32 vcc, -1, v4")
    a(f"s_cmp_ge_u32 s71, {SPIN}")
    a("s_cbranch_scc1 L_o_kf")
    a("s_nop 0")
    a("s_cbranch_vccnz L_o_probe")
    a.label("L_o_kf")
    a("ds_read_b32 v4, v8")
    a("s_add_u32 s71, s71, 1")
    a("s_waitcnt lgkmcnt(0)")
    a("v_cmp_gt_u32 vcc, 8, v4")
    a(f"s_cmp_ge_u32 s71, {SPIN*8}")
    a("s_cbranch_scc1 L_o_go")
    a("s_sleep 1")
    a("s_cbranch_vccnz L_o_kf")
    a.label("L_o_go")
    a("s_mov_b64 exec, -1")
    def dma_o(k):
        so = 65 if k < 4 else 66
        a(f"s_add_u32 m0, s72, {2*k*1024 - (k%4)*1024}")
        a("s_nop 0")
        a(f"buffer_load_dwordx4 v10, s[{SRD_WS}:{SRD_WS+3}], s{so} offen offset:{(k%4)*1024} sc1 lds")
        a(f"s_add_u32 m0, s72, {(2*k+1)*1024 - (k%4)*1024}")
        a("s_nop 0")
        a(f"buffer_load_dwordx4 v9, s[{SRD_WS}:{SRD_WS+3}], s{so} offen offset:{(k%4)*1024} sc1 lds")
    for k in range(8): dma_o(k)
    AR = [48, 56]
    def rd_o(k):
        r = AR[k % 2]
        a(f"ds_read_b128 v[{r}:{r+3}], v161 offset:{2*k*1024}")
        a(f"ds_read_b128 v[{r+4}:{r+7}], v161 offset:{(2*k+1)*1024}")
    a("s_waitcnt vmcnt(14)")
    rd_o(0)
    for k in range(8):
        r = AR[k % 2]
        if k < 7:
            a(f"s_waitcnt vmcnt({2*(6-k)})")
            rd_o(k + 1)
            a("s_waitcnt lgkmcnt(2)")
        else:
            a("s_waitcnt lgkmcnt(0)")
        a.label(f"L_o_chk{k}")
        a(f"v_max3_u32 v3, v{r}, v{r+1}, v{r+2}")
        a(f"v_max3_u32 v4, v{r+3}, v{r+4}, v{r+5}")
        a(f"v_max3_u32 v3, v3, v{r+6}, v{r+7}")
        a("v_max_u32 v3, v3, v4")
        a("v_cmp_eq_u32 vcc, -1, v3")
        a("s_nop 1")
        a(f"s_cbranch_vccnz L_o_bad{k}")
        a.label(f"L_o_ok{k}")
        mf4(WOR[k], r)
    a("s_branch L_o_done")
    for k in range(8):
        r = AR[k % 2]
        so = 65 if k < 4 else 66
        a.label(f"L_o_bad{k}")
        a("s_add_u32 s71, s71, 1")
        a(f"s_cmp_ge_u32 s71, {SPIN}")
        a(f"s_cbranch_scc1 L_o_ok{k}")
        a(f"buffer_load_dwordx4 v[{r}:{r+3}], v10, s[{SRD_WS}:{SRD_WS+3}], s{so} offen offset:{(k%4)*1024} sc1")
        a(f"buffer_load_dwordx4 v[{r+4}:{r+7}], v9, s[{SRD_WS}:{SRD_WS+3}], s{so} offen offset:{(k%4)*1024} sc1")
        a("s_waitcnt vmcnt(0)")
        a(f"s_branch L_o_chk{k}")
    a.label("L_o_done")
    stamp(a, 8)
    for i in (1, 2, 3):
        a(f"s_xor_b32 s65, s44, {i}")
        a("s_mul_i32 s65, s65, 12288")
        a(f"s_add_u32 s65, s65, {0x10000 + (i-1)*4096}")
        a(f"v_add_u32 v{2+i}, s65, v2")
    a("s_mul_i32 s65, s44, 12288")
    a("s_add_u32 s65, s65, 0x10000")
    a("v_add_u32 v8, s65, v2")
    a("s_nop 3")
    for i in (1, 2, 3):
        for q in range(4):
            a(f"ds_write_b128 v{2+i}, v[{ACC+16*i+4*q}:{ACC+16*i+4*q+3}] offset:{q*1024}")
    a("s_waitcnt lgkmcnt(0)")
    a("s_barrier")
    for i in (1, 2, 3):
        for q in range(4):
            a(f"ds_read_b128 v[{ACC+16*i+4*q}:{ACC+16*i+4*q+3}], v8 offset:{(i-1)*4096+q*1024}")
    a("s_lshr_b32 s65, s44, 1")
    a("s_lshl_b32 s65, s65, 5")
    a(f"s_lshl_b32 s{T0}, s{S_TP}, 6")
    a(f"s_add_u32 s65, s65, s{T0}")
    a("s_lshl_b32 s65, s65, 10")
    a(f"s_lshl_b32 s{T0}, s{S_CT}, 7")
    a(f"s_add_u32 s65, s65, s{T0}")
    a(f"s_and_b32 s{T0}, s44, 1")
    a(f"s_lshl_b32 s{T0}, s{T0}, 6")
    a(f"s_add_u32 s65, s65, s{T0}")
    a("v_and_b32 v3, 31, v1")
    a("v_lshlrev_b32 v3, 10, v3")
    a("v_lshrrev_b32 v4, 5, v1")
    a("v_lshl_add_u32 v3, v4, 4, v3")
    a("s_waitcnt lgkmcnt(0)")
    for i in range(0, 16, 2):
        a(f"v_pk_add_f32 v[{ACC+16+i}:{ACC+17+i}], v[{ACC+16+i}:{ACC+17+i}], v[{ACC+32+i}:{ACC+33+i}]")
        a(f"v_pk_add_f32 v[{ACC+i}:{ACC+1+i}], v[{ACC+i}:{ACC+1+i}], v[{ACC+48+i}:{ACC+49+i}]")
    for i in range(0, 16, 2):
        a(f"v_pk_add_f32 v[{ACC+i}:{ACC+1+i}], v[{ACC+i}:{ACC+1+i}], v[{ACC+16+i}:{ACC+17+i}]")
    for j in range(8):
        a(f"v_cvt_pk_bf16_f32 v{ACC+j}, v{ACC+2*j}, v{ACC+2*j+1}")
    om = " sc1" if "outsc1" in FLAGS else (" nt" if "outnt" in FLAGS else "")
    a(f"buffer_store_dwordx4 v[{ACC}:{ACC+3}], v3, s[56:59], s65 offen{om}")
    a(f"buffer_store_dwordx4 v[{ACC+4}:{ACC+7}], v3, s[56:59], s65 offen offset:32{om}")
    stamp(a, 9)

def main(out):
    a = Asm()
    gen(a)
    txt = HEADER
    txt += f"; @launch grid=(256,1,1) block=(768,1,1) lds={LDS}\n"
    txt += '.amdgcn_target "amdgcn-amd-amdhsa--gfx950"\n.text\n' + a.text()
    txt += '.section .rodata,"a"\n'
    txt += kernel_desc(KN, 168)
    open(out, "w").write(txt)

if __name__ == "__main__":
    if "stamps" in sys.argv: STAMPS = True
    FLAGS.update(sys.argv[2:])
    if "pre3" in FLAGS: NPRE = 3
    for f in list(FLAGS):
        if f.startswith("ninit="): NINIT = int(f[6:])
        if f.startswith("pstep="): PSTEP = int(f[6:])
        if f.startswith("na="): NA = int(f[3:])
        if f.startswith("fgate="): FGATE = int(f[6:])
        if f.startswith("pst0="): PST0 = int(f[5:])
    main(sys.argv[1] if len(sys.argv) > 1 else f"cdna_kernels/{NAME}.s")
```

```python
import sys, math
from common import *

WS_KF = 0
WS_VF = 65536
WS_G = 131072
WS_FL = 0x30000
WS_QF = 0x40000
WS_AF = 0x400000
WS_ST = 0x2000000
WS_BYTES = 0x10000000
LOG2E = 1.4426950408889634
QSCALE = 0.25 * LOG2E
STAMPS = False
FLAGS = set()
KN = NAME + "_kernel"

SLOT = 26624; NS = 5; NPRE = 4; ND = 7
O_X = 18432; O_Q = 16384
B_UP = 6176
WS_QH = 0x1000000
PA = 4 * SLOT; PA_W = 9472
L_K = 0; L_V = 65536
GS = 131072; GS_W = 6144
QX = 131072
MISC = 162304
OX = 131072; OXS = 4608
M_CNT, M_FIN, M_RDY, M_GD, M_CD, M_HD, M_KV = MISC, MISC + 16, MISC + 32, MISC + 48, MISC + 52, MISC + 56, MISC + 60
M_KF = MISC + 72
CROT = 7
LDS = 163840
SPIN = 200000
GATE = 18
NINIT = 4
PSTEP = 2
NA = 7
FGATE = 1
PST0 = 1

S_X, S_WQ, S_WK, S_WV, S_WO = 4, 6, 8, 10, 12
S_WG, S_WU, S_WD, S_GW = 16, 18, 20, 22
S_OUT, S_DBG, S_WS = 24, 26, 28
S_W, S_MT, S_FS, S_TP, S_CT = 30, 31, 32, 33, 34
T0, T1, T2 = 14, 15, 35
SRD_X, SRD_WS = 36, 40

DBGMAP_C = {2: 3, 3: 4, 6: 5, 5: 6}
DBGMAP_G = {1: 8, 2: 9, 5: 10, 6: 11, 7: 12, 8: 13}
ROLE = ["c"]
def dstamp(a, idx):
    u = a.new_label("ds")
    if idx == 0 or idx == 9:
        a("s_memrealtime s[92:93]")
        a("s_waitcnt lgkmcnt(0)")
        if idx == 0: a("s_not_b32 s92, s92")
        a(f"s_cmp_lg_u32 s{S_W}, 8")
        a(f"s_cbranch_scc1 {u}")
        a("v_mov_b32 v164, s92")
        a(f"v_mov_b32 v165, {4 if idx == 0 else 8}")
        a("s_mov_b64 exec, 1")
        a(f"global_atomic_umax v165, v164, s[{S_DBG}:{S_DBG+1}] sc1")
        a("s_mov_b64 exec, -1")
        a.label(u)
        return
    m = DBGMAP_C if ROLE[0] == "c" else DBGMAP_G
    if idx not in m: return
    a(f"s_lshl_b32 s94, s2, 4")
    a(f"s_add_u32 s94, s94, s{S_W}")
    a(f"s_cmp_lg_u32 s94, {0 if ROLE[0] == 'c' else 8}")
    a(f"s_cbranch_scc1 {u}")
    a("s_memrealtime s[92:93]")
    a("s_waitcnt lgkmcnt(0)")
    a("v_mov_b32 v164, s92")
    a(f"v_mov_b32 v165, {4*m[idx]}")
    a(f"global_store_dword v165, v164, s[{S_DBG}:{S_DBG+1}]")
    a.label(u)

def stamp(a, idx, sreg=None):
    if "dstamp" in FLAGS: return dstamp(a, idx)
    if not STAMPS: return
    a("s_memtime s[90:91]")
    a("s_memrealtime s[92:93]")
    a(f"s_lshl_b32 s94, s2, 4")
    a(f"s_add_u32 s94, s94, s{S_W}")
    a(f"s_lshl_b32 s94, s94, 8")
    a(f"s_add_u32 s94, s94, {WS_ST + idx*8}")
    if sreg is not None:
        a(f"s_lshl_b32 s95, s{sreg}, 3")
        a("s_add_u32 s94, s94, s95")
    a("s_waitcnt lgkmcnt(0)")
    a("v_mov_b32 v164, s90")
    a("v_mov_b32 v165, s92")
    a("v_mov_b32 v166, 0")
    a(f"buffer_store_dwordx2 v[164:165], v166, s[{SRD_WS}:{SRD_WS+3}], s94 offen")

def srd_hi(a, d, nbytes):
    a(f"s_mov_b32 s{d+2}, {nbytes}")
    a(f"s_mov_b32 s{d+3}, 0x00020000")
def srd_lo(a, d, p):
    a(f"s_mov_b64 s[{d}:{d+1}], s[{p}:{p+1}]")

def tr_lane(a, v_mat, v_row, v_colb, t):
    a(f"v_lshrrev_b32 v{v_mat}, 4, v1")
    a(f"v_bfe_u32 v{v_row}, v1, 2, 2")
    a(f"v_and_b32 v{t}, 1, v1")
    a(f"v_lshlrev_b32 v{v_colb}, 4, v{t}")
    a(f"v_bfe_u32 v{t}, v1, 1, 1")
    a(f"v_lshl_or_b32 v{v_colb}, v{t}, 3, v{v_colb}")
    a(f"v_lshrrev_b32 v{t}, 1, v{v_mat}")
    a(f"v_lshl_add_u32 v{v_row}, v{t}, 3, v{v_row}")
    a(f"v_and_b32 v{v_mat}, 1, v{v_mat}")

def poll(a, nm, base_pair, voff_reg, vtmp, target, nwords=1, sleep=4):
    a(f"s_mov_b64 exec, {(1 << nwords) - 1}")
    a(f"s_mov_b32 s{T2}, 0")
    a.label(f"{nm}_poll")
    a(f"global_load_dword v{vtmp}, v{voff_reg}, s[{base_pair}:{base_pair+1}] sc1")
    a(f"s_add_u32 s{T2}, s{T2}, 1")
    a("s_waitcnt vmcnt(0)")
    a(f"v_cmp_gt_u32 vcc, {target}, v{vtmp}")
    a(f"s_cmp_ge_u32 s{T2}, {SPIN}")
    a(f"s_cbranch_scc1 {nm}_pdone")
    a("s_nop 1")
    a(f"s_cbranch_vccz {nm}_pdone")
    a(f"s_sleep {sleep}")
    a(f"s_branch {nm}_poll")
    a.label(f"{nm}_pdone")
    a("s_mov_b64 exec, -1")

def kv_pieces():
    last = {s % NS: s for s in range(16)}
    groups = {}
    for i in range(128):
        lo, hi = i * 1024, i * 1024 + 1023
        need = 11
        for sl in range(NS):
            if lo < (sl + 1) * SLOT and hi >= sl * SLOT:
                need = max(need, last[sl])
        groups.setdefault(need, []).append(i)
    return groups

def gen(a):
    name = KN
    kernel_begin(a, name)
    a("s_cmp_ge_u32 s2, 256")
    a(f"s_cbranch_scc1 L_exit")
    a("s_load_dwordx8 s[4:11], s[0:1], 0")
    a("s_load_dwordx2 s[12:13], s[0:1], 32")
    a("s_load_dwordx8 s[16:23], s[0:1], 48")
    a("s_load_dwordx4 s[24:27], s[0:1], 80")
    a("s_load_dwordx2 s[28:29], s[0:1], 96")
    a("s_getpc_b64 s[80:81]")
    a.label("L_pc_ref")
    a("s_mov_b32 s82, L_code_end-L_pc_ref")
    a("s_mov_b32 s83, 0x00020000")
    a("v_lshlrev_b32 v3, 7, v0")
    if "nocpf" not in FLAGS:
        a("buffer_load_dword v163, v3, s[80:83], 0 offen")
    a("v_lshrrev_b32 v2, 6, v0")
    a("v_and_b32 v1, 63, v0")
    a(f"v_readfirstlane_b32 s{S_W}, v2")
    a(f"s_and_b32 s{T0}, s2, 7")
    a(f"s_lshr_b32 s{T1}, s2, 3")
    a(f"s_and_b32 s{S_MT}, s{T0}, 1")
    a(f"s_lshl_b32 s{S_MT}, s{S_MT}, 3")
    a(f"s_and_b32 s{S_FS}, s{T1}, 7")
    a(f"s_add_u32 s{S_MT}, s{S_MT}, s{S_FS}")
    a(f"s_lshr_b32 s{S_FS}, s{T0}, 1")
    a(f"s_lshl_b32 s{S_FS}, s{S_FS}, 2")
    a(f"s_lshr_b32 s{T2}, s{T1}, 3")
    a(f"s_add_u32 s{S_FS}, s{S_FS}, s{T2}")
    a(f"s_lshl_b32 s{S_TP}, s{T0}, 2")
    a(f"s_and_b32 s{T2}, s{T1}, 3")
    a(f"s_add_u32 s{S_TP}, s{S_TP}, s{T2}")
    a(f"s_lshr_b32 s{S_CT}, s{T1}, 2")
    a(f"s_andn2_b32 s3, 1, s{S_FS}")
    a(f"s_and_b32 s{T2}, s{S_FS}, 3")
    a(f"s_lshl_b32 s{T2}, s{T2}, 3")
    a(f"s_lshr_b32 s98, 0x16081000, s{T2}")
    a("s_and_b32 s98, s98, 0xff")
    a(f"s_lshr_b32 s{T2}, s{S_FS}, 2")
    a(f"s_mul_i32 s{T2}, s{T2}, 28")
    a(f"s_add_u32 s98, s98, s{T2}")
    a("v_lshlrev_b32 v2, 4, v1")
    a(f"v_mov_b32 v4, {MISC+64}")
    a("v_mov_b32 v6, 0")
    a("v_mov_b32 v7, 0")
    a("ds_write_b64 v4, v[6:7]")
    a("ds_write_b32 v4, v6 offset:8")
    srd_hi(a, SRD_X, 2048 * 512 * 2)
    srd_hi(a, SRD_WS, WS_BYTES)
    a(f"s_cmp_lt_u32 s{S_W}, 8")
    a("s_cbranch_scc1 L_role_c")
    gen_g1(a)
    gen_c(a)
    gen_g2(a)
    a.label("L_exit")
    a("s_endpgm")
    a.label("L_code_end")

def gen_c(a):
    ROLE[0] = "c"
    a.label("L_role_c")
    a("s_waitcnt lgkmcnt(0)")
    srd_lo(a, SRD_X, S_X)
    srd_lo(a, SRD_WS, S_WS)
    stamp(a, 0)
    a(f"v_mov_b32 v158, s{S_X}")
    a(f"v_mov_b32 v159, s{S_X+1}")
    a("v_mov_b32 v157, 0")
    a(f"s_add_u32 s47, s{S_W}, 1")
    a("s_cmp_eq_u32 s3, 0")
    a("s_cbranch_scc1 L_c_pfB")
    a(f"s_cmp_ge_u32 s{S_W}, {NA}")
    a("s_cbranch_scc1 L_c_latepf")
    a("s_branch L_c_pfgo")
    a.label("L_c_pfB")
    a(f"s_mov_b32 s47, {min(NA+1, 7)}")
    a(f"s_cmp_lg_u32 s{S_W}, 7")
    a("s_cbranch_scc1 L_c_latepf")
    a.label("L_c_pfgo")
    a("s_lshr_b32 s44, s2, 3")
    a("s_lshr_b32 s45, s2, 7")
    a("s_and_b32 s44, s44, 7")
    a("s_lshl_b32 s45, s45, 3")
    a("s_add_u32 s44, s44, s45")
    a("s_and_b32 s45, s2, 7")
    a("s_lshr_b32 s46, s45, 1")
    a("s_lshl_b32 s47, s47, 6")
    a("s_add_u32 s47, s47, s44")
    a("v_lshrrev_b32 v3, 4, v1")
    a("v_lshl_add_u32 v3, v3, 4, s47")
    a("v_and_b32 v4, 15, v1")
    a("s_mul_i32 s48, s46, 896")
    a("v_mul_u32_u24 v5, 3584, v3")
    a("v_lshl_add_u32 v5, v4, 7, v5")
    a("v_add_u32 v5, s48, v5")
    a(f"v_mov_b32 v6, s{S_WG}")
    a(f"v_mov_b32 v7, s{S_WG+1}")
    a("v_cmp_lt_u32 vcc, 6, v4")
    a(f"v_mov_b32 v8, s{S_WU}")
    a(f"v_mov_b32 v9, s{S_WU+1}")
    a("v_subrev_u32 v10, 896, v5")
    a("v_cndmask_b32 v6, v6, v8, vcc")
    a("v_cndmask_b32 v7, v7, v9, vcc")
    a("v_cndmask_b32 v5, v5, v10, vcc")
    a("v_cmp_lt_u32 vcc, 13, v4")
    a(f"v_mov_b32 v8, s{S_WQ}")
    a(f"v_mov_b32 v9, s{S_WQ+1}")
    a("v_lshlrev_b32 v10, 10, v3")
    a("v_and_b32 v11, 1, v1")
    a("v_lshl_add_u32 v10, v11, 7, v10")
    a("s_lshl_b32 s48, s46, 8")
    a("v_add_u32 v10, s48, v10")
    a("v_cndmask_b32 v6, v6, v8, vcc")
    a("v_cndmask_b32 v7, v7, v9, vcc")
    a("v_cndmask_b32 v5, v5, v10, vcc")
    a(f"v_mov_b32 v157, {64*3584}")
    a(f"v_mov_b32 v10, {64*1024}")
    a("v_cndmask_b32 v157, v157, v10, vcc")
    a("v_add_co_u32 v158, vcc, v6, v5")
    a("s_nop 1")
    a("v_addc_co_u32 v159, vcc, 0, v7, vcc")
    a("s_cmp_eq_u32 s3, 0")
    a("s_cbranch_scc1 L_c_latepf")
    a("s_barrier")
    a("global_load_dword v160, v[158:159], off")
    a("s_branch L_c_pfend")
    if "pfx" in FLAGS:
        a("s_and_b32 s48, s45, 1")
        a("s_lshl_b32 s48, s48, 4")
        a("s_add_u32 s48, s48, s44")
        a("s_lshl_b32 s48, s48, 16")
        a(f"s_lshl_b32 s49, s{S_W}, 7")
        a("s_add_u32 s48, s48, s49")
        a("v_lshlrev_b32 v10, 10, v1")
        a(f"buffer_load_dword v162, v10, s[{SRD_X}:{SRD_X+3}], s48 offen")
    a.label("L_c_latepf")
    a("s_barrier")
    a.label("L_c_pfend")
    a(f"s_and_b32 s70, s{S_W}, 3")
    a(f"s_lshr_b32 s71, s{S_W}, 2")
    a(f"s_lshl_b32 s72, s{S_MT}, 2")
    a("s_add_u32 s72, s72, s70")
    a("s_mul_i32 s78, s72, 144")
    a(f"s_lshl_b32 s73, s{S_FS}, 1")
    a("s_add_u32 s78, s78, s73")
    a("s_add_u32 s78, s78, 112")
    a("s_lshl_b32 s78, s78, 10")
    a(f"s_add_u32 s78, s78, {WS_AF}")
    a("s_lshl_b32 s73, s71, 10")
    a("s_add_u32 s73, s73, s78")
    for i in range(4):
        a(f"v_mov_b32 v{8+i}, -1")
    a(f"buffer_store_dwordx4 v[8:11], v2, s[{SRD_WS}:{SRD_WS+3}], s73 offen sc1")
    tr_lane(a, 3, 4, 5, 6)
    a(f"s_and_b32 s60, s{S_W}, 1")
    a(f"s_lshr_b32 s61, s{S_W}, 1")
    a("v_and_b32 v6, 31, v1")
    a("v_bfe_u32 v60, v1, 2, 2")
    a("v_lshrrev_b32 v61, 5, v1")
    a("v_xor_b32 v61, v61, v60")
    a("v_xor_b32 v60, 2, v61")
    a("v_lshlrev_b32 v6, 6, v6")
    a(f"s_lshl_b32 s{T0}, s60, 12")
    a(f"s_add_u32 s{T0}, s{T0}, {O_X}")
    a(f"v_add_u32 v6, s{T0}, v6")
    a("v_lshl_add_u32 v53, v61, 4, v6")
    a("v_lshl_add_u32 v54, v60, 4, v6")
    a("s_lshl_b32 s62, s61, 1")
    a("v_lshlrev_b32 v48, 6, v4")
    a("v_lshl_add_u32 v48, v3, 5, v48")
    a("v_add_u32 v48, v48, v5")
    a(f"v_add_u32 v48, {O_Q}, v48")
    a("s_cmp_eq_u32 s3, 0")
    a("s_cbranch_scc1 L_c_tB")
    a("v_and_b32 v6, 3, v4")
    a("v_lshl_or_b32 v6, v6, 1, v3")
    a("v_xor_b32 v6, s62, v6")
    a("v_lshlrev_b32 v60, 13, v3")
    a("v_lshl_add_u32 v60, v4, 8, v60")
    a("v_add_u32 v60, v60, v5")
    a("v_lshl_add_u32 v55, v6, 5, v60")
    a("v_xor_b32 v59, 32, v55")
    a(f"s_mov_b32 s{T0}, 1024")
    a("s_branch L_c_u1done")
    a.label("L_c_tB")
    a(f"v_mul_u32_u24 v6, {B_UP}, v3")
    a("v_mul_u32_u24 v60, 192, v4")
    a("v_add3_u32 v6, v6, v60, v5")
    a(f"s_lshl_b32 s{T0}, s61, 6")
    a(f"v_add_u32 v55, s{T0}, v6")
    a("v_add_u32 v59, 32, v55")
    a(f"s_mov_b32 s{T0}, 768")
    a.label("L_c_u1done")
    a(f"s_lshl_b32 s{T1}, s{T0}, 2")
    for b in (55, 59):
        a(f"v_add_u32 v{b+1}, s{T0}, v{b}")
        a(f"v_add_u32 v{b+2}, s{T1}, v{b}")
        a(f"v_add_u32 v{b+3}, s{T0}, v{b+2}")
    a("s_mov_b32 s99, 0")
    a("s_cmp_eq_u32 s3, 0")
    a("s_cbranch_scc1 L_c_vB")
    a("s_add_u32 s65, s61, 1")
    a(f"s_cmp_lt_u32 s{S_W}, 4")
    a("s_cselect_b32 s99, s65, 0")
    a("s_branch L_c_vdone")
    a.label("L_c_vB")
    a("s_cmp_eq_u32 s61, 3")
    a("s_cselect_b32 s99, 3, 0")
    a.label("L_c_vdone")
    a(f"s_cmp_eq_u32 s{S_W}, 0")
    a("s_cselect_b32 s69, 8, 99")
    a(f"s_cmp_eq_u32 s{S_W}, 7")
    a(f"s_cselect_b32 s69, {PST0 if NA < 7 else 99}, s69")
    a(f"s_mov_b32 s68, {7-NA}")
    XA = (8, 12); WA = (16, 20)
    XB = (28, 32); WB = (36, 40)
    def rd_list(X, W, c_x, w0a, w0b, w1a, w1b):
        return [f"ds_read_b128 v[{X[0]}:{X[0]+3}], v{c_x}",
                f"ds_read_b64_tr_b16 v[{W[0]}:{W[0]+1}], v{w0a}",
                f"ds_read_b64_tr_b16 v[{W[0]+2}:{W[0]+3}], v{w0b}",
                f"ds_read_b64_tr_b16 v[{W[1]}:{W[1]+1}], v{w1a}",
                f"ds_read_b64_tr_b16 v[{W[1]+2}:{W[1]+3}], v{w1b}",
                f"ds_read_b128 v[{X[1]}:{X[1]+3}], v{c_x} offset:2048"]
    QA_, QB_ = 24, 44
    QACC = 138
    def qrd(dst, c_q, ks):
        return [f"ds_read_b64_tr_b16 v[{dst}:{dst+1}], v{c_q} offset:{16*ks*64}",
                f"ds_read_b64_tr_b16 v[{dst+2}:{dst+3}], v{c_q} offset:{(16*ks+4)*64}"]
    def reads(var, X, W, Q, regs, c_q, ks):
        r = rd_list(X, W, *regs)
        if var in (1, 2): r = r + qrd(Q, c_q, ks)
        if var == 3: r = [r[0]] + qrd(Q, c_q, ks) + [r[5]]
        return r
    def mf_rd(var, X, W, Q, rds, first=False, extra=()):
        rds = list(rds); extra = list(extra)
        ops = []
        if var == 3:
            ops = [(64 + t * 32, Q, X[t]) for t in range(2)]
        else:
            ops = [(64 + (t * 2 + u) * 16, W[u], X[t]) for t in range(2) for u in range(2)]
            if var: ops.insert(2, (QACC, Q, X[var - 1]))
        for k, (d, w_, x_) in enumerate(ops):
            c = "0" if first else f"v[{d}:{d+15}]"
            a(f"v_mfma_f32_32x32x16_bf16 v[{d}:{d+15}], v[{w_}:{w_+3}], v[{x_}:{x_+3}], {c}")
            for _ in range(4 if var == 3 else 3):
                if rds: a(rds.pop(0))
            if k == len(ops) - 2:
                for e in extra: a(e)
    BK = [f"s_add_u32 s63, s63, {SLOT}", f"s_cmp_eq_u32 s63, {NS*SLOT}", "s_cselect_b32 s63, 0, s63", "s_add_u32 s64, s64, 1", "s_cmp_lt_u32 s64, 16"]
    a(f"s_mov_b32 s63, {SLOT}")
    a("s_mov_b32 s64, 0")
    for var in (1, 2, 3):
        a(f"s_cmp_eq_u32 s99, {var}")
        a(f"s_cbranch_scc1 L_c_var{var}")
    for var in (0, 1, 2, 3):
        CUR = [f"v_add_u32 v{128+i}, s63, v{53+i}" for i in (range(2) if var == 3 else range(10))]
        if var: CUR.append("v_add_u32 v154, s63, v48")
        RA = reads(var, XA, WA, QA_, (128, 130, 131, 134, 135), 154, 0)
        RB = reads(var, XB, WB, QB_, (129, 132, 133, 136, 137), 154, 1)
        a.label(f"L_c_var{var}")
        a("s_barrier")
        stamp(a, 2)
        for r in reads(var, XA, WA, QA_, (53, 55, 56, 59, 60), 48, 0): a(r)
        a("s_waitcnt lgkmcnt(0)")
        mf_rd(var, XA, WA, QA_, reads(var, XB, WB, QB_, (54, 57, 58, 61, 62), 48, 1), first=True, extra=CUR)
        a(f"s_branch L_c_noside{var}")
        a.label(f"L_c_loop{var}")
        a("s_waitcnt lgkmcnt(0)")
        if "stagest" in FLAGS: a("s_mov_b32 m0, s64\ns_nop 0\nv_writelane_b32 v167, s96, m0")
        if var == 3:
            mf_rd(var, XA, WA, QA_, RB, extra=CUR + ["s_cmp_eq_u32 s64, s69"])
            a("s_cbranch_scc1 L_c_side3")
        elif var < 2:
            mf_rd(var, XA, WA, QA_, RB, extra=CUR + ["s_cmp_eq_u32 s64, s69"])
            a("s_cbranch_scc1 L_c_side")
        else:
            mf_rd(var, XA, WA, QA_, RB, extra=CUR)
        a.label(f"L_c_noside{var}")
        a("s_waitcnt lgkmcnt(0)")
        a("s_barrier")
        if "stagest" in FLAGS: a("s_memtime s[96:97]")
        mf_rd(var, XB, WB, QB_, RA, extra=BK)
        a(f"s_cbranch_scc1 L_c_loop{var}")
        a("s_branch L_c_p1end")
    a.label("L_c_noside")
    a("s_cmp_eq_u32 s99, 0")
    a("s_cbranch_scc1 L_c_noside0")
    a("s_branch L_c_noside1")
    a.label("L_c_side3")
    a("global_load_dword v160, v[158:159], off")
    a("v_add_co_u32 v158, vcc, v158, v157")
    a(f"s_add_u32 s69, s69, {PSTEP}")
    a("s_sub_u32 s68, s68, 1")
    a("v_addc_co_u32 v159, vcc, 0, v159, vcc")
    a("s_cmp_eq_u32 s68, 0")
    a("s_cselect_b32 s69, 99, s69")
    a("s_branch L_c_noside3")
    a.label("L_c_side")
    a(f"s_cmp_lg_u32 s{S_W}, 0")
    a("s_cbranch_scc1 L_c_noside")
    a.label("L_c_side10")
    a("v_lshlrev_b32 v6, 7, v1")
    a("s_cmp_eq_u32 s64, 11")
    a("s_cbranch_scc1 L_c_side11")
    a("s_mov_b32 s69, 11")
    a("s_mov_b64 exec, 3")
    a(f"global_load_dword v161, v6, s[{S_DBG}:{S_DBG+1}] sc1")
    a("s_mov_b64 exec, -1")
    a("s_branch L_c_noside")
    a.label("L_c_side11")
    a("s_mov_b32 s69, 99")
    a("s_mov_b64 exec, 3")
    a("s_waitcnt vmcnt(0)")
    a("v_cmp_gt_u32 vcc, 64, v161")
    a("s_mov_b64 exec, -1")
    a("s_nop 1")
    a("s_cbranch_vccz L_c_noside")
    poll(a, "L_kv", S_DBG, 6, 7, 64, nwords=2, sleep=32)
    a("s_branch L_c_noside")
    a.label("L_c_p1end")
    stamp(a, 3)
    if "stagest" in FLAGS:
        a("s_mov_b32 m0, s64\ns_nop 0\nv_writelane_b32 v167, s96, m0")
        a(f"s_lshl_b32 s94, s2, 4")
        a(f"s_add_u32 s94, s94, s{S_W}")
        a(f"s_lshl_b32 s94, s94, 8")
        a(f"s_add_u32 s94, s94, {WS_ST + 0x100000}")
        a("v_lshlrev_b32 v166, 2, v1")
        a(f"buffer_store_dword v167, v166, s[{SRD_WS}:{SRD_WS+3}], s94 offen")
    a("s_waitcnt lgkmcnt(0)")
    a("s_nop 7")
    a(f"s_lshl_b32 s66, s{S_MT}, 2")
    a("s_lshl_b32 s65, s60, 1")
    a("s_add_u32 s66, s66, s65")
    def h_tile(t, u):
        d = 64 + (t * 2 + u) * 16
        for j in range(0, 8, 2):
            a(f"v_pk_mul_f32 v[{d+j}:{d+j+1}], v[{d+j}:{d+j+1}], v[{d+8+j}:{d+9+j}]")
        for j in range(4):
            a(f"v_cvt_pk_bf16_f32 v{144+(t*2+u)*4+j}, v{d+2*j}, v{d+2*j+1}")
    a(f"v_mov_b32 v8, {f32hex(QSCALE)}")
    a(f"v_mov_b32 v9, {f32hex(QSCALE)}")
    def q_tile(d, off):
        for j in range(0, 16, 2):
            a(f"v_pk_mul_f32 v[{d+j}:{d+j+1}], v[{d+j}:{d+j+1}], v[8:9]")
        for j in range(8):
            a(f"v_cvt_pk_bf16_f32 v{d+j}, v{d+2*j}, v{d+2*j+1}")
    a(f"s_lshl_b32 s65, s60, 12")
    a(f"s_add_u32 s65, s65, {QX}")
    a("s_cmp_eq_u32 s99, 3")
    a("s_cbranch_scc1 L_c_qep")
    a("s_cmp_eq_u32 s99, 0")
    a("s_cbranch_scc1 L_c_hep")
    a("s_lshl_b32 s67, s61, 11")
    a("s_add_u32 s65, s65, s67")
    a("v_add_u32 v6, s65, v2")
    for j in range(0, 16, 2):
        a(f"v_pk_mul_f32 v[{QACC+j}:{QACC+j+1}], v[{QACC+j}:{QACC+j+1}], v[8:9]")
    for j in range(8):
        a(f"v_cvt_pk_bf16_f32 v{16+j}, v{QACC+2*j}, v{QACC+2*j+1}")
    a("ds_write_b128 v6, v[16:19]")
    a("ds_write_b128 v6, v[20:23] offset:1024")
    a.label("L_c_hep")
    a("s_mul_i32 s67, s66, 144")
    a("s_add_u32 s67, s67, s98")
    a("s_add_u32 s67, s67, s62")
    a("s_lshl_b32 s67, s67, 10")
    a(f"s_add_u32 s67, s67, {WS_AF}")
    a(f"s_add_u32 s68, s67, {144*1024}")
    h_tile(0, 0)
    h_tile(1, 0)
    h_tile(0, 1)
    h_tile(1, 1)
    a("s_waitcnt lgkmcnt(0)")
    a("s_branch L_c_epdone")
    a.label("L_c_qep")
    a("v_add_u32 v6, s65, v2")
    for t in range(2):
        d = 64 + t * 32
        q_tile(d, 0)
        a(f"ds_write_b128 v6, v[{d}:{d+3}] offset:{t*2048}")
        a(f"ds_write_b128 v6, v[{d+4}:{d+7}] offset:{t*2048+1024}")
    a.label("L_c_epdone")
    SA = (32, 48); SB = (64, 80); OA = 96; OB = 112
    QA = 4; QB = 8; KF = (12, 16); VF = (20, 128)
    IDX = 28; AK = 29; AV = 30; VG = 31
    AKN = 136; AVN = 137; VB = 138; MA = 139; ONE = 140; NX = 141
    a("s_lshl_b32 s65, s72, 7")
    a(f"s_add_u32 s65, s65, {WS_G}")
    a("v_and_b32 v3, 31, v1")
    a("v_lshlrev_b32 v3, 2, v3")
    a(f"buffer_load_dword v{VG}, v3, s[{SRD_WS}:{SRD_WS+3}], s65 offen sc1")
    a(f"s_add_u32 s65, s71, {CROT}")
    a("s_lshl_b32 s65, s65, 12")
    a(f"v_add_u32 v{AK}, s65, v2")
    a("v_lshrrev_b32 v3, 5, v1")
    a("v_and_b32 v32, 15, v1")
    a("v_lshl_add_u32 v3, v3, 4, v32")
    a("v_lshlrev_b32 v3, 4, v3")
    a(f"v_add_u32 v{VB}, {L_V}, v3")
    a(f"v_add_u32 v{AV}, s65, v{VB}")
    a(f"v_mov_b32 v{IDX}, 0xdddddddd")
    a("v_and_b32 v3, 27, v1")
    a("v_cmp_eq_u32 vcc, 16, v3")
    a("v_mov_b32 v3, 0x3f803f80")
    a("s_lshl_b32 s65, s70, 2")
    a("v_cndmask_b32 v3, 0, v3, vcc")
    a("v_mov_b32 v20, v3")
    a("v_mov_b32 v21, v3")
    for b in VF:
        for i in range(0, 8, 2):
            if b + i != 20: a(f"v_pk_mov_b32 v[{b+i}:{b+i+1}], v[20:21], v[20:21] op_sel:[0,1]")
    a("s_mov_b32 s74, 0x0000ffff")
    a("s_mov_b32 s75, 0x0000ffff")
    a(f"s_add_u32 s65, s65, {MISC}")
    a(f"v_mov_b32 v{MA}, s65")
    a(f"v_mov_b32 v{ONE}, 1")
    a("s_lshl_b32 s65, s70, 11")
    a(f"s_add_u32 s65, s65, {QX}")
    a("v_add_u32 v3, s65, v2")
    a(f"v_mov_b32 v33, {M_CD}")
    a("s_waitcnt lgkmcnt(0)")
    a(f"v_mov_b32 v{OA}, 0")
    a(f"v_mov_b32 v{OA+1}, 0")
    for r in [OA + i for i in range(2, 10, 2)] + [OB + i for i in range(0, 10, 2)] + [SB[1] + i for i in range(8, 16, 2)]:
        a(f"v_pk_mov_b32 v[{r}:{r+1}], v[{OA}:{OA+1}], v[{OA}:{OA+1}] op_sel:[0,1]")
    a("s_barrier")
    stamp(a, 4)
    a(f"ds_read_b128 v[{QA}:{QA+3}], v3")
    a(f"ds_read_b128 v[{KF[0]}:{KF[0]+3}], v{AK}")
    a(f"ds_read_b128 v[{QB}:{QB+3}], v3 offset:1024")
    a(f"ds_read_b128 v[{KF[1]}:{KF[1]+3}], v{AK} offset:1024")
    a("s_mov_b64 exec, s[74:75]")
    a(f"ds_read_b128 v[{VF[0]}:{VF[0]+3}], v{AV}")
    a(f"ds_read_b128 v[{VF[0]+4}:{VF[0]+7}], v{AV} offset:512")
    a("s_mov_b64 exec, 1")
    a(f"ds_add_u32 v33, v{ONE}")
    a("s_mov_b64 exec, -1")
    a("s_waitcnt lgkmcnt(0)")
    if "dumpq" in FLAGS:
        a("s_lshl_b32 s65, s72, 5")
        a(f"s_lshl_b32 s73, s{S_FS}, 1")
        a("s_add_u32 s65, s65, s73")
        a("s_lshl_b32 s65, s65, 10")
        a(f"s_add_u32 s65, s65, {WS_QF}")
        a(f"buffer_store_dwordx4 v[{QA}:{QA+3}], v2, s[{SRD_WS}:{SRD_WS+3}], s65 offen")
        a(f"buffer_store_dwordx4 v[{QB}:{QB+3}], v2, s[{SRD_WS}:{SRD_WS+3}], s65 offen offset:1024")
    a(f"v_mfma_f32_32x32x16_bf16 v[{SA[0]}:{SA[0]+15}], v[{KF[0]}:{KF[0]+3}], v[{QA}:{QA+3}], 0")
    a(f"v_mfma_f32_32x32x16_bf16 v[{SB[0]}:{SB[0]+15}], v[{KF[0]}:{KF[0]+3}], v[{QB}:{QB+3}], 0")
    a("s_nop 15")
    def smf(O, V, P):
        a(f"v_smfmac_f32_32x32x32_bf16 v[{O}:{O+15}], v[{V}:{V+3}], v[{P}:{P+7}], v{IDX}")
    UN = 4
    def tile(t):
        c = t & 1; n = c ^ 1
        sa, sb = SA[c], SB[c]
        def E(S, i): a(f"v_exp_f32 v{S+i}, v{S+i}")
        a("s_waitcnt lgkmcnt(0)")
        if t == 1:
            a(f"v_readfirstlane_b32 s73, v{NX}")
        if t + 2 < UN: a(f"ds_read_b128 v[{KF[c]}:{KF[c]+3}], v{AK} offset:{(t+2)*1024}")
        else:          a(f"ds_read_b128 v[{KF[c]}:{KF[c]+3}], v{AKN} offset:{(t+2-UN)*1024}")
        E(sa, 0); E(sa, 1)
        smf(OB, VF[n] + 4, SB[n] + 8)
        a("s_mov_b64 exec, s[74:75]")
        av, vo = (AV, (t + 1) * 1024) if t + 1 < UN else (AVN, 0)
        a(f"ds_read_b128 v[{VF[n]}:{VF[n]+3}], v{av} offset:{vo}")
        a(f"ds_read_b128 v[{VF[n]+4}:{VF[n]+7}], v{av} offset:{vo+512}")
        if t == 0:
            a("s_mov_b64 exec, 1")
            a(f"ds_add_rtn_u32 v{NX}, v{MA}, v{ONE}")
        a("s_mov_b64 exec, -1")
        if t == 1:
            a(f"s_add_u32 s65, s73, {CROT}")
            a("s_and_b32 s65, s65, 15")
            a("s_lshl_b32 s65, s65, 12")
        for i in range(2, 6): E(sa, i)
        a(f"v_mfma_f32_32x32x16_bf16 v[{SA[n]}:{SA[n]+15}], v[{KF[n]}:{KF[n]+3}], v[{QA}:{QA+3}], 0")
        if t == 1:
            a(f"v_add_u32 v{AKN}, s65, v2")
            a(f"v_add_u32 v{AVN}, s65, v{VB}")
        for i in range(6, 11): E(sa, i)
        smf(OA, VF[c], sa)
        for i in range(11, 16): E(sa, i)
        E(sb, 0); E(sb, 1)
        smf(OA, VF[c] + 4, sa + 8)
        for i in range(2, 6): E(sb, i)
        a(f"v_mfma_f32_32x32x16_bf16 v[{SB[n]}:{SB[n]+15}], v[{KF[n]}:{KF[n]+3}], v[{QB}:{QB+3}], 0")
        for i in range(6, 11): E(sb, i)
        smf(OB, VF[c], sb)
        if t == UN - 1:
            a(f"v_mov_b32 v{AK}, v{AKN}")
            a(f"v_mov_b32 v{AV}, v{AVN}")
        for i in range(11, 16): E(sb, i)
        if t < 2:
            a(f"s_cbranch_vccnz L_a_hs{t}")
            a.label(f"L_a_hsr{t}")
    a("s_cmp_lg_u32 s99, 3")
    a("s_cselect_b64 vcc, -1, 0")
    a("s_mov_b32 s79, 0")
    a("s_mov_b32 s73, 0")
    a("s_cmp_lg_u32 s71, 0")
    a("s_cbranch_scc1 L_a_job")
    a("s_setprio 2")
    stamp(a, 6)
    a.label("L_a_loop")
    for t in range(UN):
        tile(t)
    a("s_cmp_eq_u32 s79, 0")
    a("s_cbranch_scc1 L_a_job")
    a.label("L_a_next")
    a(f"s_cmp_lt_u32 s73, {64//UN}")
    a("s_cbranch_scc1 L_a_loop")
    a(f"s_mul_i32 s65, s70, {OXS}")
    a(f"s_add_u32 s65, s65, {OX}")
    a("v_add_u32 v32, s65, v2")
    a("v_lshrrev_b32 v33, 1, v2")
    a("v_add_u32 v33, s65, v33")
    a("s_mov_b64 exec, 1")
    a(f"ds_add_rtn_u32 v{NX}, v{MA}, v{ONE} offset:16")
    a(f"v_mov_b32 v3, {M_GD}")
    a("s_mov_b64 exec, -1")
    smf(OB, VF[1] + 4, SB[1] + 8)
    a(f"ds_read_b32 v34, v{MA} offset:32")
    a("ds_read_b128 v[64:67], v32")
    a("ds_read_b128 v[68:71], v32 offset:1024")
    a("ds_read_b128 v[72:75], v32 offset:2048")
    a("ds_read_b128 v[76:79], v32 offset:3072")
    a("ds_read_b64 v[80:81], v33 offset:4096")
    a("s_waitcnt lgkmcnt(0)")
    a(f"v_readfirstlane_b32 s73, v{NX}")
    a("v_readfirstlane_b32 s65, v34")
    stamp(a, 5)
    a("s_mov_b32 s79, 0")
    a("s_nop 2")
    a("s_cmp_lg_u32 s65, 0")
    a("s_cbranch_scc1 L_a_comb")
    a("s_cmp_lg_u32 s73, 0")
    a("s_cbranch_scc1 L_a_second")
    a("s_mov_b64 exec, 1")
    a("s_mov_b32 s65, 0")
    a.label("L_a_gd")
    a("ds_read_b32 v34, v3")
    a("s_add_u32 s65, s65, 1")
    a("s_waitcnt lgkmcnt(0)")
    a("v_cmp_gt_u32 vcc, 4, v34")
    a(f"s_cmp_ge_u32 s65, {SPIN*4}")
    a("s_cbranch_scc1 L_a_gd2")
    a("s_nop 1")
    a("s_cbranch_vccnz L_a_gd")
    a.label("L_a_gd2")
    a("s_mov_b64 exec, -1")
    a(f"v_mov_b32 v{OA+9}, v{OB+8}")
    a(f"ds_write_b128 v32, v[{OA}:{OA+3}]")
    a(f"ds_write_b128 v32, v[{OA+4}:{OA+7}] offset:1024")
    a(f"ds_write_b128 v32, v[{OB}:{OB+3}] offset:2048")
    a(f"ds_write_b128 v32, v[{OB+4}:{OB+7}] offset:3072")
    a(f"ds_write_b64 v33, v[{OA+8}:{OA+9}] offset:4096")
    a("s_waitcnt lgkmcnt(0)")
    a("s_mov_b64 exec, 1")
    a(f"ds_write_b32 v{MA}, v{ONE} offset:32")
    a(f"ds_add_u32 v3, v{ONE} offset:{M_KF-M_GD}")
    a("s_endpgm")
    a.label("L_a_second")
    a("s_mov_b64 exec, 1")
    a("s_mov_b32 s65, 0")
    a.label("L_a_rdy")
    a(f"ds_read_b32 v34, v{MA} offset:32")
    a("s_add_u32 s65, s65, 1")
    a("s_waitcnt lgkmcnt(0)")
    a("v_cmp_eq_u32 vcc, 0, v34")
    a(f"s_cmp_ge_u32 s65, {SPIN*4}")
    a("s_cbranch_scc1 L_a_rdy2")
    a("s_nop 1")
    a("s_cbranch_vccnz L_a_rdy")
    a.label("L_a_rdy2")
    a("s_mov_b64 exec, -1")
    a("ds_read_b128 v[64:67], v32")
    a("ds_read_b128 v[68:71], v32 offset:1024")
    a("ds_read_b128 v[72:75], v32 offset:2048")
    a("ds_read_b128 v[76:79], v32 offset:3072")
    a("ds_read_b64 v[80:81], v33 offset:4096")
    a("s_waitcnt lgkmcnt(0)")
    a.label("L_a_comb")
    for i in range(0, 8, 2):
        a(f"v_pk_add_f32 v[{OA+i}:{OA+i+1}], v[{OA+i}:{OA+i+1}], v[{64+i}:{65+i}]")
        a(f"v_pk_add_f32 v[{OB+i}:{OB+i+1}], v[{OB+i}:{OB+i+1}], v[{72+i}:{73+i}]")
    a(f"v_add_f32 v{OA+8}, v{OA+8}, v80")
    a(f"v_add_f32 v{OB+8}, v{OB+8}, v81")
    a.label("L_a_finloop")
    a(f"v_add_f32 v35, v{OA}, v{OA+1}")
    a(f"v_add_f32 v36, v{OA+2}, v{OA+3}")
    a(f"v_add_f32 v37, v{OA+4}, v{OA+5}")
    a(f"v_add_f32 v34, v{OA+6}, v{OA+7}")
    a("v_add_f32 v35, v35, v36")
    a("v_add_f32 v34, v34, v37")
    a("v_add_f32 v35, v35, v34")
    a(f"v_fma_f32 v35, v35, 0, v{OA+8}")
    a(f"v_cmp_nle_f32 vcc, {f32hex(2.0**-30)}, v35")
    a("s_mov_b64 s[76:77], vcc")
    a(f"v_cmp_nge_f32 vcc, {f32hex(2.0**30)}, v35")
    a("s_or_b64 s[76:77], s[76:77], vcc")
    a("s_cmp_lg_u64 s[76:77], 0")
    a("s_cbranch_scc1 L_a_fallback")
    a.label("L_a_fin")
    a(f"v_rcp_f32 v32, v{OA+8}")
    a("s_nop 0")
    a(f"v_mul_f32 v32, v32, v{VG}")
    for i in range(8):
        a(f"v_mul_f32 v{OA+i}, v{OA+i}, v32")
    for j in range(4):
        a(f"v_cvt_pk_bf16_f32 v{36+j}, v{OA+2*j}, v{OA+2*j+1}")
    for j in range(4):
        a(f"v_min_u32 v{36+j}, -2, v{36+j}")
    a(f"buffer_store_dwordx4 v[36:39], v2, s[{SRD_WS}:{SRD_WS+3}], s78 offen sc1")
    a("s_cmp_lg_u32 s79, 0")
    a("s_cbranch_scc1 L_a_done")
    a("s_mov_b32 s79, 1")
    a("s_add_u32 s78, s78, 1024")
    for i in range(9):
        a(f"v_mov_b32 v{OA+i}, v{OB+i}")
    for i in range(4):
        a(f"v_mov_b32 v{QA+i}, v{QB+i}")
    a("s_branch L_a_finloop")
    a.label("L_a_done")
    a(f"v_mov_b32 v3, {M_KF}")
    a("s_mov_b64 exec, 1")
    a(f"ds_add_u32 v3, v{ONE}")
    a("s_mov_b64 exec, -1")
    stamp(a, 7)
    a("s_endpgm")
    for t in range(2):
        a.label(f"L_a_hs{t}")
        for u in range(2):
            r = 144 + (t * 2 + u) * 4
            a(f"buffer_store_dwordx4 v[{r}:{r+3}], v2, s[{SRD_WS}:{SRD_WS+3}], s{67+t} offen offset:{1024*u} sc1")
        a(f"s_branch L_a_hsr{t}")
    a.label("L_a_job")
    a("s_mov_b32 s79, 1")
    a("s_cmp_eq_u32 s71, 0")
    a("s_cbranch_scc1 L_a_job1")
    a("s_cbranch_vccz L_a_job1")
    for t in range(2):
        for u in range(2):
            r = 144 + (t * 2 + u) * 4
            a(f"buffer_store_dwordx4 v[{r}:{r+3}], v2, s[{SRD_WS}:{SRD_WS+3}], s{67+t} offen offset:{1024*u} sc1")
    a.label("L_a_job1")
    a("s_waitcnt vmcnt(0)")
    a("s_mov_b64 exec, 1")
    a(f"v_mov_b32 v3, {M_HD}")
    a(f"ds_add_u32 v3, v{ONE}")
    a("s_mov_b32 s65, 0")
    a.label("L_a_kvw")
    a(f"ds_read_b32 v142, v3 offset:4")
    a("s_add_u32 s65, s65, 1")
    a("s_waitcnt lgkmcnt(0)")
    a("v_cmp_gt_u32 vcc, 4, v142")
    a(f"s_cmp_ge_u32 s65, {SPIN*4}")
    a("s_cbranch_scc1 L_a_kvw2")
    a("s_nop 1")
    a("s_cbranch_vccnz L_a_kvw")
    a.label("L_a_kvw2")
    a("s_mov_b64 exec, -1")
    a("s_mov_b64 vcc, 0")
    a("s_branch L_a_next")
    a.label("L_a_fallback")
    S = SA[1]; M = 3
    a(f"v_mov_b32 v{M}, 0xff800000")
    a(f"v_mov_b32 v{AK}, v2")
    a("s_mov_b32 s73, 0")
    a.label("L_fb1")
    a(f"ds_read_b128 v[{KF[0]}:{KF[0]+3}], v{AK}")
    a("s_waitcnt lgkmcnt(0)")
    a(f"v_mfma_f32_32x32x16_bf16 v[{S}:{S+15}], v[{KF[0]}:{KF[0]+3}], v[{QA}:{QA+3}], 0")
    a(f"v_add_u32 v{AK}, 1024, v{AK}")
    a("s_nop 15")
    for i in range(0, 16, 2):
        a(f"v_max3_f32 v{M}, v{M}, v{S+i}, v{S+i+1}")
    a("s_add_u32 s73, s73, 1")
    a("s_cmp_lt_u32 s73, 64")
    a("s_cbranch_scc1 L_fb1")
    a(f"v_mov_b32 v32, v{M}")
    a("s_nop 1")
    a(f"v_permlane32_swap_b32 v{M}, v32")
    a("s_nop 1")
    a(f"v_max_f32 v{M}, v{M}, v32")
    for i in range(16):
        a(f"v_mov_b32 v{OA+i}, 0")
    a(f"v_mov_b32 v{AK}, v2")
    a(f"v_mov_b32 v{AV}, v{VB}")
    a("s_mov_b32 s73, 0")
    a.label("L_fb2")
    a(f"ds_read_b128 v[{KF[0]}:{KF[0]+3}], v{AK}")
    a("s_mov_b64 exec, s[74:75]")
    a(f"ds_read_b128 v[{VF[0]}:{VF[0]+3}], v{AV}")
    a(f"ds_read_b128 v[{VF[0]+4}:{VF[0]+7}], v{AV} offset:512")
    a("s_mov_b64 exec, -1")
    a("s_waitcnt lgkmcnt(0)")
    a(f"v_mfma_f32_32x32x16_bf16 v[{S}:{S+15}], v[{KF[0]}:{KF[0]+3}], v[{QA}:{QA+3}], 0")
    a(f"v_add_u32 v{AK}, 1024, v{AK}")
    a(f"v_add_u32 v{AV}, 1024, v{AV}")
    a("s_nop 15")
    for i in range(16):
        a(f"v_sub_f32 v{S+i}, v{S+i}, v{M}")
    for i in range(16):
        a(f"v_exp_f32 v{S+i}, v{S+i}")
    a("s_nop 1")
    smf(OA, VF[0], S)
    smf(OA, VF[0] + 4, S + 8)
    a("s_nop 7")
    a("s_add_u32 s73, s73, 1")
    a("s_cmp_lt_u32 s73, 64")
    a("s_cbranch_scc1 L_fb2")
    a("s_nop 15")
    a("s_branch L_a_fin")

def gen_g1(a):
    ROLE[0] = "g"
    a("s_setprio %d" % (1 if "prio1" in FLAGS else 3))
    GUB = 512 * 1792 * 2
    a(f"s_sub_u32 s44, s{S_W}, 8")
    a("s_lshl_b32 s45, s44, 10")
    a(f"s_mul_i32 s76, s44, {PA_W}")
    a(f"s_add_u32 s76, s76, {PA}")
    a(f"s_lshl_b32 s77, s{S_MT}, 3")
    a(f"s_lshr_b32 s{T0}, s{S_FS}, 1")
    a(f"s_add_u32 s77, s77, s{T0}")
    a("s_mov_b32 s78, 0xffff")
    a("s_mov_b32 s79, 0xffff")
    for d in (48, 52, 56, 60): srd_hi(a, d, GUB)
    a("v_lshrrev_b32 v4, 2, v1")
    a("v_lshrrev_b32 v5, 4, v1")
    a("v_and_b32 v10, 3, v1")
    a("v_xor_b32 v10, v10, v5")
    a("v_lshlrev_b32 v10, 4, v10")
    a("v_lshl_add_u32 v10, v4, 10, v10")
    a(f"s_lshl_b32 s{T0}, s{S_MT}, 7")
    a(f"s_lshl_b32 s{T1}, s44, 4")
    a(f"s_add_u32 s{T0}, s{T0}, s{T1}")
    a(f"s_lshl_b32 s{T0}, s{T0}, 10")
    a(f"v_add_u32 v10, s{T0}, v10")
    a("v_add_u32 v11, 0x10000, v10")
    a("s_lshl_b32 s46, s98, 5")
    srd_hi(a, 84, 512 * 512 * 2)
    a("v_lshlrev_b32 v14, 10, v4")
    a("v_and_b32 v15, 3, v1")
    a("v_lshl_add_u32 v14, v15, 4, v14")
    a(f"s_lshl_b32 s{T0}, s{S_FS}, 6")
    a(f"s_lshl_b32 s{T1}, s44, 13")
    a(f"s_add_u32 s{T0}, s{T0}, s{T1}")
    a(f"v_add_u32 v14, s{T0}, v14")
    a("s_lshl_b32 s66, s44, 9")
    a(f"s_add_u32 s66, s66, {O_Q}")
    a("s_mov_b32 s88, -1")
    a("s_mov_b32 s89, 0")
    a("s_cmp_eq_u32 s3, 0")
    a("s_cbranch_scc1 L_g_tB")
    a("s_mov_b32 s71, 0")
    a("v_and_b32 v8, 15, v1")
    a("v_lshlrev_b32 v4, 2, v5")
    a("v_xor_b32 v8, v8, v4")
    a("v_lshlrev_b32 v8, 4, v8")
    a(f"s_lshl_b32 s{T0}, s44, 2")
    a(f"v_add_u32 v4, s{T0}, v5")
    a("v_mul_u32_u24 v4, 3584, v4")
    a("v_add3_u32 v8, v8, v4, s46")
    a("v_xor_b32 v9, 32, v8")
    a(f"v_add_u32 v12, {16*3584}, v8")
    a(f"v_add_u32 v13, {16*3584}, v9")
    a("s_add_u32 s47, s45, 8192")
    a("s_add_u32 s64, s45, 4096")
    a("s_add_u32 s65, s45, 12288")
    a("s_mov_b64 s[74:75], -1")
    a("s_branch L_g_qdone")
    a.label("L_g_tB")
    def b_voff(vd, s_idx):
        a(f"s_lshl_b32 s{T0}, s{s_idx}, 6")
        a(f"v_add_u32 v{vd}, s{T0}, v1")
        a(f"v_mul_u32_u24 v4, 5462, v{vd}")
        a("v_lshrrev_b32 v4, 16, v4")
        a(f"v_lshlrev_b32 v{vd}, 4, v{vd}")
        a(f"v_mul_u32_u24 v4, {3584-192}, v4")
        a(f"v_add3_u32 v{vd}, v{vd}, v4, s46")
    b_voff(8, 44)
    a("v_mov_b32 v9, v8")
    a("s_and_b32 s47, s44, 1")
    a("s_add_u32 s47, s47, 4")
    b_voff(12, 47)
    a("v_mov_b32 v13, v8")
    a("s_lshl_b32 s64, s47, 10")
    a("s_cmp_lt_u32 s44, 2")
    a(f"s_cselect_b32 s71, 0, {B_UP}")
    a("s_add_u32 s64, s64, s71")
    a(f"s_add_u32 s47, s45, {B_UP}")
    a("s_mov_b32 s65, s45")
    a("s_mov_b64 s[74:75], 1")
    a.label("L_g_qdone")
    a("s_mov_b32 s67, 0")
    a("s_mov_b32 s68, 0")
    a("s_mov_b32 s69, 0")
    a("s_mov_b32 s70, 0")
    a("s_getpc_b64 s[72:73]")
    a.label("L_g_ref")
    a("s_add_u32 s72, s72, L_g_after-L_g_ref")
    a("s_addc_u32 s73, s73, 0")
    a("s_waitcnt lgkmcnt(0)")
    srd_lo(a, SRD_X, S_X)
    srd_lo(a, 48, S_WG)
    srd_lo(a, 52, S_WU)
    srd_lo(a, 84, S_WQ)
    a("s_cmp_eq_u32 s71, 0")
    a(f"s_cselect_b64 s[56:57], s[{S_WG}:{S_WG+1}], s[{S_WU}:{S_WU+1}]")
    a("s_cmp_eq_u32 s3, 0")
    a(f"s_cselect_b64 s[60:61], s[{S_WG}:{S_WG+1}], s[{S_WU}:{S_WU+1}]")
    def issue_stage(slot):
        a(f"s_add_u32 s{T0}, s45, s{slot}")
        a(f"s_add_u32 m0, s{T0}, {O_X}")
        a("s_nop 0")
        a(f"buffer_load_dwordx4 v10, s[{SRD_X}:{SRD_X+3}], s69 offen lds")
        a(f"s_add_u32 m0, s{T0}, {O_X+4096}")
        a("s_nop 0")
        a(f"buffer_load_dwordx4 v11, s[{SRD_X}:{SRD_X+3}], s69 offen lds")
        a(f"s_mov_b32 m0, s{T0}")
        a("s_add_u32 s69, s69, 64")
        a("buffer_load_dwordx4 v8, s[48:51], s67 offen lds")
        a(f"s_add_u32 m0, s47, s{slot}")
        a("s_nop 0")
        a("buffer_load_dwordx4 v9, s[52:55], s67 offen lds")
        a(f"s_add_u32 m0, s64, s{slot}")
        a("s_nop 0")
        a("buffer_load_dwordx4 v12, s[56:59], s67 offen lds")
        a(f"s_add_u32 m0, s65, s{slot}")
        a("s_mov_b64 exec, s[74:75]")
        a("buffer_load_dwordx4 v13, s[60:63], s67 offen lds")
        a(f"s_add_u32 m0, s66, s{slot}")
        a("s_mov_b64 exec, s[88:89]")
        a("buffer_load_dwordx4 v14, s[84:87], s68 offen lds")
        a("s_mov_b64 exec, -1")
        a(f"s_add_u32 s67, s67, {32*3584}")
        a(f"s_add_u32 s68, s68, {32*1024}")
        a(f"s_add_u32 s{slot}, s{slot}, {SLOT}")
        a(f"s_cmp_eq_u32 s{slot}, {NS*SLOT}")
        a(f"s_cselect_b32 s{slot}, 0, s{slot}")
    def call(): a("s_call_b64 s[72:73], L_g_issue")
    a.label("L_g_issue")
    issue_stage(70)
    a("s_setpc_b64 s[72:73]")
    a.label("L_g_after")
    srd_lo(a, SRD_WS, S_WS)
    stamp(a, 0)
    a("s_cmp_lg_u32 s3, 0")
    a("s_cbranch_scc1 L_g_noA1")
    make_srd(a, 80, S_WK, 16384)
    a(f"s_lshl_b32 s{T0}, s44, 12")
    a("s_mov_b32 m0, s76")
    a("v_and_b32 v7, 31, v1")
    for i in range(4):
        a(f"buffer_load_dwordx4 v2, s[80:83], s{T0} offen offset:{1024*i} lds")
    make_srd(a, 80, S_WV, 16384)
    a("s_add_u32 m0, s76, 4224")
    a("v_lshlrev_b32 v7, 10, v7")
    for i in range(4):
        a(f"buffer_load_dwordx4 v2, s[80:83], s{T0} offen offset:{1024*i} lds")
    make_srd(a, 80, S_GW, 1024)
    a("s_add_u32 m0, s76, 8448")
    a(f"s_lshl_b32 s{T0}, s77, 14")
    a("buffer_load_dwordx4 v2, s[80:83], 0 offen lds")
    a(f"s_lshl_b32 s{T1}, s44, 8")
    a(f"s_add_u32 s{T0}, s{T0}, s{T1}")
    a("v_lshrrev_b32 v6, 5, v1")
    a("v_lshl_add_u32 v7, v6, 4, v7")
    a("s_mov_b64 exec, s[78:79]")
    for s_ in range(8):
        a(f"buffer_load_dwordx4 v[{96+4*s_}:{99+4*s_}], v7, s[{SRD_X}:{SRD_X+3}], s{T0} offen offset:{32*s_}")
    a("s_mov_b64 exec, -1")
    call()
    a("s_barrier")
    a(f"s_waitcnt vmcnt({ND+17})")
    a("s_branch L_g_start")
    a.label("L_g_noA1")
    call()
    a("s_barrier")
    a(f"s_waitcnt vmcnt({ND})")
    a.label("L_g_start")
    a("s_barrier")
    call()
    a("s_cmp_eq_u32 s3, 0")
    a("s_cbranch_scc1 L_g_ev_pa")
    a.label("L_g_r0")
    a(f"s_waitcnt vmcnt({ND}) lgkmcnt(0)")
    a("s_barrier")
    call()
    a("s_cmp_eq_u32 s3, 0")
    a("s_cbranch_scc1 L_g_ev_red")
    a.label("L_g_r1")
    a(f"s_waitcnt vmcnt({ND}) lgkmcnt(0)")
    a("s_barrier")
    call()
    a(f"s_waitcnt vmcnt({ND})")
    a("s_barrier")
    a("s_or_b32 s71, s3, s44")
    a("s_cmp_lg_u32 s71, 0")
    a("s_cbranch_scc1 L_g_nsig")
    a("s_and_b32 s71, s2, 1")
    a("s_lshl_b32 s71, s71, 7")
    a("v_mov_b32 v6, s71")
    a("v_mov_b32 v7, 1")
    a("s_mov_b64 exec, 1")
    a(f"global_atomic_add v6, v7, s[{S_DBG}:{S_DBG+1}] sc1")
    a("s_mov_b64 exec, -1")
    stamp(a, 2)
    a.label("L_g_nsig")
    call(); call()
    a(f"s_waitcnt vmcnt({2*ND})")
    a("s_barrier")
    call()
    a("s_mov_b32 s71, 8")
    a.label("L_g_loop")
    call()
    a("s_add_u32 s71, s71, 1")
    a("s_cmp_eq_u32 s71, 16")
    a("s_cbranch_scc1 L_g_tail")
    a(f"s_waitcnt vmcnt({ND*(NS-2)})")
    a("s_barrier")
    a("s_branch L_g_loop")
    a.label("L_g_ev_pa")
    tr_lane(a, 3, 4, 5, 6)
    a("v_mul_u32_u24 v6, 4224, v3")
    a("v_lshl_add_u32 v6, v4, 5, v6")
    a("v_add3_u32 v6, v6, v5, s76")
    a("v_lshrrev_b32 v7, 5, v1")
    a("v_lshlrev_b32 v7, 4, v7")
    a(f"s_lshl_b32 s{T0}, s44, 8")
    a(f"s_add_u32 s{T0}, s{T0}, s76")
    a(f"v_add_u32 v7, s{T0}, v7")
    a(f"s_waitcnt vmcnt({2*ND})")
    stamp(a, 1)
    for s_ in range(8):
        for j in range(2):
            a(f"ds_read_b64_tr_b16 v[{128+4*s_+2*j}:{129+4*s_+2*j}], v6 offset:{(16*s_+4*j)*32}")
        if s_ == 3: a("s_waitcnt lgkmcnt(0)")
    a("s_waitcnt lgkmcnt(0)")
    for s_ in range(8):
        a(f"ds_read_b128 v[{16+4*s_}:{19+4*s_}], v7 offset:{8448+32*s_}")
    for s_ in range(8):
        c = "0" if s_ == 0 else "v[64:79]"
        a(f"v_mfma_f32_32x32x16_bf16 v[64:79], v[{128+4*s_}:{131+4*s_}], v[{96+4*s_}:{99+4*s_}], {c}")
    a("s_waitcnt lgkmcnt(0)")
    for s_ in range(8):
        c = "0" if s_ == 0 else "v[80:95]"
        a(f"v_mfma_f32_32x32x16_bf16 v[80:95], v[{16+4*s_}:{19+4*s_}], v[{96+4*s_}:{99+4*s_}], {c}")
    a("v_and_b32 v6, 31, v1")
    a("v_lshrrev_b32 v60, 5, v1")
    a("v_lshl_add_u32 v61, v6, 1, v60")
    a("v_lshlrev_b32 v61, 5, v61")
    a("v_add_u32 v7, s76, v61")
    a("v_lshlrev_b32 v60, 10, v60")
    a("v_lshl_add_u32 v60, v6, 2, v60")
    a("v_add_u32 v60, s76, v60")
    a("v_lshlrev_b32 v6, 2, v6")
    a("v_add_u32 v5, s76, v6")
    a("ds_write_b128 v7, v[64:67]")
    a("ds_write_b128 v7, v[68:71] offset:16")
    for j in range(8):
        a(f"ds_write_b32 v60, v{72+j} offset:{2048+128*j}")
    a("s_nop 3")
    a("ds_write_b32 v5, v80 offset:4096")
    a("s_branch L_g_r0")
    a.label("L_g_ev_red")
    a("s_cmp_eq_u32 s44, 3")
    a("s_cbranch_scc1 L_g_r1")
    a("s_cmp_eq_u32 s44, 2")
    a("s_cbranch_scc1 L_g_pa_z")
    a(f"s_lshr_b32 s{T0}, s77, 1")
    a(f"s_lshl_b32 s{T0}, s{T0}, 10")
    a(f"s_and_b32 s{T1}, s77, 1")
    a(f"s_lshl_b32 s{T1}, s{T1}, 8")
    a(f"s_add_u32 s{T0}, s{T0}, s{T1}")
    a("v_and_b32 v6, 31, v1")
    a("v_lshrrev_b32 v60, 5, v1")
    a("v_lshl_add_u32 v61, v6, 1, v60")
    a("v_lshlrev_b32 v61, 5, v61")
    a("s_cmp_eq_u32 s44, 0")
    a("s_cbranch_scc1 L_g_pa_red")
    a(f"s_add_u32 s{T0}, s{T0}, s{T1}")
    a("s_mov_b32 s78, -1")
    a("s_mov_b32 s79, 0")
    a("v_bfe_u32 v60, v1, 2, 1")
    a("v_lshlrev_b32 v60, 3, v60")
    a("v_bfe_u32 v61, v1, 3, 1")
    a("v_lshl_add_u32 v60, v61, 2, v60")
    a("v_and_b32 v61, 3, v1")
    a("v_add_u32 v60, v60, v61")
    a("v_lshlrev_b32 v60, 7, v60")
    a("v_lshrrev_b32 v61, 4, v1")
    a("v_lshl_add_u32 v61, v61, 5, v60")
    a("v_add_u32 v61, 2048, v61")
    a(f"s_add_u32 s{T0}, s{T0}, {WS_VF}")
    a.label("L_g_pa_red")
    a(f"v_add_u32 v61, {PA}, v61")
    for w in range(4):
        a(f"ds_read_b128 v[{64+8*w}:{67+8*w}], v61 offset:{w*PA_W}")
        a(f"ds_read_b128 v[{68+8*w}:{71+8*w}], v61 offset:{w*PA_W+16}")
    a("s_waitcnt lgkmcnt(0)")
    for w in (2, 1):
        for q in range(w):
            for j in range(0, 8, 2):
                d = 64 + 8 * q + j; e = d + 8 * w
                a(f"v_pk_add_f32 v[{d}:{d+1}], v[{d}:{d+1}], v[{e}:{e+1}]")
    for j in range(4):
        a(f"v_cvt_pk_bf16_f32 v{140+j}, v{64+2*j}, v{65+2*j}")
    a("s_mov_b64 exec, s[78:79]")
    a(f"buffer_store_dwordx4 v[140:143], v2, s[{SRD_WS}:{SRD_WS+3}], s{T0} offen sc1")
    a("s_mov_b64 exec, -1")
    a("s_branch L_g_r1")
    a.label("L_g_pa_z")
    a("v_and_b32 v6, 15, v1")
    a("v_lshlrev_b32 v6, 2, v6")
    a(f"v_add_u32 v60, {PA}, v6")
    for w in range(4):
        a(f"ds_read_b32 v{64+w}, v60 offset:{w*PA_W+4096}")
    a(f"s_cmp_lg_u32 s{S_FS}, 1")
    a("s_cbranch_scc1 L_g_nofl")
    a("v_mov_b32 v7, 0")
    a(f"s_lshl_b32 s{T0}, s{S_MT}, 7")
    a(f"s_add_u32 s{T0}, s{T0}, {WS_FL}")
    a(f"buffer_store_dword v7, v7, s[{SRD_WS}:{SRD_WS+3}], s{T0} offen sc1")
    a.label("L_g_nofl")
    a("s_waitcnt lgkmcnt(0)")
    for w in range(1, 4):
        a(f"v_add_f32 v64, v64, v{64+w}")
    a(f"v_mul_f32 v64, {f32hex(-LOG2E)}, v64")
    a("v_exp_f32 v64, v64")
    a(f"s_lshl_b32 s{T0}, s77, 6")
    a("v_add_f32 v64, 1.0, v64")
    a("v_rcp_f32 v140, v64")
    a(f"s_add_u32 s{T0}, s{T0}, {WS_G}")
    a(f"buffer_store_dword v140, v6, s[{SRD_WS}:{SRD_WS+3}], s{T0} offen sc1")
    a("s_branch L_g_r1")
    a.label("L_g_tail")
    groups = kv_pieces()
    def issue_kv(pieces):
        n = (len(pieces) + 3) // 4
        for q in range(n):
            idx = [pieces[min(4 * q + j, len(pieces) - 1)] for j in range(4)]
            if idx == [idx[0] + k for k in range(4)]:
                a(f"s_add_u32 s{T0}, s45, {idx[0]*1024}")
            else:
                a(f"s_mov_b32 s{T0}, {idx[0]*1024}")
                for j in range(1, 4):
                    a(f"s_cmp_eq_u32 s44, {j}")
                    a(f"s_cselect_b32 s{T0}, {idx[j]*1024}, s{T0}")
            a(f"s_mov_b32 m0, s{T0}")
            a("s_nop 0")
            a(f"buffer_load_dwordx4 v2, s[{SRD_WS}:{SRD_WS+3}], s{T0} offen sc1 lds")
        return n
    kv_out = 0
    for s in range(11, 16):
        ring_after = max(0, 15 - (s + 1)) * ND
        if s < 15:
            a(f"s_waitcnt vmcnt({min(63, ring_after + kv_out)})")
        a("s_barrier")
        last_n = issue_kv(groups[s])
        kv_out += last_n
    a("v_cmp_gt_u32 vcc, 4, v1")
    a("v_lshlrev_b32 v3, 2, v1")
    a(f"v_add_u32 v3, {MISC}, v3")
    a("v_cndmask_b32 v4, 0, 2, vcc".replace("v_cndmask_b32 ", "v_cndmask_b32_e64 "))
    a("s_mov_b64 exec, 0xffff")
    a("ds_write_b32 v3, v4")
    a("s_mov_b64 exec, -1")
    a(f"s_waitcnt vmcnt({last_n}) lgkmcnt(0)")
    a("s_barrier")
    a(f"v_mov_b32 v3, {M_KV}")
    a("v_mov_b32 v4, 1")
    a("s_waitcnt vmcnt(0)")
    a("s_mov_b64 exec, 1")
    a("ds_add_u32 v3, v4")
    a("s_mov_b64 exec, -1")
    a("s_branch L_g2")

def gen_g2(a):
    ROLE[0] = "g"
    a.label("L_g2")
    a("s_setprio 1")
    stamp(a, 4)
    ACC = 64; AFR = 16; WF = 40
    WO = 128
    make_srd(a, 48, S_WD, 1792 * 512 * 2)
    make_srd(a, 52, S_WO, 512 * 512 * 2)
    make_srd(a, 56, S_OUT, 2048 * 512 * 2)
    a("v_lshrrev_b32 v3, 3, v1")
    a("v_bfe_u32 v4, v1, 4, 1")
    a("v_lshlrev_b32 v4, 2, v4")
    a("v_and_b32 v5, 7, v1")
    a("v_xor_b32 v5, v5, v4")
    a("v_lshlrev_b32 v5, 4, v5")
    a("v_lshl_add_u32 v5, v3, 10, v5")
    a(f"s_lshl_b32 s{T0}, s{S_CT}, 7")
    a(f"v_add_u32 v5, s{T0}, v5")
    a("v_add_u32 v8, 0x2000, v5")
    a("v_lshrrev_b32 v3, 4, v1")
    a("v_bfe_u32 v4, v1, 2, 2")
    a("v_lshrrev_b32 v6, 1, v3")
    a("v_lshl_add_u32 v6, v6, 3, v4")
    a("v_lshlrev_b32 v6, 7, v6")
    a("v_lshrrev_b32 v4, 1, v4")
    a("v_lshl_add_u32 v6, v4, 6, v6")
    a("v_and_b32 v3, 1, v3")
    a("v_lshl_add_u32 v6, v3, 5, v6")
    a("v_and_b32 v3, 1, v1")
    a("v_lshl_add_u32 v6, v3, 4, v6")
    a("v_bfe_u32 v3, v1, 1, 1")
    a("v_lshl_add_u32 v6, v3, 3, v6")
    a(f"s_mul_i32 s46, s44, {GS_W}")
    a(f"s_add_u32 s46, s46, {GS}")
    a("v_add_u32 v6, s46, v6")
    a(f"s_and_b32 s{T0}, s44, 1")
    a(f"s_lshl_b32 s{T0}, s{T0}, 6")
    a(f"v_xor_b32 v6, s{T0}, v6")
    a("v_xor_b32 v7, 64, v6")
    a(f"s_lshr_b32 s{T0}, s44, 1")
    a(f"s_mul_i32 s{T1}, s{T0}, {144*1024}")
    a(f"v_add_u32 v10, s{T1}, v2")
    a(f"s_sub_u32 s{T1}, {144*1024}, s{T1}")
    a(f"v_add_u32 v9, s{T1}, v2")
    a(f"s_lshl_b32 s{T0}, s{S_TP}, 8")
    a(f"s_add_u32 s{T0}, s{T0}, {WS_G}")
    a("v_and_b32 v3, 31, v1")
    a("v_lshlrev_b32 v3, 2, v3")
    a(f"s_lshr_b32 s{T1}, s44, 1")
    a(f"s_lshl_b32 s{T1}, s{T1}, 7")
    a(f"v_xor_b32 v3, s{T1}, v3")
    a("v_xor_b32 v4, 0x80, v3")
    a(f"buffer_load_dword v12, v3, s[{SRD_WS}:{SRD_WS+3}], s{T0} offen sc1")
    a(f"buffer_load_dword v13, v4, s[{SRD_WS}:{SRD_WS+3}], s{T0} offen sc1")
    a(f"s_mul_i32 s64, s44, {28*16384}")
    a(f"s_lshl_b32 s{T0}, s{S_TP}, 1")
    a(f"s_mul_i32 s65, s{T0}, 144")
    a("s_mov_b32 s72, s65")
    a(f"s_mul_i32 s{T1}, s44, 28")
    a(f"s_add_u32 s65, s65, s{T1}")
    a("s_lshl_b32 s65, s65, 10")
    a(f"s_add_u32 s65, s65, {WS_AF}")
    a(f"v_mov_b32 v3, {M_HD}")
    a("s_mov_b64 exec, 1")
    a("s_mov_b32 s71, 0")
    a.label("L_g_hd")
    a("ds_read_b32 v4, v3")
    a("s_add_u32 s71, s71, 1")
    a("s_waitcnt lgkmcnt(0)")
    a("v_cmp_gt_u32 vcc, 8, v4")
    a(f"s_cmp_ge_u32 s71, {SPIN*4}")
    a("s_cbranch_scc1 L_g_hd2")
    a("s_sleep 2")
    a("s_cbranch_vccnz L_g_hd")
    a.label("L_g_hd2")
    a("s_cmp_lg_u32 s44, 0")
    a("s_cbranch_scc1 L_g_nosig")
    a(f"s_lshl_b32 s{T0}, s{S_MT}, 7")
    a(f"s_add_u32 s{T0}, s{T0}, {WS_FL}")
    a(f"v_mov_b32 v3, s{T0}")
    a("v_mov_b32 v4, 1")
    a(f"global_atomic_add v3, v4, s[{S_WS}:{S_WS+1}] sc1")
    a.label("L_g_nosig")
    a("s_mov_b64 exec, -1")
    a("v_lshlrev_b32 v3, 7, v1")
    a("s_lshr_b32 s74, s2, 3")
    a(f"s_mul_i32 s75, s74, 57344")
    a(f"s_lshl_b32 s{T0}, s44, 14")
    a(f"s_add_u32 s75, s75, s{T0}")
    a("buffer_load_dword v14, v3, s[48:51], s75 offen")
    a("s_add_u32 s75, s75, 8192")
    a("s_cmp_eq_u32 s44, 3")
    a("s_cbranch_scc1 L_g_pfo")
    a("buffer_load_dword v15, v3, s[48:51], s75 offen")
    a("s_branch L_g_pfd")
    a.label("L_g_pfo")
    a("s_lshl_b32 s75, s74, 14")
    a("buffer_load_dword v15, v3, s[52:55], s75 offen")
    a("s_add_u32 s75, s75, 8192")
    a("buffer_load_dword v14, v3, s[52:55], s75 offen")
    a.label("L_g_pfd")
    a(f"s_lshr_b32 s{T0}, s{S_TP}, 1")
    a(f"s_lshl_b32 s{T0}, s{T0}, 7")
    a(f"s_add_u32 s73, s{T0}, {WS_FL}")
    a("v_mov_b32 v3, s73")
    poll(a, "L_h", S_WS, 3, 4, 16, sleep=16)
    a(f"v_mov_b32 v3, {M_CD}")
    a("s_mov_b32 s71, 0")
    a.label("L_g_qr")
    a("ds_read_b32 v4, v3")
    a("s_add_u32 s71, s71, 1")
    a("s_waitcnt lgkmcnt(0)")
    a("v_cmp_gt_u32 vcc, 8, v4")
    a(f"s_cmp_ge_u32 s71, {SPIN*4}")
    a("s_cbranch_scc1 L_g_qr2")
    a("s_nop 1")
    a("s_cbranch_vccnz L_g_qr")
    a.label("L_g_qr2")
    stamp(a, 5)
    def issue(sl, srd):
        a(f"s_add_u32 m0, s46, {sl*2048}")
        a("s_nop 0")
        a(f"buffer_load_dwordx4 v5, s[{srd}:{srd+3}], s64 offen lds")
        a(f"s_add_u32 m0, s46, {sl*2048+1024}")
        a("s_nop 0")
        a(f"buffer_load_dwordx4 v8, s[{srd}:{srd+3}], s64 offen lds")
        a("s_add_u32 s64, s64, 16384")
    def issue_act(sl):
        r = AFR + sl * 8
        a(f"buffer_load_dwordx4 v[{r}:{r+3}], v10, s[{SRD_WS}:{SRD_WS+3}], s65 offen sc1")
        a(f"buffer_load_dwordx4 v[{r+4}:{r+7}], v9, s[{SRD_WS}:{SRD_WS+3}], s65 offen sc1")
        a("s_add_u32 s65, s65, 1024")
    def trreads(sl, dst):
        a(f"ds_read_b64_tr_b16 v[{dst}:{dst+1}], v6 offset:{sl*2048}")
        a(f"ds_read_b64_tr_b16 v[{dst+2}:{dst+3}], v6 offset:{sl*2048+512}")
        a(f"ds_read_b64_tr_b16 v[{dst+4}:{dst+5}], v7 offset:{sl*2048}")
        a(f"ds_read_b64_tr_b16 v[{dst+6}:{dst+7}], v7 offset:{sl*2048+512}")
    def mf4(w, r):
        for t in range(2):
            for c in range(2):
                d = ACC + (t * 2 + c) * 16
                a(f"v_mfma_f32_32x32x16_bf16 v[{d}:{d+15}], v[{w+4*c}:{w+4*c+3}], v[{r+4*t}:{r+4*t+3}], v[{d}:{d+15}]")
    for sl in range(3):
        issue(sl, 48); issue_act(sl)
    WF2 = (WF, 48)
    def dstep(sl, wcur, wnext, issue_next, rd_next, vm, first=False):
        r = AFR + sl * 8
        def mf(t, c):
            if "nog" in FLAGS: return
            d = ACC + (t * 2 + c) * 16
            cc = "0" if first else f"v[{d}:{d+15}]"
            a(f"v_mfma_f32_32x32x16_bf16 v[{d}:{d+15}], v[{wcur+4*c}:{wcur+4*c+3}], v[{r+4*t}:{r+4*t+3}], {cc}")
        a("s_waitcnt lgkmcnt(0)")
        mf(0, 0)
        if issue_next:
            a(f"s_add_u32 m0, s46, {sl*2048}")
            a("s_nop 0")
            a(f"buffer_load_dwordx4 v5, s[48:51], s64 offen lds")
            a(f"s_add_u32 m0, s46, {sl*2048+1024}")
            a("s_nop 0")
            a(f"buffer_load_dwordx4 v8, s[48:51], s64 offen lds")
            a("s_add_u32 s64, s64, 16384")
        mf(0, 1)
        if issue_next:
            a(f"buffer_load_dwordx4 v[{r}:{r+3}], v10, s[{SRD_WS}:{SRD_WS+3}], s65 offen sc1")
        if rd_next:
            a(f"s_waitcnt vmcnt({vm})")
        mf(1, 0)
        if rd_next:
            trreads((sl + 1) % 3, wnext)
        mf(1, 1)
        if issue_next:
            a(f"buffer_load_dwordx4 v[{r+4}:{r+7}], v9, s[{SRD_WS}:{SRD_WS+3}], s65 offen sc1")
            a("s_add_u32 s65, s65, 1024")
    a("s_waitcnt vmcnt(8)")
    trreads(0, WF2[0])
    dstep(0, WF2[0], WF2[1], True, True, 7, first=True)
    a("s_mov_b32 s71, 0")
    a.label("L_d_loop")
    for st in range(1, 7):
        dstep(st % 3, WF2[st % 2], WF2[(st + 1) % 2], True, True, 7)
    a("s_add_u32 s71, s71, 1")
    a("s_cmp_lt_u32 s71, 4")
    a("s_cbranch_scc1 L_d_loop")
    dstep(1, WF2[1], WF2[0], False, True, 4)
    dstep(2, WF2[0], WF2[1], False, True, 0)
    dstep(0, WF2[1], WF2[0], False, False, 0)
    stamp(a, 6)
    a(f"s_mul_i32 s64, s44, {8*16384}")
    WOR = [128, 136, 144, 152, 16, 24, 32, 40]
    for sl in range(3):
        issue(sl, 52)
    a("v_sub_f32 v12, 1.0, v12")
    a("v_sub_f32 v13, 1.0, v13")
    a("s_nop 7")
    for t in range(2):
        for i in range(0, 32, 2):
            a(f"v_pk_mul_f32 v[{ACC+t*32+i}:{ACC+t*32+i+1}], v[{ACC+t*32+i}:{ACC+t*32+i+1}], v[12:13] op_sel:[0,{t}] op_sel_hi:[1,{t}]")
    for k in range(8):
        sl = k % 3
        left = min(8, k + 3) - k - 1
        a(f"s_waitcnt vmcnt({2*left})")
        trreads(sl, WOR[k])
        a("s_waitcnt lgkmcnt(0)")
        if k + 3 < 8:
            issue(sl, 52)
    a(f"v_mov_b32 v3, {M_GD}")
    a("v_mov_b32 v4, 1")
    a("s_mov_b64 exec, 1")
    a("ds_add_u32 v3, v4")
    a(f"s_lshl_b32 s{T1}, s44, 3")
    a(f"s_add_u32 s65, s72, s{T1}")
    a("s_add_u32 s65, s65, 112")
    a("s_lshl_b32 s65, s65, 10")
    a(f"s_add_u32 s65, s65, {WS_AF}")
    a("s_add_u32 s66, s65, 4096")
    a("s_mov_b64 exec, -1")
    a("v_lshrrev_b32 v3, 1, v1")
    a("v_lshlrev_b32 v3, 11, v3")
    a("v_and_b32 v4, 1, v1")
    a(f"v_mul_u32_u24 v4, {144*1024}, v4")
    a("v_add_u32 v3, v3, v4")
    a("v_add_u32 v3, 2044, v3")
    a("s_lshl_b32 s72, s44, 14")
    a("v_add_u32 v161, s72, v2")
    a(f"s_lshl_b32 s{T0}, s44, 2")
    a(f"s_add_u32 s{T0}, s{T0}, {M_FIN}")
    a(f"v_mov_b32 v5, s{T0}")
    a(f"v_mov_b32 v8, {M_KF}")
    a("s_mov_b32 s71, 0")
    a("s_mov_b64 exec, 0xff")
    a.label("L_g_cd")
    a("ds_read_b32 v4, v5")
    a("s_add_u32 s71, s71, 1")
    a("s_waitcnt lgkmcnt(0)")
    a(f"v_cmp_gt_u32 vcc, {FGATE}, v4")
    a(f"s_cmp_ge_u32 s71, {SPIN}")
    a("s_cbranch_scc1 L_g_cd2")
    a("s_sleep 4")
    a("s_cbranch_vccnz L_g_cd")
    a.label("L_g_cd2")
    stamp(a, 7)
    a("s_mov_b32 s71, 0")
    a.label("L_o_probe")
    a(f"buffer_load_dword v4, v3, s[{SRD_WS}:{SRD_WS+3}], s65 offen sc1")
    a("s_add_u32 s71, s71, 1")
    a("s_waitcnt vmcnt(0)")
    a("v_cmp_eq_u32 vcc, -1, v4")
    a(f"s_cmp_ge_u32 s71, {SPIN}")
    a("s_cbranch_scc1 L_o_kf")
    a("s_nop 0")
    a("s_cbranch_vccnz L_o_probe")
    a.label("L_o_kf")
    a("ds_read_b32 v4, v8")
    a("s_add_u32 s71, s71, 1")
    a("s_waitcnt lgkmcnt(0)")
    a("v_cmp_gt_u32 vcc, 8, v4")
    a(f"s_cmp_ge_u32 s71, {SPIN*8}")
    a("s_cbranch_scc1 L_o_go")
    a("s_sleep 1")
    a("s_cbranch_vccnz L_o_kf")
    a.label("L_o_go")
    a("s_mov_b64 exec, -1")
    def dma_o(k):
        so = 65 if k < 4 else 66
        a(f"s_add_u32 m0, s72, {2*k*1024 - (k%4)*1024}")
        a("s_nop 0")
        a(f"buffer_load_dwordx4 v10, s[{SRD_WS}:{SRD_WS+3}], s{so} offen offset:{(k%4)*1024} sc1 lds")
        a(f"s_add_u32 m0, s72, {(2*k+1)*1024 - (k%4)*1024}")
        a("s_nop 0")
        a(f"buffer_load_dwordx4 v9, s[{SRD_WS}:{SRD_WS+3}], s{so} offen offset:{(k%4)*1024} sc1 lds")
    for k in range(8): dma_o(k)
    AR = [48, 56]
    def rd_o(k):
        r = AR[k % 2]
        a(f"ds_read_b128 v[{r}:{r+3}], v161 offset:{2*k*1024}")
        a(f"ds_read_b128 v[{r+4}:{r+7}], v161 offset:{(2*k+1)*1024}")
    a("s_waitcnt vmcnt(14)")
    rd_o(0)
    for k in range(8):
        r = AR[k % 2]
        if k < 7:
            a(f"s_waitcnt vmcnt({2*(6-k)})")
            rd_o(k + 1)
            a("s_waitcnt lgkmcnt(2)")
        else:
            a("s_waitcnt lgkmcnt(0)")
        a.label(f"L_o_chk{k}")
        a(f"v_max3_u32 v3, v{r}, v{r+1}, v{r+2}")
        a(f"v_max3_u32 v4, v{r+3}, v{r+4}, v{r+5}")
        a(f"v_max3_u32 v3, v3, v{r+6}, v{r+7}")
        a("v_max_u32 v3, v3, v4")
        a("v_cmp_eq_u32 vcc, -1, v3")
        a("s_nop 1")
        a(f"s_cbranch_vccnz L_o_bad{k}")
        a.label(f"L_o_ok{k}")
        mf4(WOR[k], r)
    a("s_branch L_o_done")
    for k in range(8):
        r = AR[k % 2]
        so = 65 if k < 4 else 66
        a.label(f"L_o_bad{k}")
        a("s_add_u32 s71, s71, 1")
        a(f"s_cmp_ge_u32 s71, {SPIN}")
        a(f"s_cbranch_scc1 L_o_ok{k}")
        a(f"buffer_load_dwordx4 v[{r}:{r+3}], v10, s[{SRD_WS}:{SRD_WS+3}], s{so} offen offset:{(k%4)*1024} sc1")
        a(f"buffer_load_dwordx4 v[{r+4}:{r+7}], v9, s[{SRD_WS}:{SRD_WS+3}], s{so} offen offset:{(k%4)*1024} sc1")
        a("s_waitcnt vmcnt(0)")
        a(f"s_branch L_o_chk{k}")
    a.label("L_o_done")
    stamp(a, 8)
    for i in (1, 2, 3):
        a(f"s_xor_b32 s65, s44, {i}")
        a("s_mul_i32 s65, s65, 12288")
        a(f"s_add_u32 s65, s65, {0x10000 + (i-1)*4096}")
        a(f"v_add_u32 v{2+i}, s65, v2")
    a("s_mul_i32 s65, s44, 12288")
    a("s_add_u32 s65, s65, 0x10000")
    a("v_add_u32 v8, s65, v2")
    a("s_nop 3")
    for i in (1, 2, 3):
        for q in range(4):
            a(f"ds_write_b128 v{2+i}, v[{ACC+16*i+4*q}:{ACC+16*i+4*q+3}] offset:{q*1024}")
    a("s_waitcnt lgkmcnt(0)")
    a("s_barrier")
    for i in (1, 2, 3):
        for q in range(4):
            a(f"ds_read_b128 v[{ACC+16*i+4*q}:{ACC+16*i+4*q+3}], v8 offset:{(i-1)*4096+q*1024}")
    a("s_lshr_b32 s65, s44, 1")
    a("s_lshl_b32 s65, s65, 5")
    a(f"s_lshl_b32 s{T0}, s{S_TP}, 6")
    a(f"s_add_u32 s65, s65, s{T0}")
    a("s_lshl_b32 s65, s65, 10")
    a(f"s_lshl_b32 s{T0}, s{S_CT}, 7")
    a(f"s_add_u32 s65, s65, s{T0}")
    a(f"s_and_b32 s{T0}, s44, 1")
    a(f"s_lshl_b32 s{T0}, s{T0}, 6")
    a(f"s_add_u32 s65, s65, s{T0}")
    a("v_and_b32 v3, 31, v1")
    a("v_lshlrev_b32 v3, 10, v3")
    a("v_lshrrev_b32 v4, 5, v1")
    a("v_lshl_add_u32 v3, v4, 4, v3")
    a("s_waitcnt lgkmcnt(0)")
    for i in range(0, 16, 2):
        a(f"v_pk_add_f32 v[{ACC+16+i}:{ACC+17+i}], v[{ACC+16+i}:{ACC+17+i}], v[{ACC+32+i}:{ACC+33+i}]")
        a(f"v_pk_add_f32 v[{ACC+i}:{ACC+1+i}], v[{ACC+i}:{ACC+1+i}], v[{ACC+48+i}:{ACC+49+i}]")
    for i in range(0, 16, 2):
        a(f"v_pk_add_f32 v[{ACC+i}:{ACC+1+i}], v[{ACC+i}:{ACC+1+i}], v[{ACC+16+i}:{ACC+17+i}]")
    for j in range(8):
        a(f"v_cvt_pk_bf16_f32 v{ACC+j}, v{ACC+2*j}, v{ACC+2*j+1}")
    om = " sc1" if "outsc1" in FLAGS else (" nt" if "outnt" in FLAGS else "")
    a(f"buffer_store_dwordx4 v[{ACC}:{ACC+3}], v3, s[56:59], s65 offen{om}")
    a(f"buffer_store_dwordx4 v[{ACC+4}:{ACC+7}], v3, s[56:59], s65 offen offset:32{om}")
    stamp(a, 9)

def main(out):
    a = Asm()
    gen(a)
    txt = HEADER
    txt += f"; @launch grid=(256,1,1) block=(768,1,1) lds={LDS}\n"
    txt += '.amdgcn_target "amdgcn-amd-amdhsa--gfx950"\n.text\n' + a.text()
    txt += '.section .rodata,"a"\n'
    txt += kernel_desc(KN, 168)
    open(out, "w").write(txt)

if __name__ == "__main__":
    if "stamps" in sys.argv: STAMPS = True
    FLAGS.update(sys.argv[2:])
    if "pre3" in FLAGS: NPRE = 3
    for f in list(FLAGS):
        if f.startswith("ninit="): NINIT = int(f[6:])
        if f.startswith("pstep="): PSTEP = int(f[6:])
        if f.startswith("na="): NA = int(f[3:])
        if f.startswith("fgate="): FGATE = int(f[6:])
        if f.startswith("pst0="): PST0 = int(f[5:])
    main(sys.argv[1] if len(sys.argv) > 1 else f"cdna_kernels/{NAME}.s")
```
